```python
import torch

def _softmax(x, axis=-1):
    return torch.softmax(x, dim=axis)
def _gelu(x):
    return torch.nn.functional.gelu(x, approximate="tanh")
def _silu(x):
    return torch.nn.functional.silu(x)
def _sigmoid(x):
    return torch.sigmoid(x)
def _layernorm(x, axis=-1, eps=1e-5):
    m = x.mean(dim=axis, keepdim=True)
    v = x.var(dim=axis, keepdim=True, unbiased=False)
    return (x - m) / torch.sqrt(v + eps)
def _scatter_add(tgt, idx, src, axis=0):
    return tgt.clone().index_add_(axis, idx, src)
def _segment_sum(src, seg, n):
    out = torch.zeros((n,) + src.shape[1:], dtype=src.dtype)
    return out.index_add_(0, seg, src)
def _pad(x, pw):
    flat = tuple(v for pair in reversed(pw) for v in pair)
    return torch.nn.functional.pad(x, flat)

kernel_name = 'recurrent_scan__compressed_kv_cla__geglu_ffn__decode'

def setup_inputs():

    _w = (lambda a: (lambda t: t.to(torch.bfloat16) if t.is_floating_point() else t)(torch.as_tensor(a)))
    def _A_setup():
        B, H, Sq, Sk, D, M = 2, 16, 1, 4096, 256, 448
        Dc = 4 * D
        return {
            "x": _w((lambda *s: torch.randn(*s, dtype=torch.bfloat16) * 0.05)(B, Sq, M)),
            "c_kv": _w((lambda *s: torch.randn(*s, dtype=torch.bfloat16) * 0.8)(B, Sk, Dc)),
            "w_q": _w((lambda *s: torch.randn(*s, dtype=torch.bfloat16) * 1.6)(M, H, D) * (M ** -0.5)),
            "w_uk": _w((lambda *s: torch.randn(*s, dtype=torch.bfloat16) * 1.6)(Dc, H, D) * (Dc ** -0.5)),
            "w_uv": _w((lambda *s: torch.randn(*s, dtype=torch.bfloat16) * 0.8)(Dc, H, D) * (Dc ** -0.5)),
            "w_o": _w((lambda *s: torch.randn(*s, dtype=torch.bfloat16) * 0.8)(H, D, M) * ((H * D) ** -0.5)),
        }
    _A_in = _A_setup()

    def _B_setup():
        B, S, D, F = 2, 1, 448, 1792
        return {
            "x": _w((lambda *s: torch.randn(*s, dtype=torch.bfloat16) * 0.05)(B, S, D)),
            "w_gate": _w((lambda *s: torch.randn(*s, dtype=torch.bfloat16) * 0.2)(D, F)),
            "w_up": _w((lambda *s: torch.randn(*s, dtype=torch.bfloat16) * 0.2)(D, F)),
            "w_down": _w((lambda *s: torch.randn(*s, dtype=torch.bfloat16) * 0.2)(F, D)),
        }
    _B_in = _B_setup()

    return {
        "A_x": _A_in["x"],
        "A_c_kv": _A_in["c_kv"],
        "A_w_q": _A_in["w_q"],
        "A_w_uk": _A_in["w_uk"],
        "A_w_uv": _A_in["w_uv"],
        "A_w_o": _A_in["w_o"],
        "B_x": _B_in["x"],
        "B_w_gate": _B_in["w_gate"],
        "B_w_up": _B_in["w_up"],
        "B_w_down": _B_in["w_down"],
    }

def reference(A_x, A_c_kv, A_w_q, A_w_uk, A_w_uv, A_w_o, B_x, B_w_gate, B_w_up, B_w_down):
    def _A_ref(x, c_kv, w_q, w_uk, w_uv, w_o):
        B, Sq, M = x.shape[0], x.shape[1], x.shape[2]
        Sk = c_kv.shape[1]
        H, D = w_q.shape[1], w_q.shape[2]
        q = torch.einsum("bqm,mhd->bhqd", x, w_q)
        k = torch.einsum("bkc,chd->bhkd", c_kv, w_uk)
        v = torch.einsum("bkc,chd->bhkd", c_kv, w_uv)
        scores = torch.einsum("bhqd,bhkd->bhqk", q, k) * (D ** -0.5)
        off = Sk - Sq
        qi = torch.arange(Sq)[:, None]
        kj = torch.arange(Sk)[None, :]
        cmask = kj <= (qi + off)
        scores = torch.where(cmask[None, None], scores, -1e9)
        p = _softmax(scores, axis=-1)
        ctx = torch.einsum("bhqk,bhkd->bhqd", p, v)
        return torch.einsum("bhqd,hdm->bqm", ctx, w_o)

    def _B_ref(x, w_gate, w_up, w_down):
        return (_gelu(x @ w_gate) * (x @ w_up)) @ w_down

    x = A_x
    xn = _layernorm(x, axis=-1)
    s = _A_ref(xn, A_c_kv, A_w_q, A_w_uk, A_w_uv, A_w_o)
    g = _silu(_B_ref(xn, B_w_gate, B_w_up, B_w_down))
    return x + s * g
```

```python
import re
TRANS = ("v_exp_f32","v_log_f32","v_rcp_f32","v_rsq_f32","v_sqrt_f32","v_sin_f32","v_cos_f32","v_rcp_iflag_f32")
def regs_of(tok):
    t = tok.strip()
    t = re.sub(r"^(neg|abs)\((.*)\)$", r"\2", t).lstrip("-").strip("|")
    m = re.fullmatch(r"([vas])(\d+)", t)
    if m: return {(m.group(1), int(m.group(2)))}
    m = re.fullmatch(r"([vas])\[(\d+):(\d+)\]", t)
    if m: return {(m.group(1), i) for i in range(int(m.group(2)), int(m.group(3))+1)}
    if t == "vcc": return {("s",106),("s",107)}
    if t == "exec": return {("s",126),("s",127)}
    if t == "m0": return {("s",124)}
    return set()
def split_ops(s):
    ops, depth, cur = [], 0, ""
    for ch in s:
        if ch in "[(": depth += 1
        elif ch in "])": depth -= 1
        if ch == "," and depth == 0: ops.append(cur.strip()); cur = ""
        else: cur += ch
    if cur.strip(): ops.append(cur.strip())
    mods = []
    out = []
    for o in ops:
        parts = o.split()
        out.append(parts[0]); mods += parts[1:]
    return out, mods
class I:
    def __init__(self, text):
        self.text = text
        parts = text.strip().split(None, 1)
        self.mn = parts[0]
        self.ops, self.mods = split_ops(parts[1]) if len(parts) > 1 else ([], [])
        mn = self.mn; R = [regs_of(o) for o in self.ops]
        U = lambda l: set().union(*l) if l else set()
        self.kind = "other"; self.w = set(); self.r = set(); self.srcC = set(); self.ab = set(); self.states = 1
        self.dpp = mn.endswith("_dpp") or any(m.startswith(("row_","quad_perm","wave_")) for m in self.mods)
        self.storedata = set()
        if mn == "s_nop": self.states = int(self.ops[0], 0) + 1; self.kind = "salu"
        elif mn.startswith("v_mfma"):
            self.kind = "mfma"; self.w = R[0]; self.ab = R[1] | R[2]; self.srcC = R[3]; self.r = self.ab | self.srcC
            self.passes = 8 if "32x32" in mn else 4
        elif mn.startswith("v_"):
            self.kind = "valu"
            if mn.startswith("v_permlane") and "swap" in mn: self.w = U(R[:2]); self.r = U(R[:2])
            elif mn.startswith(("v_add_co","v_sub_co","v_addc_co","v_subb_co")): self.w = U(R[:2]); self.r = U(R[2:])
            else:
                self.w = R[0]; self.r = U(R[1:])
                if mn.startswith(("v_fmac","v_dot2c","v_pk_fmac")) or self.dpp or mn.startswith("v_writelane"): self.r |= R[0]
        elif mn.startswith("ds_"):
            self.kind = "ds"
            if mn.startswith(("ds_read","ds_bpermute","ds_permute","ds_swizzle")): self.w = R[0]; self.r = U(R[1:])
            else: self.r = U(R)
        elif mn.startswith(("buffer_","global_")):
            self.kind = "vmem"
            self.ldsdma = ("lds" in self.mods) or ("_lds_" in mn)
            if "load" in mn and not self.ldsdma: self.w = R[0]; self.r = U(R[1:])
            else:
                self.r = U(R)
                if self.ldsdma: self.r |= {("s",124)}
                if "store" in mn and ("x3" in mn or "x4" in mn):
                    self.storedata = R[0] if mn.startswith("buffer_") else R[1]
        elif mn.startswith("s_"):
            self.kind = "salu"
            if mn.startswith(("s_load","s_buffer_load","s_memtime","s_memrealtime")): self.kind = "smem"; self.w = R[0]; self.r = U(R[1:])
            elif mn.startswith(("s_cmp","s_waitcnt","s_barrier","s_branch","s_cbranch","s_endpgm","s_sleep","s_setprio","s_bitcmp")): self.r = U(R)
            else:
                self.w = R[0] if R else set(); self.r = U(R[1:])
                if "saveexec" in mn: self.w |= regs_of("exec")
def need(p, c):
    n = 0
    vg = lambda s: {x for x in s if x[0] in "va"}
    sg = lambda s: {x for x in s if x[0] == "s"}
    if p.kind == "valu":
        pw = vg(p.w); ps = sg(p.w)
        isdot = p.mn.startswith("v_dot")
        if c.kind == "mfma" and pw & c.r: n = max(n, 3 if isdot else 2)
        if c.kind == "valu":
            if c.dpp and pw & c.r: n = max(n, 2)
            if c.mn.startswith("v_permlane") and pw & c.r: n = max(n, 2)
            if c.mn.startswith(("v_readlane","v_readfirstlane")) and pw & c.r: n = max(n, 1)
            if ps & c.r: n = max(n, 4 if c.mn.startswith(("v_readlane","v_writelane")) else 2)
        if p.mn.replace("_e32","").replace("_e64","") in TRANS and pw & c.r: n = max(n, 1)
        if isdot and pw & (c.r | c.w):
            same_c = (c.mn == p.mn) and not (pw & (regs_of(c.ops[1]) | regs_of(c.ops[2])))
            if not same_c: n = max(n, 3)
        if c.kind == "vmem" and ps & c.r: n = max(n, 5)
        if c.kind in ("smem",) and ps & c.r: n = max(n, 5)
        if c.kind == "salu" and ps & c.r: n = max(n, 1)
    if p.kind == "mfma":
        big = {4: 8, 8: 12}[p.passes]; ov = {4: 6, 8: 10}[p.passes]; war = {4: 3, 8: 7}[p.passes]
        if c.kind == "mfma":
            if p.w & c.ab: n = max(n, big)
            if p.w & c.srcC and not (p.w == c.srcC and p.passes == c.passes): n = max(n, ov)
            if p.w & c.w and not (p.w == c.srcC): n = max(n, ov)
        elif c.kind in ("valu","vmem","ds"):
            if p.w & (c.r | c.w): n = max(n, big)
            if c.kind == "valu" and p.srcC & c.w: n = max(n, war)
            if c.kind in ("ds","vmem") and p.srcC & c.w: n = max(n, war)
    if p.kind == "salu" and ("s",124) in p.w and c.kind == "vmem" and getattr(c,"ldsdma",False): n = max(n, 1)
    if p.storedata and p.storedata & c.w: n = max(n, 2)
    return n
class Asm:
    def __init__(self):
        self.lines = []; self.hist = []; self.nnop = 0
    def raw(self, s): self.lines.append(s)
    def label(self, s): self.lines.append(s + ":")
    def c(self, s): self.lines.append("  ; " + s)
    def __call__(self, text):
        for t in text.split("\n"):
            t = t.split(";")[0].strip()
            if not t: continue
            ins = I(t)
            dist = 0; pad = 0
            for p in reversed(self.hist):
                pad = max(pad, need(p, ins) - dist)
                dist += p.states
                if dist >= 20: break
            if pad > 0:
                self._emit(I(f"s_nop {pad-1}")); self.nnop += 1
            self._emit(ins)
    def _emit(self, ins):
        self.lines.append("  " + ins.text); self.hist.append(ins)
        if len(self.hist) > 40: self.hist.pop(0)
    def flush(self, n=12):
        dist = 0; pad = 0
        for p in reversed(self.hist):
            lim = 12 if p.kind == "mfma" else (5 if p.kind == "valu" else (2 if p.storedata else 1 if ("s",124) in p.w else 0))
            pad = max(pad, lim - dist); dist += p.states
            if dist >= 20: break
        if pad > 0: self._emit(I(f"s_nop {pad-1}"))
    def text(self): return "\n".join(self.lines) + "\n"
```

```python
import sys, struct
from asmdsl import Asm
NAME = "recurrent_scan__compressed_kv_cla__geglu_ffn__decode_kernel"
opt = dict(stamps=0, round_s=0, nt="nt", N0=6, codekb=16, thr_g=2, thr_uv=2)
for a in sys.argv[1:]:
    k, v = a.split("="); opt[k] = v if k == "nt" else int(v)
NT = opt["nt"] if opt["nt"] != "none" else ""
STAMPS = opt["stamps"]; N0 = opt["N0"]
def f2u(x): return struct.unpack("<I", struct.pack("<f", x))[0]
QAF, QP, QA, HP, LATF, CTXP, OUTP, YP, LAT, STAMP = 0x10000, 0x20000, 0x40000, 0x50000, 0x80000, 0xC0000, 0x100000, 0x180000, 0x200000, 0x800000
WSSZ = 0x1000000
XN, EX, TT, BIG = 0, 1792, 4096, 32768
LDSSZ = 163840
DPPM = "row_mask:0xf bank_mask:0xf"
A = Asm()
hdr = open("recurrent_scan__compressed_kv_cla__geglu_ffn__decode.s.ref").read().split("; Override launch")[0]
A.raw(hdr.rstrip())
A.raw(f"; @launch grid=(256,1,1) block=(256,1,1) lds={LDSSZ}")
A.raw('.amdgcn_target "amdgcn-amd-amdhsa--gfx950"\n.text')
A.raw(f".globl {NAME}\n.p2align 8\n.type {NAME},@function\n{NAME}:")
sWG, sWV, sTAG, sID = "s2", "s3", "s30", "s31"
WS = "s[32:35]"; R1 = "s[36:39]"; R2 = "s[40:43]"
vL, vN, vG, vTAG = "v0", "v1", "v2", "v3"
vST = "v255"
nstamp = [0]
def stamp(k):
    if not STAMPS: return
    A(f"s_memrealtime s[98:99]\ns_waitcnt lgkmcnt(0)\nv_writelane_b32 {vST}, s98, {k}")
def srd(r, lo, size):
    b = int(r[2:4])
    A(f"s_mov_b32 s{b}, s{lo}\ns_mov_b32 s{b+1}, s{lo+1}\ns_mov_b32 s{b+2}, {size}\ns_mov_b32 s{b+3}, 0x20000")
def vr(b, n): return f"v[{b}:{b+n-1}]" if n > 1 else f"v{b}"
def ar(b, n): return f"a[{b}:{b+n-1}]" if n > 1 else f"a{b}"
def tag_insert(dst, src):
    for r in range(4): A(f"v_perm_b32 v{dst+r}, v{src+r}, {vTAG}, s{44+r}")
def tag_check_acc(base, t0, t1, first, acc):
    A(f"v_perm_b32 v{t0}, v{base+1}, v{base}, s48\nv_perm_b32 v{t1}, v{base+3}, v{base+2}, s49")
    if first: A(f"v_or_b32 v{t0}, v{t0}, v{t1}\nv_xor_b32 v{acc}, v{t0}, {vTAG}")
    else: A(f"v_or_b32 v{t0}, v{t0}, v{t1}\nv_xor_b32 v{t0}, v{t0}, {vTAG}\nv_or_b32 v{acc}, v{acc}, v{t0}")
def spin_init(): A("s_mov_b32 s96, 400000")
def spin_check(): A("s_sub_u32 s96, s96, 1\ns_cbranch_scc1 L_end")
def bf16r(dst, src):
    A(f"v_cvt_pk_bf16_f32 v{dst}, v{src}, v{src}\nv_and_b32 v{dst}, 0xffff0000, v{dst}")
def row_sum16(x, op="v_add_f32", steps=(8,4,2,1)):
    for k in steps: A(f"{op}_dpp v{x}, v{x}, v{x} row_ror:{k} {DPPM}")
def swap_red(x, t, which, op="v_add_f32"):
    A(f"v_mov_b32 v{t}, v{x}\nv_permlane{which}_swap_b32 v{t}, v{x}\n{op} v{x}, v{x}, v{t}")
def dma(voff, rsrc, soff, ldsaddr_s, ldsadd, mods=None):
    m = NT if mods is None else mods
    A(f"s_add_u32 m0, {ldsaddr_s}, {ldsadd}")
    A(f"buffer_load_dwordx4 {voff}, {rsrc}, {soff} offen {m} lds")

if STAMPS: A("s_memrealtime s[98:99]")
A(f"s_cmp_ge_u32 s2, 256\ns_cbranch_scc1 L_end0")
A("s_load_dwordx16 s[4:19], s[0:1], 0\ns_load_dwordx8 s[20:27], s[0:1], 64\ns_load_dwordx2 s[28:29], s[0:1], 96")
A(f"v_lshrrev_b32 v4, 6, v0\nv_and_b32 v0, 63, v0\nv_readfirstlane_b32 s3, v4")
A("s_getpc_b64 s[50:51]")
A.label("L_pc")
A(f"s_sub_u32 s50, s50, L_pc-{NAME}\ns_subb_u32 s51, s51, 0")
A(f"s_lshr_b32 s52, s2, 3\ns_lshl_b32 s52, s52, 2\ns_add_u32 s52, s52, s3\ns_and_b32 s52, s52, {opt['codekb']-1}\ns_lshl_b32 s52, s52, 10")
A(f"v_lshlrev_b32 v5, 4, v0\nv_add_u32 v4, s52, v5")
A("global_load_dwordx4 v[250:253], v4, s[50:51]")
A(f"v_and_b32 {vN}, 15, v0\nv_lshrrev_b32 {vG}, 4, v0")
if STAMPS: A(f"v_mov_b32 {vST}, 0")
A("s_mov_b32 s44, 0x07060500\ns_mov_b32 s45, 0x07060501\ns_mov_b32 s46, 0x07060502\ns_mov_b32 s47, 0x07060503")
A("s_mov_b32 s48, 0x0c0c0400\ns_mov_b32 s49, 0x04000c0c")
A("v_lshrrev_b32 v7, 3, v0\nv_and_b32 v6, 6, v7\nv_and_b32 v8, 7, v0\nv_xor_b32 v6, v6, v8\nv_lshlrev_b32 v6, 4, v6")
A("v_lshl_add_u32 v9, v7, 13, v6")
A("v_mul_u32_u24 v10, 28, v0")
A("s_and_b32 s53, s2, 3\ns_lshr_b32 s54, s2, 2")
A(f"s_mul_i32 s55, s53, {112*8192}\ns_lshl_b32 s56, s54, 7\ns_add_u32 s55, s55, s56")
A(f"s_lshl_b32 s56, s3, 16\ns_add_u32 s55, s55, s56")
A(f"s_lshl_b32 s57, s3, 10\ns_add_u32 s57, s57, {TT}")
A("s_and_b32 s31, s2, 127")
A("s_waitcnt lgkmcnt(0)")
if STAMPS: A(f"v_writelane_b32 {vST}, s98, 0")
A("s_load_dword s30, s[28:29], 0")
srd(R1, 8, 448*8192)
srd(WS, 28, WSSZ)
A("s_cmp_ge_u32 s3, 2\ns_cbranch_scc1 L_q3")
A(f"s_add_u32 s56, s55, {12*65536}")
dma("v9", R1, "s56", "s57", 12*1024)
A.label("L_q3")
A("global_load_dwordx4 v[16:19], v10, s[4:5]\nglobal_load_dwordx3 v[20:22], v10, s[4:5] offset:16")
for i in range(3):
    if i: A(f"s_add_u32 s55, s55, {4*65536}")
    dma("v9", R1, "s55", "s57", i*4096)
A("s_cmp_ge_u32 s2, 128\ns_cbranch_scc1 L_a0")
srd(R2, 10, 1024*8192)
A("s_and_b32 s60, s31, 15\ns_lshr_b32 s61, s31, 4")
A("s_lshl_b32 s58, s61, 7\ns_and_b32 s62, s3, 1\ns_lshl_b32 s62, s62, 3\ns_add_u32 s58, s58, s62\ns_lshr_b32 s62, s3, 1\ns_lshl_b32 s62, s62, 6\ns_add_u32 s58, s58, s62")
A("s_lshl_b32 s58, s58, 13\ns_lshl_b32 s62, s60, 9\ns_add_u32 s58, s58, s62")
A(f"s_lshl_b32 s59, s3, 14\ns_add_u32 s59, s59, {BIG}")
A("v_lshrrev_b32 v12, 5, v0\nv_and_b32 v11, 31, v0\nv_xor_b32 v11, v11, v12\nv_lshlrev_b32 v11, 4, v11\nv_lshl_add_u32 v11, v12, 13, v11")
def wuk_dma(i):
    A(f"v_xor_b32 v13, {2*(i&7)*16}, v11")
    A(f"s_add_u32 s62, s58, {(16*(i>>2)+2*(i&3))*8192}")
    dma("v13", R2, "s62", "s59", i*1024)
for i in range(N0): wuk_dma(i)
A(f"s_lshl_b32 s62, s31, 11\ns_lshl_b32 s63, s3, 9\ns_add_u32 s62, s62, s63\ns_add_u32 s62, s62, {LATF}\ns_add_u32 s64, s28, s62\ns_addc_u32 s65, s29, 0")
for i in range(4): A(f"s_load_dword s{66+i}, s[64:65], {128*i} glc")
A("s_branch L_j0")
A.label("L_a0")
srd(R2, 6, 2*4096*2048)
A("s_and_b32 s60, s31, 1\ns_lshr_b32 s61, s31, 1")
A("s_lshl_b32 s58, s60, 23\ns_lshl_b32 s62, s61, 17\ns_add_u32 s58, s58, s62\ns_lshl_b32 s62, s3, 9\ns_add_u32 s58, s58, s62")
A(f"s_lshl_b32 s59, s3, 15\ns_add_u32 s59, s59, {BIG}")
A("v_lshrrev_b32 v12, 5, v0\nv_and_b32 v11, 31, v0\nv_lshlrev_b32 v13, 1, v12\nv_xor_b32 v11, v11, v13\nv_lshlrev_b32 v11, 4, v11\nv_lshl_add_u32 v11, v12, 11, v11")
def ckv_dma(i):
    ii = i & 7; cst = 4*(ii&3) + (ii>>2)
    A(f"v_xor_b32 v13, {cst*16}, v11")
    A(f"s_add_u32 s62, s58, {i*4096}")
    dma("v13", R2, "s62", "s59", i*1024)
for i in range(N0): ckv_dma(i)
A(f"s_lshl_b32 s62, s31, 9\ns_lshl_b32 s63, s3, 7\ns_add_u32 s62, s62, s63\ns_add_u32 s62, s62, {QAF}\ns_add_u32 s100, s28, s62\ns_addc_u32 s101, s29, 0")
A("s_load_dword s66, s[100:101], 0 glc")
A.label("L_j0")
A("v_and_b32 v13, 3, v0\nv_lshlrev_b32 v13, 21, v13\nv_add_u32 v13, 0x8000, v13")
A(f"buffer_load_dword v254, v13, {WS}, 0 offen")
A(f"s_waitcnt vmcnt({3+N0+1})")
stamp(1)
for i in range(7):
    A(f"v_lshlrev_b32 v{24+2*i}, 16, v{16+i}\nv_and_b32 v{25+2*i}, 0xffff0000, v{16+i}")
A("v_add_f32 v40, v24, v25\nv_add_f32 v41, v26, v27")
for i in range(4, 14, 2): A(f"v_add_f32 v40, v40, v{24+i}\nv_add_f32 v41, v41, v{25+i}")
A("v_add_f32 v40, v40, v41")
row_sum16(40); swap_red(40, 41, 16)
A(f"v_mul_f32 v40, {hex(f2u(1.0/448))}, v40")
A("v_sub_f32 v42, v24, v40\nv_sub_f32 v43, v25, v40\nv_mul_f32 v44, v42, v42\nv_mul_f32 v45, v43, v43")
for i in range(2, 14, 2):
    A(f"v_sub_f32 v42, v{24+i}, v40\nv_sub_f32 v43, v{25+i}, v40\nv_fmac_f32 v44, v42, v42\nv_fmac_f32 v45, v43, v43")
A("v_add_f32 v44, v44, v45")
row_sum16(44); swap_red(44, 45, 16)
A(f"v_mul_f32 v44, {hex(f2u(1.0/448))}, v44")
bf16r(40, 40); bf16r(44, 44)
A(f"v_add_f32 v44, {hex(f2u(1e-5))}, v44"); bf16r(44, 44)
A("v_sqrt_f32 v44, v44"); bf16r(44, 44)
A("v_rcp_f32 v44, v44")
for i in range(7):
    A(f"v_sub_f32 v42, v{24+2*i}, v40\nv_sub_f32 v43, v{25+2*i}, v40\nv_cvt_pk_bf16_f32 v42, v42, v43")
    A(f"v_and_b32 v43, 0xffff0000, v42\nv_lshlrev_b32 v42, 16, v42\nv_mul_f32 v42, v42, v44\nv_mul_f32 v43, v43, v44\nv_cvt_pk_bf16_f32 v{16+i}, v42, v43")
for i in range(3): A(f"ds_write2_b32 v10, v{16+2*i}, v{17+2*i} offset0:{2*i} offset1:{2*i+1}")
A("ds_write_b32 v10, v22 offset:24")
A(f"v_and_b32 v14, 1, v0\nv_mul_u32_u24 v15, 896, v14\nv_lshl_add_u32 v15, {vG}, 3, v15\ns_mul_i32 s62, s53, 224\nv_add_u32 v15, s62, v15")
A("s_waitcnt lgkmcnt(0)")
A("s_mul_i32 s30, s30, 1664525\ns_add_u32 s30, s30, 1013904223")
for s in range(7): A(f"ds_read_b64 v[{24+2*s}:{25+2*s}], v15 offset:{32*s}")
A(f"v_mov_b32 {vTAG}, s30")
A(f"v_lshrrev_b32 v39, 2, {vN}\nv_lshl_add_u32 v39, {vG}, 2, v39")
A(f"v_and_b32 v40, 6, v39\nv_bfe_u32 v41, v0, 1, 1\ns_lshl_b32 s62, s3, 1\nv_or_b32 v41, s62, v41\nv_xor_b32 v40, v40, v41")
A(f"v_lshlrev_b32 v38, 7, v39\nv_lshl_add_u32 v38, v40, 4, v38\nv_lshl_add_u32 v38, v14, 3, v38\nv_add_u32 v38, {TT}, v38")
A(f"s_waitcnt vmcnt({N0+1})")
A("s_barrier")
stamp(2)
for s in range(7): A(f"ds_read_b64_tr_b16 v[{44+2*s}:{45+2*s}], v38 offset:{2048*s}")
A(f"s_lshr_b32 s62, s2, 4\ns_lshl_b32 s62, s62, 13\ns_lshl_b32 s63, s53, 11\ns_add_u32 s62, s62, s63\ns_and_b32 s63, s54, 3\ns_lshl_b32 s63, s63, 8\ns_add_u32 s62, s62, s63")
A(f"s_lshl_b32 s63, s3, 6\ns_add_u32 s62, s62, s63\ns_add_u32 s62, s62, {QP}")
A(f"v_lshlrev_b32 v40, 10, v14\nv_lshl_add_u32 v40, {vG}, 4, v40")
for s in range(7):
    A(f"s_waitcnt lgkmcnt({6-s})")
    A(f"v_mfma_f32_16x16x16_bf16 v[60:63], v[{44+2*s}:{45+2*s}], v[{24+2*s}:{25+2*s}], {'0' if s==0 else 'v[60:63]'}")
tag_insert(64, 60)
A("s_mov_b32 exec_lo, 0x00030003\ns_mov_b32 exec_hi, 0x00030003")
A(f"buffer_store_dwordx4 v[64:67], v40, {WS}, s62 offen sc1")
A("s_mov_b64 exec, -1")
stamp(3)
A("s_cmp_ge_u32 s2, 128\ns_cbranch_scc1 L_A")

for i in range(N0, 16): wuk_dma(i)
A(f"v_lshlrev_b32 v40, 11, {vG}\nv_lshl_add_u32 v40, {vN}, 4, v40")
A(f"s_lshl_b32 s63, s60, 13\ns_lshl_b32 s62, s3, 8\ns_add_u32 s63, s63, s62\ns_add_u32 s63, s63, {QP}")
A(f"buffer_load_dwordx4 v[44:47], v40, {WS}, s63 offen sc1\nbuffer_load_dwordx4 v[48:51], v40, {WS}, s63 offen offset:1024 sc1")
A(f"v_xor_b32 v41, {vG}, {vN}\nv_lshlrev_b32 v41, 4, v41\nv_lshl_add_u32 v41, {vN}, 9, v41\nv_add_u32 v41, s59, v41")
A("v_xor_b32 v42, 64, v41\nv_xor_b32 v43, 128, v41\nv_xor_b32 v52, 192, v41")
adr = [41, 42, 43, 52]
for t in range(2):
    A(f"s_waitcnt vmcnt({10-8*t})")
    for s in range(8): A(f"ds_read_b128 a[{32*t+4*s}:{32*t+4*s+3}], v{adr[s&3]} offset:{t*8192+(s>>2)*256}")
stamp(4)
spin_init()
A.label("L_wq")
A("s_waitcnt vmcnt(0)")
tag_check_acc(44, 53, 54, True, 55); tag_check_acc(48, 53, 54, False, 55)
A("v_cmp_ne_u32 vcc, 0, v55\ns_cbranch_vccz L_wq_ok")
spin_check()
A(f"buffer_load_dwordx4 v[44:47], v40, {WS}, s63 offen sc1\nbuffer_load_dwordx4 v[48:51], v40, {WS}, s63 offen offset:1024 sc1")
A("s_branch L_wq")
A.label("L_wq_ok")
for r in range(4): A(f"v_permlane32_swap_b32 v{44+r}, v{48+r}")
for r in range(4): A(f"v_add_f32 v{44+r}, v{44+r}, v{48+r}")
for r in range(2): A(f"v_permlane16_swap_b32 v{44+r}, v{46+r}")
for r in range(2): A(f"v_add_f32 v{44+r}, v{44+r}, v{46+r}")
A("v_cvt_pk_bf16_f32 v44, v44, v45")
A(f"v_lshrrev_b32 v45, 5, v0\nv_lshlrev_b32 v45, 9, v45\nv_lshl_add_u32 v45, {vN}, 3, v45\nv_and_b32 v46, 1, {vG}\nv_lshl_add_u32 v45, v46, 2, v45")
A(f"s_lshl_b32 s62, s3, 7\ns_add_u32 s62, s62, {EX}\nv_add_u32 v45, s62, v45")
A("ds_write_b32 v45, v44")
A(f"v_lshlrev_b32 v46, 9, v14\nv_lshl_add_u32 v46, {vG}, 4, v46")
A("s_waitcnt lgkmcnt(0)\ns_barrier")
for s in range(8): A(f"ds_read_b128 v[{64+4*s}:{67+4*s}], v46 offset:{EX+64*s}")
A(f"v_bfe_u32 v47, v0, 1, 1\nv_lshlrev_b32 v47, 5, v47\nv_lshl_add_u32 v47, {vG}, 3, v47\nv_lshl_add_u32 v47, v14, 15, v47")
A(f"s_lshl_b32 s62, s61, 12\ns_lshl_b32 s63, s60, 8\ns_add_u32 s62, s62, s63\ns_lshl_b32 s63, s3, 6\ns_add_u32 s62, s62, s63\ns_add_u32 s62, s62, {QA}")
for s in range(8):
    A(f"s_waitcnt lgkmcnt({7-s})")
    for t in range(2):
        A(f"v_mfma_f32_16x16x32_bf16 v[{56+4*t}:{59+4*t}], a[{32*t+4*s}:{32*t+4*s+3}], v[{64+4*s}:{67+4*s}], {'0' if s==0 else f'v[{56+4*t}:{59+4*t}]'}")
for r in range(8): A(f"v_mul_f32 v{56+r}, 0x3d800000, v{56+r}")
A("v_cvt_pk_bf16_f32 v48, v56, v57\nv_cvt_pk_bf16_f32 v49, v58, v59")
A("s_mov_b32 exec_lo, 0x000c000c\ns_mov_b32 exec_hi, 0x000c000c")
A("v_cvt_pk_bf16_f32 v48, v60, v61\nv_cvt_pk_bf16_f32 v49, v62, v63")
A("s_mov_b32 exec_lo, 0x000f000f\ns_mov_b32 exec_hi, 0x000f000f")
A(f"buffer_store_dwordx2 v[48:49], v47, {WS}, s62 offen sc1")
A("s_mov_b64 exec, -1")
A(f"v_lshlrev_b32 v47, 9, v0\ns_lshl_b32 s62, s3, 14\ns_lshl_b32 s63, s61, 6\ns_add_u32 s62, s62, s63\ns_lshl_b32 s63, s60, 2\ns_add_u32 s62, s62, s63\ns_add_u32 s62, s62, {QAF}")
A("s_waitcnt vmcnt(0)\ns_barrier")
A("s_mov_b32 exec_hi, 0")
A(f"buffer_store_dword {vTAG}, v47, {WS}, s62 offen sc1")
A("s_mov_b64 exec, -1")
stamp(5)
A("s_cmp_ge_u32 s31, 112\ns_cbranch_scc1 L_wuv")
A("s_cmp_ge_u32 s3, 2\ns_cselect_b32 s36, s20, s18\ns_cselect_b32 s37, s21, s19")
A(f"s_mov_b32 s38, {448*3584}\ns_mov_b32 s39, 0x20000")
A("v_mul_u32_u24 v9, 3584, v7\nv_add_u32 v9, v9, v6")
A(f"s_mul_i32 s55, s53, {112*3584}\ns_lshr_b32 s56, s31, 2\ns_lshl_b32 s62, s56, 7\ns_add_u32 s55, s55, s62")
A(f"s_and_b32 s62, s3, 1\ns_mul_i32 s62, s62, {7*8*3584}\ns_add_u32 s55, s55, s62")
A(f"s_mul_i32 s57, s3, 7168\ns_add_u32 s57, s57, {TT}")
for i in range(7):
    if i >= opt["thr_g"]: A(f"s_waitcnt vmcnt({opt['thr_g']-1})")
    if i: A(f"s_add_u32 s55, s55, {8*3584}")
    dma("v9", R1, "s55", "s57", i*1024)
A(f"v_lshlrev_b32 v40, 6, {vN}\nv_lshl_add_u32 v40, {vG}, 4, v40")
A(f"s_lshl_b32 s62, s56, 2\ns_add_u32 s62, s62, s3\ns_lshl_b32 s62, s62, 10\ns_lshl_b32 s63, s53, 8\ns_add_u32 s62, s62, s63\ns_add_u32 s62, s62, {HP}")
A("s_waitcnt vmcnt(0)\ns_barrier")
for mat in range(2):
    for s in range(7): A(f"ds_read_b64_tr_b16 v[{64+14*mat+2*s}:{65+14*mat+2*s}], v38 offset:{14336*mat+2048*s}")
for mat in range(2):
    for s in range(7):
        A(f"s_waitcnt lgkmcnt({13-7*mat-s})")
        A(f"v_mfma_f32_16x16x16_bf16 v[{56+4*mat}:{59+4*mat}], v[{64+14*mat+2*s}:{65+14*mat+2*s}], v[{24+2*s}:{25+2*s}], {'0' if s==0 else f'v[{56+4*mat}:{59+4*mat}]'}")
tag_insert(48, 56)
A("s_mov_b32 exec_lo, 0x000c000c\ns_mov_b32 exec_hi, 0x000c000c")
tag_insert(48, 60)
A("s_mov_b32 exec_lo, 0x000f000f\ns_mov_b32 exec_hi, 0x000f000f")
A(f"buffer_store_dwordx4 v[48:51], v40, {WS}, s62 offen sc1")
A("s_mov_b64 exec, -1")
A.flush()
A.label("L_wuv")
stamp(6)
srd(R2, 12, 1024*8192)
A("v_and_b32 v8, 7, v0\nv_lshlrev_b32 v8, 4, v8\nv_lshl_add_u32 v11, v7, 13, v8")
A("s_lshl_b32 s58, s61, 20\ns_lshl_b32 s62, s60, 9\ns_add_u32 s58, s58, s62\ns_lshl_b32 s62, s3, 7\ns_add_u32 s58, s58, s62")
A("s_add_u32 s59, s59, 65536")
for i in range(16):
    if 0 < i <= opt["thr_uv"]: A("s_waitcnt vmcnt(0)")
    A(f"v_xor_b32 v13, {2*((i>>1)&3)*16}, v11")
    A(f"s_add_u32 s62, s58, {i*65536}")
    dma("v13", R2, "s62", "s59", i*1024)
A(f"v_lshrrev_b32 v39, 2, {vN}\nv_lshl_add_u32 v40, v39, 4, {vG}\nv_lshlrev_b32 v40, 7, v40")
A(f"v_lshlrev_b32 v39, 1, v39\nv_bfe_u32 v41, v0, 1, 1\nv_xor_b32 v39, v39, v41\nv_lshl_add_u32 v40, v39, 4, v40\nv_lshl_add_u32 v40, v14, 3, v40\nv_add_u32 v41, s59, v40")
A("v_xor_b32 v42, 32, v41\nv_xor_b32 v43, 64, v41\nv_xor_b32 v52, 96, v41")
A(f"v_bfe_u32 v39, v0, 2, 1\nv_mul_u32_u24 v39, 448, v39\nv_and_b32 v40, 3, v0\nv_lshl_add_u32 v39, v40, 2, v39\nv_add_u32 v39, v39, {vG}")
A("s_min_u32 s62, s31, 27\ns_lshl_b32 s62, s62, 4\nv_add_u32 v39, s62, v39\nv_lshlrev_b32 v200, 1, v39")
A("global_load_ushort v201, v200, s[4:5]\nglobal_load_ushort v202, v200, s[24:25]")
A("s_waitcnt vmcnt(2)")
for t in range(4):
    for s in range(4):
        for z in range(2):
            b = 64+16*t+4*s+2*z
            A(f"ds_read_b64_tr_b16 a[{b}:{b+1}], v{adr[t]} offset:{s*512+z*8192}")
stamp(7)
A(f"v_lshlrev_b32 v40, 4, v0\ns_lshl_b32 s62, s31, 11\ns_add_u32 s62, s62, {LATF}\ns_lshr_b32 s63, s3, 1\ns_lshl_b32 s63, s63, 10\ns_add_u32 s63, s62, s63\ns_xor_b32 s62, s63, 1024")
A(f"s_lshl_b32 s64, s31, 15\ns_lshl_b32 s65, s3, 13\ns_add_u32 s64, s64, s65\ns_add_u32 s64, s64, {LAT}\ns_add_u32 s65, s64, 4096")
A(f"s_and_b32 s66, s3, 1\ns_lshl_b32 s66, s66, 7\nv_lshl_add_u32 v53, {vG}, 2, s66")
spin_init()
A.label("L_wl")
A(f"buffer_load_dwordx4 v[44:47], v40, {WS}, s63 offen sc1\nbuffer_load_dwordx4 v[48:51], v40, {WS}, s62 offen sc1")
spin_check()
A("s_waitcnt vmcnt(0)")
A(f"v_cmp_ne_u32 vcc, v46, {vTAG}\nv_cmp_ne_u32 s[68:69], v50, {vTAG}\ns_or_b64 vcc, vcc, s[68:69]\ns_cbranch_vccnz L_wl")
stamp(8)
for i in range(8): A(f"buffer_load_dwordx4 v[{64+4*i}:{67+4*i}], v40, {WS}, {'s64' if i<4 else 's65'} offen offset:{(i&3)*1024} sc1")
A("v_max_f32 v54, v44, v48")
row_sum16(54, "v_max_f32", (8,4,2)); swap_red(54, 55, 16, "v_max_f32"); swap_red(54, 55, 32, "v_max_f32")
A("v_sub_f32 v44, v44, v54\nv_sub_f32 v48, v48, v54\nv_exp_f32 v44, v44\nv_exp_f32 v48, v48")
for i in range(8):
    A(f"v_add_u32 v55, {16*i}, v53\nds_bpermute_b32 v{100+i}, v55, v44")
A("v_mul_f32 v45, v45, v44\nv_fmac_f32 v45, v49, v48")
row_sum16(45, "v_add_f32", (8,4,2)); swap_red(45, 55, 16); swap_red(45, 55, 32)
A("v_rcp_f32 v45, v45")
RED = BIG
A(f"v_and_b32 v54, 3, v0\nv_lshlrev_b32 v54, 4, v54\nv_and_b32 v55, 12, v0\nv_add3_u32 v54, v54, v55, {vG}\nv_lshlrev_b32 v54, 4, v54")
A(f"s_lshl_b32 s66, s3, 10\ns_add_u32 s66, s66, {RED}\nv_add_u32 v54, s66, v54")
A("s_waitcnt lgkmcnt(0)")
for i in range(8):
    A(f"s_waitcnt vmcnt({7-i})")
    for jj in range(4):
        d = 64+4*i+jj
        A(f"v_lshlrev_b32 v56, 16, v{d}\nv_and_b32 v57, 0xffff0000, v{d}")
        if i == 0: A(f"v_mul_f32 v{110+2*jj}, v56, v100\nv_mul_f32 v{111+2*jj}, v57, v100")
        else: A(f"v_fmac_f32 v{110+2*jj}, v56, v{100+i}\nv_fmac_f32 v{111+2*jj}, v57, v{100+i}")
for e in range(4): A(f"v_permlane32_swap_b32 v{110+e}, v{114+e}")
for e in range(4): A(f"v_add_f32 v{112+e if False else 120+e}, v{110+e}, v{114+e}")
A("ds_write_b128 v54, v[120:123]")
A(f"s_waitcnt lgkmcnt(0)\ns_barrier")
stamp(9)
for v in range(4): A(f"ds_read_b128 v[{64+4*v}:{67+4*v}], v40 offset:{RED+1024*v}")
A(f"v_lshlrev_b32 v54, 7, v14\nv_lshl_add_u32 v54, {vG}, 4, v54")
A(f"s_lshl_b32 s62, s60, 3\ns_lshl_b32 s63, s3, 1\ns_add_u32 s62, s62, s63\ns_lshl_b32 s62, s62, 11\ns_lshl_b32 s63, s61, 8\ns_add_u32 s62, s62, s63\ns_add_u32 s62, s62, {CTXP}")
A("s_waitcnt lgkmcnt(2)")
for e in range(4): A(f"v_add_f32 v{64+e}, v{64+e}, v{68+e}")
A("s_waitcnt lgkmcnt(0)")
for e in range(4): A(f"v_add_f32 v{72+e}, v{72+e}, v{76+e}")
for e in range(4): A(f"v_add_f32 v{64+e}, v{64+e}, v{72+e}")
for e in range(4): A(f"v_mul_f32 v{64+e}, v{64+e}, v45")
A("v_cvt_pk_bf16_f32 v80, v64, v65\nv_cvt_pk_bf16_f32 v81, v66, v67")
for s in range(4):
    for z in range(2):
        k = 4*s+2*z
        if k == 0: continue
        A(f"v_mov_b32_dpp v{80+k}, v80 row_shl:{k} {DPPM}\nv_mov_b32_dpp v{81+k}, v81 row_shl:{k} {DPPM}")
for s in range(4):
    for t in range(4):
        A(f"v_mfma_f32_16x16x32_bf16 v[{100+4*t}:{103+4*t}], a[{64+16*t+4*s}:{67+16*t+4*s}], v[{80+4*s}:{83+4*s}], {'0' if s==0 else f'v[{100+4*t}:{103+4*t}]'}")
A("s_mov_b32 exec_lo, 0x00030003\ns_mov_b32 exec_hi, 0x00030003")
for t in range(4):
    tag_insert(64+4*t, 100+4*t)
    A(f"buffer_store_dwordx4 v[{64+4*t}:{67+4*t}], v54, {WS}, s62 offen offset:{(t>>1)*2048+(t&1)*64} sc1")
A("s_mov_b64 exec, -1")
stamp(10)
A("s_cmp_ge_u32 s31, 28\ns_cbranch_scc1 L_end")
FR = BIG + 8192
def final_reduce(base_off, lab, nload_w3, ldsoff):
    A(f"s_lshl_b32 s62, s31, 14\ns_lshl_b32 s63, s3, 12\ns_add_u32 s62, s62, s63\ns_add_u32 s62, s62, {base_off}")
    if nload_w3 < 4:
        for r in range(8): A(f"v_mov_b32 v{72+r}, 0")
    spin_init()
    A.label(lab)
    for i in range(2): A(f"buffer_load_dwordx4 v[{64+4*i}:{67+4*i}], v40, {WS}, s62 offen offset:{1024*i} sc1")
    if nload_w3 < 4: A(f"s_cmp_eq_u32 s3, 3\ns_cbranch_scc1 {lab}_s")
    for i in range(2, 4): A(f"buffer_load_dwordx4 v[{64+4*i}:{67+4*i}], v40, {WS}, s62 offen offset:{1024*i} sc1")
    A("s_waitcnt vmcnt(0)")
    tag_check_acc(72, 53, 54, True, 55); tag_check_acc(76, 53, 54, False, 55)
    A(f"v_cmp_ne_u32 vcc, 0, v55")
    spin_check()
    A(f"s_cbranch_vccnz {lab}")
    if nload_w3 < 4: A.label(lab+"_s")
    A("s_waitcnt vmcnt(0)")
    tag_check_acc(64, 53, 54, True, 55); tag_check_acc(68, 53, 54, False, 55)
    A(f"v_cmp_ne_u32 vcc, 0, v55")
    spin_check()
    A(f"s_cbranch_vccnz {lab}")
    for r in range(4): A(f"v_add_f32 v{64+r}, v{64+r}, v{68+r}\nv_add_f32 v{72+r}, v{72+r}, v{76+r}")
    for r in range(4): A(f"v_add_f32 v{64+r}, v{64+r}, v{72+r}")
    for r in range(4): A(f"v_add_f32_dpp v{64+r}, v{64+r}, v{64+r} row_ror:8 {DPPM}")
    A("v_permlane32_swap_b32 v64, v66\nv_permlane32_swap_b32 v65, v67\nv_add_f32 v64, v64, v66\nv_add_f32 v65, v65, v67")
    A("v_permlane16_swap_b32 v64, v65\nv_add_f32 v64, v64, v65")
    A(f"ds_write_b32 v56, v64 offset:{ldsoff}")
A(f"v_lshlrev_b32 v57, 2, v0\ns_lshl_b32 s62, s3, 8\nv_add_u32 v56, s62, v57")
final_reduce(YP, "L_fy", 2, FR)
stamp(11)
final_reduce(OUTP, "L_fo", 4, FR+1024)
A("s_waitcnt lgkmcnt(0)\ns_barrier")
stamp(12)
A("s_cmp_lg_u32 s3, 0\ns_cbranch_scc1 L_end")
for v in range(4): A(f"ds_read_b32 v{64+v}, v57 offset:{FR+256*v}\nds_read_b32 v{68+v}, v57 offset:{FR+1024+256*v}")
srd(R1, 24, 896*2)
A("s_waitcnt lgkmcnt(0)")
A("v_add_f32 v64, v64, v65\nv_add_f32 v66, v66, v67\nv_add_f32 v68, v68, v69\nv_add_f32 v70, v70, v71\nv_add_f32 v64, v64, v66\nv_add_f32 v68, v68, v70")
bf16r(64, 64); bf16r(68, 68)
A(f"v_mul_f32 v65, {hex(f2u(-1.4426950408889634))}, v64\nv_exp_f32 v65, v65\nv_add_f32 v65, 1.0, v65\nv_rcp_f32 v65, v65\nv_mul_f32 v65, v65, v64")
bf16r(65, 65)
A("v_mul_f32 v65, v65, v68"); bf16r(65, 65)
A("v_lshlrev_b32 v201, 16, v201\nv_add_f32 v65, v65, v201\nv_cvt_pk_bf16_f32 v65, v65, v65")
A("s_mov_b32 exec_lo, 0x00ff00ff\ns_mov_b32 exec_hi, 0x00ff00ff")
A(f"buffer_store_short v65, v200, {R1}, 0 offen")
A("s_cmp_lg_u32 s31, 0\ns_cbranch_scc1 L_end")
A(f"s_mov_b64 exec, 1\nv_mov_b32 v64, 0\nbuffer_store_dword {vTAG}, v64, {WS}, 0 offen")
A("s_branch L_end")

A.label("L_A")
A.hist = []
A("s_nop 1")
for i in range(N0, 16): ckv_dma(i)
A(f"v_and_b32 v40, 7, v0\nv_lshlrev_b32 v40, 1, v40\nv_bfe_u32 v41, v0, 3, 1\nv_or_b32 v40, v40, v41")
A(f"v_lshlrev_b32 v41, 1, {vG}\nv_xor_b32 v40, v40, v41\nv_lshlrev_b32 v40, 4, v40\nv_lshl_add_u32 v40, {vN}, 9, v40\nv_add_u32 v44, s59, v40")
A("v_xor_b32 v45, 16, v44\nv_xor_b32 v46, 128, v44\nv_xor_b32 v47, 144, v44")
A(f"v_lshrrev_b32 v40, 2, {vN}\nv_lshl_add_u32 v40, {vG}, 2, v40")
A("v_and_b32 v41, 7, v40\nv_lshlrev_b32 v41, 1, v41\nv_lshrrev_b32 v42, 3, v40\nv_or_b32 v41, v41, v42\nv_bfe_u32 v42, v0, 1, 1\nv_xor_b32 v41, v41, v42")
A("v_lshlrev_b32 v40, 9, v40\nv_lshl_add_u32 v40, v41, 4, v40\nv_lshl_add_u32 v40, v14, 3, v40\nv_add_u32 v48, s59, v40")
for t in range(1, 8): A(f"v_xor_b32 v{48+t}, {32*t}, v48")
def stage_tile(T):
    for s in range(8):
        A(f"ds_read_b128 a[{32*T+4*s}:{32*T+4*s+3}], v{44+(s&3)} offset:{T*8192+(s>>2)*256}")
    u, z = T >> 1, T & 1
    for t in range(16):
        b = 128 + 8*t + 4*u + 2*z
        A(f"ds_read_b64_tr_b16 a[{b}:{b+1}], v{48+(t&7)} offset:{T*8192+(t>>3)*256}")
for T in range(2):
    for i in range(16+8*T, 24+8*T): ckv_dma(i)
    A("s_waitcnt vmcnt(16)")
    stage_tile(T)
stamp(4)
A(f"v_lshlrev_b32 v40, 8, {vN}\nv_lshl_add_u32 v40, {vG}, 4, v40")
A(f"s_lshl_b32 s62, s60, 15\ns_lshl_b32 s63, s3, 13\ns_add_u32 s62, s62, s63\ns_add_u32 s62, s62, {QA}\ns_add_u32 s63, s62, 4096")
A("s_mov_b32 s97, s30")
spin_init()
A.label("L_aq")
A("s_load_dwordx16 s[64:79], s[100:101], 0 glc\ns_load_dwordx16 s[80:95], s[100:101], 64 glc")
spin_check()
A("s_mov_b32 s50, s30\ns_mov_b32 s51, s30")
A("s_waitcnt lgkmcnt(0)")
A("s_xor_b64 s[52:53], s[64:65], s[50:51]")
for i in range(1, 16): A(f"s_xor_b64 s[54:55], s[{64+2*i}:{65+2*i}], s[50:51]\ns_or_b64 s[52:53], s[52:53], s[54:55]")
A("s_cbranch_scc1 L_aq")
stamp(5)
for s in range(8): A(f"buffer_load_dwordx4 v[{64+4*s}:{67+4*s}], v40, {WS}, {'s62' if s<4 else 's63'} offen offset:{(s&3)*64} sc1")
A("s_waitcnt vmcnt(16)"); stage_tile(2)
A("s_waitcnt vmcnt(8)"); stage_tile(3)
A(f"v_lshlrev_b32 v40, 4, v0\nv_add_u32 v41, s59, v40")
A(f"s_lshl_b32 s64, s3, 10\ns_add_u32 s64, s64, {BIG}\nv_add_u32 v42, s64, v40")
A(f"v_add_u32 v43, 0x10000, v42")
A(f"v_lshlrev_b32 v56, 5, v0\ns_lshl_b32 s64, s3, 3\nv_add_u32 v57, s64, v56")
A(f"v_lshlrev_b32 v58, 4, {vN}\ns_lshl_b32 s64, s3, 2\nv_add_u32 v59, s64, v58")
A("v_mov_b32 v60, 0x3f803f80\nv_mov_b32 v61, v60\nv_mov_b32 v62, v60\nv_mov_b32 v63, v60")
A("s_waitcnt lgkmcnt(0)")
stamp(6)
for s in range(8):
    A(f"s_waitcnt vmcnt({7-s})")
    for T in range(4):
        A(f"v_mfma_f32_16x16x32_bf16 v[{96+4*T}:{99+4*T}], a[{32*T+4*s}:{32*T+4*s+3}], v[{64+4*s}:{67+4*s}], {'0' if s==0 else f'v[{96+4*T}:{99+4*T}]'}")
for T in range(4): A(f"ds_write_b128 v41, v[{96+4*T}:{99+4*T}] offset:{1024*T}")
A("s_waitcnt lgkmcnt(0)\ns_barrier")
stamp(7)
A("ds_read_b128 v[64:67], v42\nds_read_b128 v[68:71], v42 offset:32768\nds_read_b128 v[72:75], v43\nds_read_b128 v[76:79], v43 offset:32768")
A("s_waitcnt lgkmcnt(2)")
for r in range(4): A(f"v_add_f32 v{64+r}, v{64+r}, v{68+r}")
A("s_waitcnt lgkmcnt(0)")
for r in range(4): A(f"v_add_f32 v{72+r}, v{72+r}, v{76+r}")
for r in range(4): A(f"v_add_f32 v{64+r}, v{64+r}, v{72+r}")
if opt["round_s"]:
    A("v_cvt_pk_bf16_f32 v68, v64, v65\nv_cvt_pk_bf16_f32 v69, v66, v67")
    A("v_lshlrev_b32 v64, 16, v68\nv_and_b32 v65, 0xffff0000, v68\nv_lshlrev_b32 v66, 16, v69\nv_and_b32 v67, 0xffff0000, v69")
for r in range(4): A(f"v_mul_f32 v{64+r}, {hex(f2u(1.4426950408889634))}, v{64+r}")
A("v_max3_f32 v68, v64, v65, v66\nv_max_f32 v68, v68, v67")
swap_red(68, 69, 16, "v_max_f32"); swap_red(68, 69, 32, "v_max_f32")
A("v_ceil_f32 v68, v68")
for r in range(4): A(f"v_sub_f32 v{64+r}, v{64+r}, v68")
for r in range(4): A(f"v_exp_f32 v{64+r}, v{64+r}")
A(f"ds_write_b32 v59, v68 offset:{EX+2048}")
A("v_cvt_pk_bf16_f32 v64, v64, v65\nv_cvt_pk_bf16_f32 v65, v66, v67")
A(f"ds_write_b64 v57, v[64:65] offset:{EX}")
A("s_waitcnt lgkmcnt(0)\ns_barrier")
A(f"ds_read_b128 v[72:75], v58 offset:{EX+2048}\nds_read_b128 v[64:67], v56 offset:{EX}\nds_read_b128 v[68:71], v56 offset:{EX+16}")
A(f"v_lshlrev_b32 v40, 17, {vG}\nv_lshl_add_u32 v40, {vN}, 4, v40")
A(f"s_lshl_b32 s62, s3, 20\ns_lshl_b32 s63, s31, 8\ns_add_u32 s62, s62, s63\ns_add_u32 s62, s62, {LAT}")
A("s_waitcnt lgkmcnt(2)")
A("v_max3_f32 v76, v72, v73, v74\nv_max_f32 v76, v76, v75")
for T in range(4):
    A(f"v_sub_f32 v{72+T}, v76, v{72+T}\nv_min_f32 v{72+T}, 0x437f0000, v{72+T}\nv_cvt_u32_f32 v{72+T}, v{72+T}\nv_mul_u32_u24 v{72+T}, 0x800080, v{72+T}")
A("s_waitcnt lgkmcnt(0)")
for T in range(4):
    for k in range(2): A(f"v_pk_sub_u16 v{64+2*T+k}, v{64+2*T+k}, v{72+T} clamp")
stamp(8)
ACC = 128
for half in range(2):
    for t in range(8*half, 8*half+8):
        for u in range(2):
            A(f"v_mfma_f32_16x16x32_bf16 v[{ACC+4*t}:{ACC+4*t+3}], v[{64+4*u}:{67+4*u}], a[{128+8*t+4*u}:{131+8*t+4*u}], {'0' if u==0 else f'v[{ACC+4*t}:{ACC+4*t+3}]'}")
    if half == 0:
        for u in range(2): A(f"v_mfma_f32_16x16x32_bf16 v[80:83], v[60:63], v[{64+4*u}:{67+4*u}], {'0' if u==0 else 'v[80:83]'}")
for half in range(2):
    for r in range(4):
        d = 96 + 16*half + 4*r
        for jj in range(4):
            t0 = 8*half + 2*jj
            A(f"v_cvt_pk_bf16_f32 v{d+jj}, v{ACC+4*t0+r}, v{ACC+4*(t0+1)+r}")
        A(f"s_add_u32 s63, s62, {half*524288+r*32768}")
        A(f"buffer_store_dwordx4 v[{d}:{d+3}], v40, {WS}, s63 offen sc1")
A(f"v_mov_b32 v77, v80\nv_mov_b32 v78, {vTAG}\nv_mov_b32 v79, {vTAG}")
A(f"v_lshlrev_b32 v41, 11, v0\ns_lshl_b32 s62, s3, 16\ns_lshl_b32 s63, s31, 4\ns_add_u32 s62, s62, s63\ns_add_u32 s62, s62, {LATF}")
stamp(9)
A("s_waitcnt vmcnt(0)")
A("s_mov_b32 exec_hi, 0")
A(f"buffer_store_dwordx4 v[76:79], v41, {WS}, s62 offen sc1")
A("s_mov_b64 exec, -1")
stamp(10)
WO, WD = BIG + 36864, BIG + 69632
A("v_lshlrev_b32 v40, 4, v0")
A("s_cmp_ge_u32 s31, 112\ns_cbranch_scc1 L_awo")
srd(R1, 22, 1792*896)
A(f"s_mul_i32 s55, s31, 14336\ns_lshl_b32 s62, s3, 10\ns_add_u32 s55, s55, s62\ns_add_u32 s57, s62, {WD}")
A("s_cmp_ge_u32 s3, 2\ns_cbranch_scc1 L_ad3")
A("s_add_u32 s56, s55, 12288")
dma("v40", R1, "s56", "s57", 12288)
A.label("L_ad3")
for i in range(3):
    if i: A("s_add_u32 s55, s55, 4096")
    dma("v40", R1, "s55", "s57", 4096*i)
A.label("L_awo")
srd(R2, 14, 16*256*896)
A(f"s_mul_i32 s55, s31, 28672\ns_mul_i32 s62, s3, 7168\ns_add_u32 s55, s55, s62\ns_add_u32 s57, s62, {WO}")
for i in range(7):
    if i: A("s_add_u32 s55, s55, 1024")
    dma("v40", R2, "s55", "s57", 1024*i)
A(f"v_lshrrev_b32 v42, 1, {vN}\nv_lshlrev_b32 v42, 14, v42\nv_lshl_add_u32 v42, v14, 6, v42\nv_lshl_add_u32 v42, {vG}, 4, v42")
A(f"s_mul_i32 s64, s3, {7*16384}\ns_lshl_b32 s62, s31, 7\ns_add_u32 s64, s64, s62")
A(f"v_lshrrev_b32 v43, 2, {vN}\nv_and_b32 v44, 3, v0\nv_lshlrev_b32 v44, 3, v44\ns_mul_i32 s62, s3, 224\nv_add_u32 v44, s62, v44")
def merged_publish(dbase, base_off):
    for t in range(7):
        m = 3 << (2*t); m |= m << 16
        A(f"s_mov_b32 exec_lo, {hex(m)}\ns_mov_b32 exec_hi, {hex(m)}")
        tag_insert(64, dbase+4*t)
    A(f"s_mov_b32 exec_lo, 0x3fff3fff\ns_mov_b32 exec_hi, 0x3fff3fff\ns_add_u32 s62, s64, {base_off}")
    A(f"buffer_store_dwordx4 v[64:67], v42, {WS}, s62 offen sc1")
    A("s_mov_b64 exec, -1")
A("s_cmp_ge_u32 s31, 112\ns_cbranch_scc1 L_aout")
A(f"v_lshlrev_b32 v45, 6, {vN}\nv_lshl_add_u32 v45, {vG}, 4, v45\ns_lshl_b32 s63, s31, 10\ns_add_u32 s63, s63, {HP}")
A(f"v_lshl_add_u32 v46, {vG}, 2, v43\nv_mul_u32_u24 v46, 896, v46\nv_add_u32 v46, v46, v44\nv_add_u32 v46, {WD}, v46")
spin_init()
A.label("L_ah")
A(f"buffer_load_dwordx4 v[68:71], v45, {WS}, s63 offen sc1")
spin_check()
A("s_waitcnt vmcnt(0)")
tag_check_acc(68, 53, 54, True, 55)
A("v_cmp_ne_u32 vcc, 0, v55\ns_cbranch_vccnz L_ah")
A("s_barrier")
for t in range(7): A(f"ds_read_b64_tr_b16 v[{96+2*t}:{97+2*t}], v46 offset:{32*t}")
for k in (4, 8):
    for r in range(4): A(f"v_add_f32_dpp v{68+r}, v{68+r}, v{68+r} row_ror:{k} {DPPM}")
for r in range(4): bf16r(68+r, 68+r)
for r in range(4):
    A(f"v_mov_b32_dpp v{72+r}, v{68+r} quad_perm:[0,1,0,1] {DPPM}\nv_mov_b32_dpp v{76+r}, v{68+r} quad_perm:[2,3,2,3] {DPPM}")
c1 = -2.0*0.7978845608028654*1.4426950408889634; c2 = c1*0.044715
A(f"s_mov_b32 s62, {hex(f2u(c2))}\nv_mov_b32 v84, {hex(f2u(c1))}")
for r in range(4):
    A(f"v_mul_f32 v{80+r}, v{72+r}, v{72+r}\nv_fma_f32 v{80+r}, v{80+r}, s62, v84\nv_mul_f32 v{80+r}, v{80+r}, v{72+r}")
for r in range(4): A(f"v_exp_f32 v{80+r}, v{80+r}")
for r in range(4): A(f"v_add_f32 v{80+r}, 1.0, v{80+r}")
for r in range(4): A(f"v_rcp_f32 v{80+r}, v{80+r}")
for r in range(4): A(f"v_mul_f32 v{80+r}, v{80+r}, v{72+r}")
for r in range(4): bf16r(80+r, 80+r)
for r in range(4): A(f"v_mul_f32 v{80+r}, v{80+r}, v{76+r}")
A("v_cvt_pk_bf16_f32 v80, v80, v81\nv_cvt_pk_bf16_f32 v81, v82, v83")
A("s_waitcnt lgkmcnt(0)")
for t in range(7): A(f"v_mfma_f32_16x16x16_bf16 v[{128+4*t}:{131+4*t}], v[{96+2*t}:{97+2*t}], v[80:81], 0")
merged_publish(128, YP)
A.flush()
A("s_branch L_aout2")
A.label("L_aout")
A("s_waitcnt vmcnt(0)\ns_barrier")
A.label("L_aout2")
stamp(11)
A(f"v_lshl_add_u32 v46, {vG}, 3, v43\nv_mul_u32_u24 v46, 896, v46\nv_add_u32 v46, v46, v44\nv_add_u32 v46, {WO}, v46")
for t in range(7):
    for z in range(2): A(f"ds_read_b64_tr_b16 v[{96+4*t+2*z}:{97+4*t+2*z}], v46 offset:{32*t+3584*z}")
A(f"v_lshlrev_b32 v45, 7, {vN}\nv_lshl_add_u32 v45, {vG}, 5, v45\ns_lshl_b32 s63, s31, 11\ns_add_u32 s63, s63, {CTXP}")
spin_init()
A.label("L_ac")
A(f"buffer_load_dwordx4 v[68:71], v45, {WS}, s63 offen sc1\nbuffer_load_dwordx4 v[72:75], v45, {WS}, s63 offen offset:16 sc1")
spin_check()
A("s_waitcnt vmcnt(0)")
tag_check_acc(68, 53, 54, True, 55); tag_check_acc(72, 53, 54, False, 55)
A("v_cmp_ne_u32 vcc, 0, v55\ns_cbranch_vccnz L_ac")
stamp(12)
for k in (2, 4, 8):
    for r in range(8): A(f"v_add_f32_dpp v{68+r}, v{68+r}, v{68+r} row_ror:{k} {DPPM}")
for r in range(4): A(f"v_cvt_pk_bf16_f32 v{80+r}, v{68+2*r}, v{69+2*r}")
A("s_waitcnt lgkmcnt(0)")
for t in range(7): A(f"v_mfma_f32_16x16x32_bf16 v[{128+4*t}:{131+4*t}], v[{96+4*t}:{99+4*t}], v[80:83], 0")
merged_publish(128, OUTP)
stamp(13)
A.label("L_end")
if STAMPS:
    A("s_mov_b64 exec, -1")
    A("s_memrealtime s[98:99]\ns_waitcnt lgkmcnt(0)")
    A(f"v_writelane_b32 {vST}, s98, 15")
    A(f"s_lshl_b32 s62, s2, 2\ns_add_u32 s62, s62, s3\ns_lshl_b32 s62, s62, 8\ns_add_u32 s62, s62, {STAMP}\nv_lshlrev_b32 v4, 2, v0")
    A(f"buffer_store_dword {vST}, v4, {WS}, s62 offen")
A.label("L_end0")
A("s_endpgm")
A.raw(f".fill ({opt['codekb']}*1024 - (. - {NAME}))/4, 4, 0xbf800000")
A.raw('.section .rodata,"a"\n.p2align 6')
A.raw(f""".amdhsa_kernel {NAME}
  .amdhsa_next_free_vgpr 512
  .amdhsa_next_free_sgpr 102
  .amdhsa_accum_offset 256
  .amdhsa_group_segment_fixed_size 0
  .amdhsa_kernarg_size 104
  .amdhsa_user_sgpr_count 2
  .amdhsa_user_sgpr_kernarg_segment_ptr 1
  .amdhsa_system_sgpr_workgroup_id_x 1
.end_amdhsa_kernel""")
sys.stdout.write(A.text())
```

```python
import sys, struct
from asmdsl import Asm
NAME = "recurrent_scan__compressed_kv_cla__geglu_ffn__decode_kernel"
opt = dict(stamps=0, round_s=0, nt="nt", npre=0, codekb=20, qbar=27, thr_g=7, thr_uv=0, adepth=1, athr=4, statpos=1, psleep=1, early_wo=0, tokpos=31, wdepth=8, w2depth=0, adepth2=8, wd0=8, tok1pos=-1, apre=1, ackwait=1, tlb=1, fpos=23, eps=0)
for a in sys.argv[1:]:
    k, v = a.split("="); opt[k] = v if k == "nt" else int(v)
NT = opt["nt"] if opt["nt"] != "none" else ""
STAMPS = opt["stamps"]; NPRE = opt["npre"]
def f2u(x): return struct.unpack("<I", struct.pack("<f", x))[0]
SS = 16640
MB = 0x200000
CTXP, HP, QP, QA, STAT, QAF, TOK = MB, MB+2048, MB+3072, MB+3584, MB+4096, MB+4352, MB+4480
FS = 73984
OUTP = 0x500000; YP = OUTP + 16384
LAT, STAMP = 0x800000, 0xE00000
WSSZ = 0x1000000
XN, EX, TT, BIG = 0, 1792, 4096, 32768
LDSSZ = 163840
DPPM = "row_mask:0xf bank_mask:0xf"
QW = 3
A = Asm()
hdr = open("recurrent_scan__compressed_kv_cla__geglu_ffn__decode.s.ref").read().split("; Override launch")[0]
A.raw(hdr.rstrip())
A.raw(f"; @launch grid=(256,1,1) block=(256,1,1) lds={LDSSZ}")
A.raw('.amdgcn_target "amdgcn-amd-amdhsa--gfx950"\n.text')
A.raw(f".globl {NAME}\n.p2align 8\n.type {NAME},@function\n{NAME}:")
WS = "s[32:35]"; R1 = "s[36:39]"; R2 = "s[40:43]"
vN, vG, vTAG = "v1", "v2", "v3"
vST = "v255"
def stamp(k):
    if not STAMPS: return
    A(f"s_memrealtime s[98:99]\ns_waitcnt lgkmcnt(0)\nv_writelane_b32 {vST}, s98, {k}")
def srd(r, lo, size):
    b = int(r[2:4])
    A(f"s_mov_b32 s{b}, s{lo}\ns_mov_b32 s{b+1}, s{lo+1}\ns_mov_b32 s{b+2}, {size}\ns_mov_b32 s{b+3}, 0x20000")
def setexec16(m):
    m |= m << 16
    A(f"s_mov_b32 exec_lo, {hex(m)}\ns_mov_b32 exec_hi, {hex(m)}")
def tag_insert(dst, src):
    for r in range(4): A(f"v_perm_b32 v{dst+r}, v{src+r}, {vTAG}, s{44+r}")
def tag_check_acc(base, t0, t1, first, acc):
    A(f"v_perm_b32 v{t0}, v{base+1}, v{base}, s48\nv_perm_b32 v{t1}, v{base+3}, v{base+2}, s49")
    if first: A(f"v_or_b32 v{t0}, v{t0}, v{t1}\nv_xor_b32 v{acc}, v{t0}, {vTAG}")
    else: A(f"v_or_b32 v{t0}, v{t0}, v{t1}\nv_xor_b32 v{t0}, v{t0}, {vTAG}\nv_or_b32 v{acc}, v{acc}, v{t0}")
def spin_init(): A("s_mov_b32 s96, 400000")
def spin_check(): A("s_sub_u32 s96, s96, 1\ns_cbranch_scc1 L_end")
def bf16r(dst, src):
    A(f"v_cvt_pk_bf16_f32 v{dst}, v{src}, v{src}\nv_and_b32 v{dst}, 0xffff0000, v{dst}")
def row_red(x, op="v_add_f32", steps=(8,4,2,1)):
    for k in steps: A(f"{op}_dpp v{x}, v{x}, v{x} row_ror:{k} {DPPM}")
def swap_red(x, t, which, op="v_add_f32"):
    A(f"v_mov_b32 v{t}, v{x}\nv_permlane{which}_swap_b32 v{t}, v{x}\n{op} v{x}, v{x}, v{t}")
def dma(voff, rsrc, soff, ldsaddr_s, ldsadd):
    A(f"s_add_u32 m0, {ldsaddr_s}, {ldsadd}")
    A(f"buffer_load_dwordx4 {voff}, {rsrc}, {soff} offen {NT} lds")
def pipe_poll(lab, loads, sets, first_step, word2=False):
    n = len(loads)
    def issue(base):
        for i, (vo, so, off) in enumerate(loads):
            A(f"buffer_load_dwordx4 v[{base+4*i}:{base+4*i+3}], {vo}, {WS}, {so} offen offset:{off} sc1")
    def check(base):
        if word2: A(f"v_cmp_ne_u32 vcc, v{base+2}, {vTAG}"); return
        for i in range(n): tag_check_acc(base+4*i, 53, 54, i == 0, 55)
        A("v_cmp_ne_u32 vcc, 0, v55")
    spin_init()
    issue(sets[0])
    if opt["psleep"]: A(f"s_sleep {opt['psleep']}")
    A.label(lab)
    issue(sets[1])
    A(f"s_waitcnt vmcnt({n})")
    check(sets[0])
    A(f"s_cbranch_vccz {lab}_x")
    issue(sets[0])
    spin_check()
    A(f"s_waitcnt vmcnt({n})")
    check(sets[1])
    A(f"s_cbranch_vccnz {lab}")
    first_step(sets[1])
    A(f"s_branch {lab}_j")
    A.label(lab+"_x")
    first_step(sets[0])
    A.label(lab+"_j")
def xn_operands(dst, mask, mul, n, bsel="v14"):
    A(f"v_mul_u32_u24 v15, 896, {bsel}\nv_lshl_add_u32 v15, {vG}, 3, v15\ns_and_b32 s62, s2, {mask}\ns_mul_i32 s62, s62, {mul}\nv_add_u32 v15, s62, v15")
    for s in range(n): A(f"ds_read_b64 v[{dst+2*s}:{dst+1+2*s}], v15 offset:{32*s}")
def tr128_addr(dst):
    A(f"v_lshrrev_b32 v39, 2, {vN}\nv_lshl_add_u32 v39, {vG}, 2, v39")
    A(f"v_and_b32 v40, 6, v39\nv_bfe_u32 v41, v0, 1, 1\nv_xor_b32 v40, v40, v41")
    A(f"v_lshlrev_b32 v{dst}, 7, v39\nv_lshl_add_u32 v{dst}, v40, 4, v{dst}\nv_lshl_add_u32 v{dst}, v14, 3, v{dst}\nv_add_u32 v{dst}, {TT}, v{dst}")

def mktag():
    A(f"s_add_u32 s30, s30, 0x01010101\nv_mov_b32 {vTAG}, s30")
def lsb_patterns(T, C=None):
    A(f"v_and_b32 v39, 3, v0\nv_lshlrev_b32 v39, 3, v39\nv_lshrrev_b32 v39, v39, {vTAG}")
    for j in range(4):
        A(f"v_bfe_u32 v{T+j}, v39, {2*j}, 1\nv_bfe_u32 v13, v39, {2*j+1}, 1\nv_lshl_or_b32 v{T+j}, v13, 16, v{T+j}")
        if C is not None: A(f"v_xor_b32 v{C+j}, 0x10001, v{T+j}")
def tok_wait(lab, off):
    A(f"s_mul_i32 s62, s31, {SS}\ns_add_u32 s62, s62, {off}\nv_mov_b32 v13, 0")
    spin_init()
    A.label(lab)
    A(f"buffer_load_dword v39, v13, {WS}, s62 offen sc1")
    spin_check()
    A(f"s_waitcnt vmcnt(0)\nv_cmp_ne_u32 vcc, v39, {vTAG}\ns_cbranch_vccnz {lab}")
def tok_send(off, wave):
    tok_send.n += 1
    A(f"s_cmp_lg_u32 s3, {wave}\ns_cbranch_scc1 L_ts{tok_send.n}")
    A(f"s_mul_i32 s62, s31, {SS}\ns_add_u32 s62, s62, {off}\nv_mov_b32 v13, 0\ns_mov_b64 exec, 1")
    A(f"buffer_store_dword {vTAG}, v13, {WS}, s62 offen sc1\ns_mov_b64 exec, -1")
    A.label(f"L_ts{tok_send.n}")
tok_send.n = 0
def tlb_touch():
    A(f"v_and_b32 v13, 7, v0\nv_lshlrev_b32 v13, 21, v13\nv_add_u32 v13, 0x1fff80, v13")
    A(f"buffer_load_dword v254, v13, {WS}, 0 offen")
if STAMPS: A("s_memrealtime s[98:99]")
A(f"s_cmp_ge_u32 s2, 256\ns_cbranch_scc1 L_end0")
A("s_load_dwordx16 s[4:19], s[0:1], 0\ns_load_dwordx8 s[20:27], s[0:1], 64\ns_load_dwordx2 s[28:29], s[0:1], 96")
A(f"v_lshrrev_b32 v4, 6, v0\nv_and_b32 v0, 63, v0\nv_readfirstlane_b32 s3, v4")
A(f"v_and_b32 {vN}, 15, v0\nv_lshrrev_b32 {vG}, 4, v0\nv_and_b32 v14, 1, v0")
if STAMPS: A(f"v_mov_b32 {vST}, 0")
A("s_and_b32 s31, s2, 127")
A("v_lshrrev_b32 v12, 5, v0\nv_and_b32 v11, 31, v0")
A("s_mov_b32 s34, %d\ns_mov_b32 s35, 0x20000\ns_mov_b32 s43, 0x20000" % WSSZ)
def consts():
    A("s_mov_b32 s44, 0x07060500\ns_mov_b32 s45, 0x07060501\ns_mov_b32 s46, 0x07060502\ns_mov_b32 s47, 0x07060503")
    A("s_mov_b32 s48, 0x0c0c0400\ns_mov_b32 s49, 0x04000c0c")
def code_prefetch(lab, mul):
    A("s_getpc_b64 s[50:51]")
    A.label(lab)
    A(f"s_sub_u32 s50, s50, {lab}-{NAME}\ns_subb_u32 s51, s51, 0")
    A(f"s_lshr_b32 s52, s31, 3\ns_mul_i32 s52, s52, {mul}\ns_add_u32 s52, s52, s3\ns_min_u32 s52, s52, {opt['codekb']-1}\ns_lshl_b32 s52, s52, 10")
    A(f"v_lshlrev_b32 v5, 4, v0\nv_add_u32 v4, s52, v5")
    A("global_load_dwordx4 v[250:253], v4, s[50:51]")
A("s_cmp_ge_u32 s2, 128\ns_cbranch_scc1 L_A")

A("v_lshrrev_b32 v7, 3, v0\nv_and_b32 v6, 6, v7\nv_and_b32 v8, 7, v0\nv_xor_b32 v6, v6, v8\nv_lshlrev_b32 v6, 4, v6")
A("s_and_b32 s60, s31, 15\ns_lshr_b32 s61, s31, 4")
A(f"s_lshl_b32 s59, s3, 14\ns_add_u32 s59, s59, {BIG}")
code_prefetch("L_pc1", 4)
A("v_lshl_add_u32 v9, v7, 13, v6\nv_mul_u32_u24 v10, 28, v0")
A("s_and_b32 s53, s2, 1\ns_lshr_b32 s54, s2, 1")
A(f"s_mul_i32 s55, s53, {224*8192}\ns_lshl_b32 s56, s54, 7\ns_add_u32 s55, s55, s56\ns_lshl_b32 s56, s3, 16\ns_add_u32 s55, s55, s56")
A(f"s_lshl_b32 s57, s3, 10\ns_add_u32 s57, s57, {TT}")
A("s_mov_b32 s38, %d\ns_mov_b32 s39, 0x20000" % (448*8192))
A("s_lshl_b32 s58, s61, 7\ns_lshl_b32 s62, s60, 9\ns_lshl_b32 s58, s58, 13\ns_add_u32 s58, s58, s62")
A("s_and_b32 s62, s3, 1\ns_lshl_b32 s62, s62, 16\ns_lshr_b32 s63, s3, 1\ns_lshl_b32 s63, s63, 19\ns_add_u32 s62, s62, s63\ns_add_u32 s56, s58, s62")
A("v_xor_b32 v11, v11, v12\nv_lshlrev_b32 v11, 4, v11\nv_lshl_add_u32 v11, v12, 14, v11")
A("s_mov_b32 s42, %d" % (1024*8192))
A("s_waitcnt lgkmcnt(0)")
A(f"s_cmp_eq_u32 s3, {QW}\ns_cbranch_scc0 L_nx")
A("global_load_dwordx4 v[16:19], v10, s[4:5]\nglobal_load_dwordx3 v[20:22], v10, s[4:5] offset:16")
A.label("L_nx")
A("s_mov_b32 s36, s8\ns_mov_b32 s37, s9")
for i in range(7):
    if i: A(f"s_add_u32 s55, s55, {4*65536}")
    dma("v9", R1, "s55", "s57", i*4096)
if STAMPS: A(f"v_writelane_b32 {vST}, s98, 0")
A("s_load_dword s30, s[28:29], 0\ns_mov_b32 s32, s28\ns_mov_b32 s33, s29\ns_mov_b32 s40, s10\ns_mov_b32 s41, s11")
consts()
A(f"s_cmp_eq_u32 s3, {QW}\ns_cbranch_scc0 L_nln")
A(f"s_waitcnt vmcnt(7)")
stamp(1)
for i in range(7):
    A(f"v_lshlrev_b32 v{24+2*i}, 16, v{16+i}\nv_and_b32 v{25+2*i}, 0xffff0000, v{16+i}")
A("v_add_f32 v40, v24, v25\nv_add_f32 v41, v26, v27")
for i in range(4, 14, 2): A(f"v_add_f32 v40, v40, v{24+i}\nv_add_f32 v41, v41, v{25+i}")
A("v_add_f32 v40, v40, v41")
row_red(40); swap_red(40, 41, 16)
A(f"v_mul_f32 v40, {hex(f2u(1.0/448))}, v40")
A("v_sub_f32 v42, v24, v40\nv_sub_f32 v43, v25, v40\nv_mul_f32 v44, v42, v42\nv_mul_f32 v45, v43, v43")
for i in range(2, 14, 2):
    A(f"v_sub_f32 v42, v{24+i}, v40\nv_sub_f32 v43, v{25+i}, v40\nv_fmac_f32 v44, v42, v42\nv_fmac_f32 v45, v43, v43")
A("v_add_f32 v44, v44, v45")
row_red(44); swap_red(44, 45, 16)
A(f"v_mul_f32 v44, {hex(f2u(1.0/448))}, v44")
bf16r(40, 40); bf16r(44, 44)
A(f"v_add_f32 v44, {hex(f2u(1e-5))}, v44"); bf16r(44, 44)
A("v_sqrt_f32 v44, v44"); bf16r(44, 44)
A("v_rcp_f32 v44, v44")
for i in range(7):
    A(f"v_sub_f32 v42, v{24+2*i}, v40\nv_sub_f32 v43, v{25+2*i}, v40\nv_cvt_pk_bf16_f32 v42, v42, v43")
    A(f"v_and_b32 v43, 0xffff0000, v42\nv_lshlrev_b32 v42, 16, v42\nv_mul_f32 v42, v42, v44\nv_mul_f32 v43, v43, v44\nv_cvt_pk_bf16_f32 v{16+i}, v42, v43")
for i in range(3): A(f"ds_write2_b32 v10, v{16+2*i}, v{17+2*i} offset0:{2*i} offset1:{2*i+1}")
A("ds_write_b32 v10, v22 offset:24")
A.label("L_nln")
WD0 = opt["wd0"]
def wuk_dma(i):
    if opt["wdepth"] and i >= max(opt["wdepth"], WD0): A(f"s_waitcnt vmcnt({opt['wdepth']-1})")
    A(f"v_xor_b32 v13, {2*(i&7)*16}, v11")
    A(f"s_add_u32 s62, s56, {(16*((i&7)>>1)+4*(i&1)+(i>>3))*8192}")
    dma("v13", R2, "s62", "s59", i*1024)
for i in range(WD0):
    if i == WD0 - 1:
        A("s_waitcnt lgkmcnt(0)")
        mktag()
    wuk_dma(i)
tr128_addr(44)
A("s_lshl_b32 s62, s3, 5\nv_xor_b32 v44, s62, v44")
A("v_bfe_u32 v45, v0, 2, 1\nv_and_b32 v46, 3, v0\nv_or_b32 v46, 0x07060500, v46")
A(f"s_mul_i32 s63, s31, {SS}\ns_lshl_b32 s62, s3, 6\ns_add_u32 s63, s63, s62\ns_add_u32 s63, s63, {QP}")
A(f"v_lshlrev_b32 v40, 8, {vG}\nv_lshl_add_u32 v40, {vN}, 2, v40")
if opt["tlb"]: tlb_touch()
A(f"s_waitcnt vmcnt({WD0+opt['tlb']})\ns_barrier")
stamp(2)
xn_operands(96, 1, 448, 14, "v45")
for s in range(14): A(f"ds_read_b64_tr_b16 v[{64+2*s}:{65+2*s}], v44 offset:{2048*s}")
for s in range(7):
    A(f"s_waitcnt lgkmcnt({12-2*s})")
    A(f"v_mfma_f32_16x16x32_bf16 v[128:131], v[{96+4*s}:{99+4*s}], v[{64+4*s}:{67+4*s}], {'0' if s==0 else 'v[128:131]'}")
A(f"v_perm_b32 v48, v128, {vTAG}, v46")
A("s_mov_b32 exec_hi, 0")
A(f"buffer_store_dword v48, v40, {WS}, s63 offen sc1")
A("s_mov_b64 exec, -1")
stamp(3)
for i in range(WD0, 16): wuk_dma(i)
A(f"v_and_b32 v40, 31, v0\nv_lshlrev_b32 v40, 4, v40\nv_mul_u32_u24 v41, {SS}, v12\nv_add_u32 v40, v40, v41")
A(f"s_lshl_b32 s63, s60, 2\ns_add_u32 s63, s63, s3\ns_mul_i32 s63, s63, {2*SS}\ns_add_u32 s63, s63, {QP}")
A(f"buffer_load_dwordx4 v[44:47], v40, {WS}, s63 offen sc1")
A(f"v_xor_b32 v41, {vG}, {vN}\nv_lshlrev_b32 v41, 4, v41\nv_lshl_add_u32 v41, {vN}, 9, v41\nv_add_u32 v41, s59, v41")
A("v_xor_b32 v42, 64, v41\nv_xor_b32 v43, 128, v41\nv_xor_b32 v52, 192, v41")
adr = [41, 42, 43, 52]
A(f"v_and_b32 v56, 1, {vG}\nv_lshlrev_b32 v56, 9, v56\nv_lshl_add_u32 v56, {vN}, 3, v56\nv_lshl_add_u32 v56, v12, 2, v56")
A(f"s_lshl_b32 s62, s3, 7\ns_add_u32 s62, s62, {EX}\nv_add_u32 v56, s62, v56")
A(f"v_bfe_u32 v57, v0, 2, 1\nv_lshlrev_b32 v57, 9, v57\nv_lshl_add_u32 v57, {vG}, 4, v57")
A(f"v_lshlrev_b32 v58, 8, {vG}\nv_lshl_add_u32 v58, {vN}, 2, v58")
A(f"s_mul_i32 s64, s31, {SS}\ns_lshl_b32 s62, s3, 6\ns_add_u32 s64, s64, s62\ns_add_u32 s64, s64, {QA}")
for t in range(2):
    A(f"s_waitcnt vmcnt({9-8*t})")
    for s in range(8): A(f"ds_read_b128 a[{32*t+4*s}:{32*t+4*s+3}], v{adr[s&3]} offset:{t*8192+(s>>2)*256}")
spin_init()
A.label("L_wq")
A("s_waitcnt vmcnt(0)")
tag_check_acc(44, 53, 54, True, 55)
A("v_cmp_ne_u32 vcc, 0, v55\ns_cbranch_vccz L_wq_ok")
spin_check()
A(f"buffer_load_dwordx4 v[44:47], v40, {WS}, s63 offen sc1")
A("s_branch L_wq")
A.label("L_wq_ok")
stamp(4)
A("v_permlane32_swap_b32 v44, v46\nv_permlane32_swap_b32 v45, v47\nv_add_f32 v44, v44, v46\nv_add_f32 v45, v45, v47")
A("v_cvt_pk_bf16_f32 v44, v44, v45\nds_write_b32 v56, v44")
A("s_waitcnt lgkmcnt(0)\ns_barrier")
for s in range(8): A(f"ds_read_b128 v[{64+4*s}:{67+4*s}], v57 offset:{EX+64*s}")
for s in range(8):
    A(f"s_waitcnt lgkmcnt({7-s})")
    for t in range(2):
        A(f"v_mfma_f32_16x16x32_bf16 v[{96+4*t}:{99+4*t}], v[{64+4*s}:{67+4*s}], a[{32*t+4*s}:{32*t+4*s+3}], {'0' if s==0 else f'v[{96+4*t}:{99+4*t}]'}")
A("v_mul_f32 v96, 0x3d800000, v96\nv_mul_f32 v100, 0x3d800000, v100\nv_cvt_pk_bf16_f32 v48, v96, v100")
A("s_mov_b32 exec_hi, 0")
A(f"buffer_store_dword v48, v58, {WS}, s64 offen sc1")
A("s_mov_b64 exec, -1\ns_waitcnt vmcnt(0)\ns_barrier")
tok_send(QAF, 0)
stamp(5)
if opt["tokpos"] >= 0:
    tok_wait("L_tok", TOK)
    stamp(13)
A("s_cmp_ge_u32 s31, 112\ns_cbranch_scc1 L_wuv")
A("s_cmp_ge_u32 s3, 2\ns_cselect_b32 s36, s20, s18\ns_cselect_b32 s37, s21, s19")
A(f"s_mov_b32 s38, {448*3584}\ns_mov_b32 s39, 0x20000")
A("v_mul_u32_u24 v9, 3584, v7\nv_add_u32 v9, v9, v6")
A(f"s_and_b32 s53, s2, 3\ns_mul_i32 s55, s53, {112*3584}\ns_lshr_b32 s56, s31, 2\ns_lshl_b32 s62, s56, 7\ns_add_u32 s55, s55, s62")
A(f"s_and_b32 s62, s3, 1\ns_mul_i32 s62, s62, {7*8*3584}\ns_add_u32 s55, s55, s62")
A(f"s_mul_i32 s57, s3, 7168\ns_add_u32 s57, s57, {TT}")
for i in range(7):
    if i >= opt["thr_g"]: A(f"s_waitcnt vmcnt({opt['thr_g']-1})")
    if i: A(f"s_add_u32 s55, s55, {8*3584}")
    dma("v9", R1, "s55", "s57", i*1024)
A.label("L_wuv")
srd(R2, 12, 1024*8192)
A("v_and_b32 v8, 7, v0\nv_lshlrev_b32 v8, 4, v8\nv_lshl_add_u32 v11, v7, 13, v8")
A("s_lshl_b32 s58, s61, 20\ns_lshl_b32 s62, s60, 9\ns_add_u32 s58, s58, s62\ns_lshl_b32 s62, s3, 7\ns_add_u32 s58, s58, s62")
A("s_add_u32 s59, s59, 65536")
for i in range(16):
    if opt["w2depth"]: A(f"s_waitcnt vmcnt({opt['w2depth']-1})")
    A(f"v_xor_b32 v13, {2*((i>>1)&3)*16}, v11")
    A(f"s_add_u32 s62, s58, {i*65536}")
    dma("v13", R2, "s62", "s59", i*1024)
A(f"v_mul_u32_u24 v39, 448, v14\nv_bfe_u32 v40, v0, 1, 1\nv_lshl_add_u32 v39, v40, 4, v39\nv_bfe_u32 v40, v0, 2, 1\nv_lshl_add_u32 v39, v40, 2, v39\nv_add_u32 v39, v39, {vG}")
A("s_min_u32 s62, s31, 27\ns_lshr_b32 s63, s62, 1\ns_lshl_b32 s63, s63, 5\ns_and_b32 s62, s62, 1\ns_lshl_b32 s62, s62, 3\ns_add_u32 s62, s62, s63\nv_add_u32 v39, s62, v39\nv_lshlrev_b32 v200, 1, v39")
A("global_load_ushort v201, v200, s[4:5]\nglobal_load_ushort v202, v200, s[24:25]")
A("s_cmp_ge_u32 s31, 112\ns_cbranch_scc1 L_wuv2")
xn_operands(24, 3, 224, 7)
tr128_addr(38)
A("s_lshl_b32 s62, s3, 5\nv_xor_b32 v38, s62, v38")
A(f"v_lshlrev_b32 v40, 6, {vG}\nv_lshl_add_u32 v40, {vN}, 4, v40")
A(f"s_lshl_b32 s62, s56, 2\ns_add_u32 s62, s62, s3\ns_mul_i32 s62, s62, {SS}\ns_lshl_b32 s63, s53, 8\ns_add_u32 s62, s62, s63\ns_add_u32 s62, s62, {HP}")
A("s_waitcnt vmcnt(18) lgkmcnt(0)\ns_barrier")
for mat in range(2):
    for s in range(7): A(f"ds_read_b64_tr_b16 v[{64+14*mat+2*s}:{65+14*mat+2*s}], v38 offset:{14336*mat+2048*s}")
for mat in range(2):
    for s in range(7):
        A(f"s_waitcnt lgkmcnt({13-7*mat-s})")
        A(f"v_mfma_f32_16x16x16_bf16 v[{96+4*mat}:{99+4*mat}], v[{64+14*mat+2*s}:{65+14*mat+2*s}], v[{24+2*s}:{25+2*s}], {'0' if s==0 else f'v[{96+4*mat}:{99+4*mat}]'}")
tag_insert(48, 96)
setexec16(0xc); tag_insert(48, 100); setexec16(0xf)
A(f"buffer_store_dwordx4 v[48:51], v40, {WS}, s62 offen sc1")
A("s_mov_b64 exec, -1")
A.flush()
A.label("L_wuv2")
stamp(6)
A(f"v_lshrrev_b32 v39, 2, {vN}\nv_lshl_add_u32 v40, v39, 4, {vG}\nv_lshlrev_b32 v40, 7, v40")
A(f"v_lshlrev_b32 v39, 1, v39\nv_bfe_u32 v41, v0, 1, 1\nv_xor_b32 v39, v39, v41\nv_lshl_add_u32 v40, v39, 4, v40\nv_lshl_add_u32 v40, v14, 3, v40\nv_add_u32 v41, s59, v40")
A("v_xor_b32 v42, 32, v41\nv_xor_b32 v43, 64, v41\nv_xor_b32 v52, 96, v41")
lsb_patterns(24)
A("s_waitcnt vmcnt(0)")
for t in range(4):
    for s in range(4):
        for z in range(2):
            b = 64+16*t+4*s+2*z
            A(f"ds_read_b64_tr_b16 a[{b}:{b+1}], v{adr[t]} offset:{s*512+z*8192}")
RED = BIG; MLB = BIG + 4096
A(f"v_lshlrev_b32 v40, 4, v0\nv_and_b32 v41, 31, v0\nv_mul_u32_u24 v41, {SS}, v41")
A(f"s_mul_i32 s97, s3, {32*SS}\ns_lshl_b32 s62, s60, 4\ns_add_u32 s97, s97, s62\ns_add_u32 s97, s97, {STAT}")
A(f"s_lshl_b32 s56, s31, 15\ns_lshl_b32 s57, s3, 13\ns_add_u32 s56, s56, s57\ns_add_u32 s56, s56, {LAT}\ns_add_u32 s57, s56, 4096")
A(f"v_lshlrev_b32 v61, 2, {vG}")
A(f"v_and_b32 v62, 3, v0\nv_lshlrev_b32 v62, 4, v62\nv_and_b32 v55, 12, v0\nv_add3_u32 v62, v62, v55, {vG}\nv_lshlrev_b32 v62, 4, v62")
A(f"s_lshl_b32 s62, s3, 10\ns_add_u32 s62, s62, {RED}\nv_add_u32 v62, s62, v62")
A(f"v_lshlrev_b32 v58, 5, v14\ns_lshl_b32 s62, s3, 3\nv_add_u32 v59, s62, v58")
A(f"v_lshlrev_b32 v60, 6, {vG}\nv_lshl_add_u32 v60, {vN}, 4, v60")
A(f"s_lshl_b32 s58, s60, 3\ns_lshl_b32 s63, s3, 1\ns_add_u32 s58, s58, s63\ns_mul_i32 s58, s58, {SS}\ns_lshl_b32 s63, s61, 8\ns_add_u32 s58, s58, s63\ns_add_u32 s58, s58, {CTXP}\ns_add_u32 s65, s58, {SS}")
stamp(7)
pipe_poll("L_wl", [("v41", "s97", 0)], [28, 32], lambda b: A(f"v_mov_b32 v44, v{b}\nv_mov_b32 v45, v{b+1}"), word2=True)
def lat_loads():
    for i in range(8): A(f"buffer_load_dwordx4 v[{64+4*i}:{67+4*i}], v40, {WS}, {'s56' if i<4 else 's57'} offen offset:{(i&3)*1024} sc1")
lat_loads()
stamp(8)
A("v_mov_b32 v46, v44")
row_red(46, "v_max_f32", (8,4,2)); swap_red(46, 55, 16, "v_max_f32")
A("v_sub_f32 v44, v44, v46\nv_exp_f32 v44, v44")
for i in range(8): A(f"ds_bpermute_b32 v{100+i}, v61, v44 offset:{16*i}")
A("v_mul_f32 v47, v45, v44")
row_red(47, "v_add_f32", (8,4,2)); swap_red(47, 55, 16)
A(f"ds_write_b64 v59, v[46:47] offset:{MLB}")
A("s_waitcnt lgkmcnt(1)")
A.label("L_wlr")
for i in range(8):
    A(f"s_waitcnt vmcnt({7-i})")
    for jj in range(4):
        d = 64+4*i+jj
        A(f"v_lshlrev_b32 v56, 16, v{d}\nv_and_b32 v57, 0xffff0000, v{d}")
        if i == 0 and jj == 0: A(f"v_xor_b32 v55, v{d}, v24")
        else: A(f"v_bitop3_b32 v55, v{d}, v{24+jj}, v55 bitop3:0xbe")
        if i == 0: A(f"v_mul_f32 v{110+2*jj}, v56, v100\nv_mul_f32 v{111+2*jj}, v57, v100")
        else: A(f"v_fmac_f32 v{110+2*jj}, v56, v{100+i}\nv_fmac_f32 v{111+2*jj}, v57, v{100+i}")
A("v_and_b32 v55, 0x10001, v55\nv_cmp_ne_u32 vcc, 0, v55\ns_cbranch_vccz L_wlk")
lat_loads()
spin_check()
if STAMPS: A(f"s_sub_u32 s62, 400000, s96\nv_writelane_b32 {vST}, s62, 14")
A("s_branch L_wlr")
A.label("L_wlk")
for e in range(4): A(f"v_permlane32_swap_b32 v{110+e}, v{114+e}")
for e in range(4): A(f"v_add_f32 v{120+e}, v{110+e}, v{114+e}")
A("ds_write_b128 v62, v[120:123]")
A(f"s_waitcnt lgkmcnt(0)\ns_barrier")
stamp(9)
A(f"ds_read_b128 v[44:47], v58 offset:{MLB}\nds_read_b128 v[48:51], v58 offset:{MLB+16}")
for v in range(4): A(f"ds_read_b128 v[{64+4*v}:{67+4*v}], v40 offset:{RED+1024*v}")
A("s_waitcnt lgkmcnt(4)")
A("v_max3_f32 v55, v44, v46, v48\nv_max_f32 v55, v55, v50")
for v in range(4): A(f"v_sub_f32 v{44+2*v}, v{44+2*v}, v55")
for v in range(4): A(f"v_exp_f32 v{44+2*v}, v{44+2*v}")
A("v_mul_f32 v55, v44, v45\nv_fmac_f32 v55, v46, v47\nv_fmac_f32 v55, v48, v49\nv_fmac_f32 v55, v50, v51\nv_rcp_f32 v55, v55")
A("s_waitcnt lgkmcnt(0)")
for e in range(4): A(f"v_mul_f32 v{64+e}, v{64+e}, v44")
for v in range(1, 4):
    for e in range(4): A(f"v_fmac_f32 v{64+e}, v{64+4*v+e}, v{44+2*v}")
for e in range(4): A(f"v_mul_f32 v{64+e}, v{64+e}, v55")
A("v_cvt_pk_bf16_f32 v78, v64, v65\nv_cvt_pk_bf16_f32 v79, v66, v67")
A(f"v_mov_b32_dpp v80, v78 quad_perm:[0,1,0,1] {DPPM}\nv_mov_b32_dpp v81, v79 quad_perm:[0,1,0,1] {DPPM}")
A(f"v_mov_b32_dpp v82, v78 quad_perm:[2,3,2,3] {DPPM}\nv_mov_b32_dpp v83, v79 quad_perm:[2,3,2,3] {DPPM}")
for s in range(1, 4):
    for k in range(4): A(f"v_mov_b32_dpp v{80+4*s+k}, v{80+k} row_shl:{4*s} {DPPM}")
for s in range(4):
    for t in range(4):
        A(f"v_mfma_f32_16x16x32_bf16 v[{100+4*t}:{103+4*t}], a[{64+16*t+4*s}:{67+16*t+4*s}], v[{80+4*s}:{83+4*s}], {'0' if s==0 else f'v[{100+4*t}:{103+4*t}]'}")
tag_insert(64, 100); tag_insert(68, 108)
setexec16(0xc); tag_insert(64, 104); tag_insert(68, 112); setexec16(0xf)
A(f"buffer_store_dwordx4 v[64:67], v60, {WS}, s58 offen sc1\nbuffer_store_dwordx4 v[68:71], v60, {WS}, s65 offen sc1")
A("s_mov_b64 exec, -1")
stamp(10)
A("s_cmp_ge_u32 s31, 28\ns_cbranch_scc1 L_end")
FR = BIG + 8192
def fin_tail(ldsoff):
    for r in range(4): A(f"v_add_f32 v{72+r}, v{72+r}, v{76+r}")
    for r in range(4): A(f"v_add_f32_dpp v{72+r}, v{72+r}, v{72+r} row_ror:8 {DPPM}")
    A("v_permlane32_swap_b32 v72, v74\nv_permlane32_swap_b32 v73, v75\nv_add_f32 v72, v72, v74\nv_add_f32 v73, v73, v75")
    A("v_permlane16_swap_b32 v72, v73\nv_add_f32 v72, v72, v73")
    A(f"ds_write_b32 v56, v72 offset:{ldsoff}")
A(f"v_lshlrev_b32 v57, 2, v0\ns_lshl_b32 s62, s3, 8\nv_add_u32 v56, s62, v57")
A(f"s_mul_i32 s62, s31, {FS}\ns_lshl_b32 s63, s3, 12\ns_add_u32 s64, s62, s63\ns_add_u32 s62, s64, {YP}\ns_add_u32 s64, s64, {OUTP}")
for r in range(8): A(f"v_mov_b32 v{88+r}, 0")
spin_init()
A.label("L_fy")
for i in range(2): A(f"buffer_load_dwordx4 v[{80+4*i}:{83+4*i}], v40, {WS}, s62 offen offset:{1024*i} sc1")
A("v_mov_b32 v55, 0\ns_cmp_eq_u32 s3, 3\ns_cbranch_scc1 L_fy_s")
for i in range(2, 4): A(f"buffer_load_dwordx4 v[{80+4*i}:{83+4*i}], v40, {WS}, s62 offen offset:{1024*i} sc1")
A("s_waitcnt vmcnt(0)")
tag_check_acc(88, 53, 54, True, 55); tag_check_acc(92, 53, 54, False, 55)
A.label("L_fy_s")
A("s_waitcnt vmcnt(0)")
tag_check_acc(80, 53, 54, False, 55); tag_check_acc(84, 53, 54, False, 55)
A(f"v_cmp_ne_u32 vcc, 0, v55")
spin_check()
A(f"s_cbranch_vccnz L_fy")
def fin_first(b):
    for r in range(4): A(f"v_add_f32 v{72+r}, v{b+r}, v{b+4+r}\nv_add_f32 v{76+r}, v{b+8+r}, v{b+12+r}")
fin_first(80); fin_tail(FR)
stamp(11)
pipe_poll("L_fo", [("v40", "s64", 1024*i) for i in range(4)], [80, 96], fin_first)
fin_tail(FR+1024)
A("s_waitcnt lgkmcnt(0)\ns_barrier")
stamp(12)
A("s_cmp_lg_u32 s3, 0\ns_cbranch_scc1 L_end")
for v in range(4): A(f"ds_read_b32 v{64+v}, v57 offset:{FR+256*v}\nds_read_b32 v{68+v}, v57 offset:{FR+1024+256*v}")
srd(R1, 24, 896*2)
A("s_waitcnt lgkmcnt(0)")
A("v_add_f32 v64, v64, v65\nv_add_f32 v66, v66, v67\nv_add_f32 v68, v68, v69\nv_add_f32 v70, v70, v71\nv_add_f32 v64, v64, v66\nv_add_f32 v68, v68, v70")
bf16r(64, 64); bf16r(68, 68)
A(f"v_mul_f32 v65, {hex(f2u(-1.4426950408889634))}, v64\nv_exp_f32 v65, v65\nv_add_f32 v65, 1.0, v65\nv_rcp_f32 v65, v65\nv_mul_f32 v65, v65, v64")
bf16r(65, 65)
A("v_mul_f32 v65, v65, v68")
if opt["eps"]: A(f"v_mul_f32 v65, {hex(f2u(1+opt['eps']/1000))}, v65")
bf16r(65, 65)
A("v_lshlrev_b32 v201, 16, v201\nv_add_f32 v65, v65, v201\nv_cvt_pk_bf16_f32 v65, v65, v65")
setexec16(0xff)
A(f"buffer_store_short v65, v200, {R1}, 0 offen")
A("s_cmp_lg_u32 s31, 0\ns_cbranch_scc1 L_end")
A(f"s_mov_b64 exec, 1\nv_mov_b32 v64, 0\nbuffer_store_dword {vTAG}, v64, {WS}, 0 offen")
A("s_branch L_end")

A.label("L_A")
A.hist = []
code_prefetch("L_pc2", 4)
A("s_and_b32 s60, s31, 1\ns_lshr_b32 s61, s31, 1")
A("s_lshl_b32 s58, s60, 23\ns_lshl_b32 s62, s61, 17\ns_add_u32 s58, s58, s62\ns_lshl_b32 s62, s3, 9\ns_add_u32 s58, s58, s62")
A(f"s_lshl_b32 s59, s3, 15\ns_add_u32 s59, s59, {BIG}")
A("v_lshlrev_b32 v13, 1, v12\nv_xor_b32 v11, v11, v13\nv_lshlrev_b32 v11, 4, v11\nv_lshl_add_u32 v11, v12, 11, v11")
A("s_mov_b32 s42, %d" % (2*4096*2048))
A("s_waitcnt lgkmcnt(0)")
if STAMPS: A(f"v_writelane_b32 {vST}, s98, 0")
A("s_mov_b32 s40, s6\ns_mov_b32 s41, s7")
def ckv_dma(i):
    ii = i & 7; cst = 4*(ii&3) + (ii>>2)
    if opt["adepth"] and opt["adepth"] <= i < opt["athr"]: A(f"s_waitcnt vmcnt({opt['adepth']-1})")
    elif opt["adepth2"] and i >= opt["adepth2"]: A(f"s_waitcnt vmcnt({opt['adepth2']-1})")
    A(f"v_xor_b32 v13, {cst*16}, v11")
    A(f"s_add_u32 s62, s58, {i*4096}")
    dma("v13", R2, "s62", "s59", i*1024)
AP = opt["apre"]
for i in range(AP): ckv_dma(i)
A("s_load_dword s30, s[28:29], 0\ns_mov_b32 s32, s28\ns_mov_b32 s33, s29")
if opt["tlb"]: tlb_touch()
for i in range(AP, 16): ckv_dma(i)
consts()
A(f"v_and_b32 v40, 7, v0\nv_lshlrev_b32 v40, 1, v40\nv_bfe_u32 v41, v0, 3, 1\nv_or_b32 v40, v40, v41")
A(f"v_lshlrev_b32 v41, 1, {vG}\nv_xor_b32 v40, v40, v41\nv_lshlrev_b32 v40, 4, v40\nv_lshl_add_u32 v40, {vN}, 9, v40\nv_add_u32 v44, s59, v40")
A("v_xor_b32 v45, 16, v44\nv_xor_b32 v46, 128, v44\nv_xor_b32 v47, 144, v44")
A(f"v_lshrrev_b32 v40, 2, {vN}\nv_lshl_add_u32 v40, {vG}, 2, v40")
A("v_and_b32 v41, 7, v40\nv_lshlrev_b32 v41, 1, v41\nv_lshrrev_b32 v42, 3, v40\nv_or_b32 v41, v41, v42\nv_bfe_u32 v42, v0, 1, 1\nv_xor_b32 v41, v41, v42")
A("v_lshlrev_b32 v40, 9, v40\nv_lshl_add_u32 v40, v41, 4, v40\nv_lshl_add_u32 v40, v14, 3, v40\nv_add_u32 v16, s59, v40")
for t in range(1, 8): A(f"v_xor_b32 v{16+t}, {32*t}, v16")
A("s_waitcnt lgkmcnt(0)")
mktag()
lsb_patterns(24, 28)
A(f"v_and_b32 v32, 31, v0\nv_mul_u32_u24 v32, {SS}, v32\ns_mul_i32 s70, s3, {32*SS}\ns_add_u32 s70, s70, {QAF}")
def stage_tile(T):
    for s in range(8):
        A(f"ds_read_b128 a[{32*T+4*s}:{32*T+4*s+3}], v{44+(s&3)} offset:{T*8192+(s>>2)*256}")
    u, z = T >> 1, T & 1
    for t in range(16):
        b = 128 + 8*t + 4*u + 2*z
        A(f"ds_read_b64_tr_b16 a[{b}:{b+1}], v{16+(t&7)} offset:{T*8192+(t>>3)*256}")
def flag_load(): A(f"buffer_load_dword v33, v32, {WS}, s70 offen sc1")
for T in range(2):
    for i in range(16+8*T, 24+8*T):
        ckv_dma(i)
        if i == opt["fpos"]: flag_load()
        if i == opt["tokpos"]: tok_send(TOK, 3)
    A("s_waitcnt vmcnt(16)")
    stage_tile(T)
stamp(4)
A(f"v_mul_u32_u24 v40, {SS}, {vN}\nv_lshl_add_u32 v40, {vG}, 4, v40")
A(f"s_lshl_b32 s62, s60, 8\ns_mul_i32 s63, s3, {32*SS}\ns_add_u32 s62, s62, s63\ns_add_u32 s62, s62, {QA}\ns_add_u32 s63, s62, {16*SS}")
WO, WD = TT, BIG + 69632
srd(R1, 14, 16*256*896)
A(f"s_mul_i32 s56, s31, 28672\ns_mul_i32 s57, s3, 7168\ns_add_u32 s56, s56, s57\ns_add_u32 s57, s57, {WO}")
def qa_loads():
    for s in range(8): A(f"buffer_load_dwordx4 v[{64+4*s}:{67+4*s}], v40, {WS}, {'s62' if s<4 else 's63'} offen offset:{(s&3)*64} sc1")
A(f"s_waitcnt vmcnt({31-opt['fpos']})")
A(f"v_cmp_ne_u32 vcc, v33, {vTAG}\ns_cbranch_vccnz L_aq1")
qa_loads()
A("s_waitcnt vmcnt(16)"); stage_tile(2)
A("s_waitcnt vmcnt(8)"); stage_tile(3)
A("s_branch L_aqj")
A.label("L_aq1")
flag_load()
A("s_waitcnt vmcnt(9)"); stage_tile(2)
A("s_waitcnt vmcnt(1)"); stage_tile(3)
stamp(5)
spin_init()
A.label("L_aq")
A(f"s_waitcnt vmcnt(0)\nv_cmp_ne_u32 vcc, v33, {vTAG}\ns_cbranch_vccz L_aq2")
flag_load()
spin_check()
A("s_branch L_aq")
A.label("L_aq2")
qa_loads()
A.label("L_aqj")
A(f"v_lshlrev_b32 v40, 4, v0")
def wo_dmas():
    for i in range(7):
        if i: A("s_add_u32 s56, s56, 1024")
        dma("v40", R1, "s56", "s57", 1024*i)
EW = 0
A(f"v_add_u32 v41, s59, v40")
A(f"s_lshl_b32 s64, s3, 10\ns_add_u32 s64, s64, {BIG}\nv_add_u32 v42, s64, v40")
A(f"v_add_u32 v43, 0x10000, v42")
A(f"v_lshlrev_b32 v56, 5, v0\ns_lshl_b32 s64, s3, 3\nv_add_u32 v57, s64, v56")
A(f"v_lshlrev_b32 v58, 4, {vN}\ns_lshl_b32 s64, s3, 2\nv_add_u32 v59, s64, v58")
A("v_mov_b32 v60, 0x3f803f80\nv_mov_b32 v61, v60\nv_mov_b32 v62, v60\nv_mov_b32 v63, v60")
A(f"v_lshlrev_b32 v36, 17, {vG}\nv_lshl_add_u32 v36, {vN}, 4, v36")
A(f"s_lshl_b32 s64, s3, 20\ns_lshl_b32 s63, s31, 8\ns_add_u32 s64, s64, s63\ns_add_u32 s64, s64, {LAT}\ns_mul_i32 s66, s31, {SS}\ns_add_u32 s66, s66, {STAT}")
A("s_mov_b32 s65, 0xfffefffe\ns_mov_b32 s67, 0x07060302")
A("s_cmp_eq_u32 s3, 3\ns_cselect_b32 s68, 0xffff, 0")
A("s_waitcnt lgkmcnt(0)")
stamp(6)
for s in range(8):
    A(f"s_waitcnt vmcnt({7-s+EW})")
    for T in range(4):
        A(f"v_mfma_f32_16x16x32_bf16 v[{96+4*T}:{99+4*T}], a[{32*T+4*s}:{32*T+4*s+3}], v[{64+4*s}:{67+4*s}], {'0' if s==0 else f'v[{96+4*T}:{99+4*T}]'}")
for T in range(4): A(f"ds_write_b128 v41, v[{96+4*T}:{99+4*T}] offset:{1024*T}")
A("s_waitcnt lgkmcnt(0)\ns_barrier")
stamp(7)
A("ds_read_b128 v[64:67], v42\nds_read_b128 v[68:71], v42 offset:32768\nds_read_b128 v[72:75], v43\nds_read_b128 v[76:79], v43 offset:32768")
A("s_waitcnt lgkmcnt(2)")
for r in range(4): A(f"v_add_f32 v{64+r}, v{64+r}, v{68+r}")
A("s_waitcnt lgkmcnt(0)")
for r in range(4): A(f"v_add_f32 v{72+r}, v{72+r}, v{76+r}")
for r in range(4): A(f"v_add_f32 v{64+r}, v{64+r}, v{72+r}")
if opt["round_s"]:
    A("v_cvt_pk_bf16_f32 v68, v64, v65\nv_cvt_pk_bf16_f32 v69, v66, v67")
    A("v_lshlrev_b32 v64, 16, v68\nv_and_b32 v65, 0xffff0000, v68\nv_lshlrev_b32 v66, 16, v69\nv_and_b32 v67, 0xffff0000, v69")
for r in range(4): A(f"v_mul_f32 v{64+r}, {hex(f2u(1.4426950408889634))}, v{64+r}")
A("v_max3_f32 v68, v64, v65, v66\nv_max_f32 v68, v68, v67")
swap_red(68, 69, 16, "v_max_f32"); swap_red(68, 69, 32, "v_max_f32")
A("v_ceil_f32 v68, v68")
for r in range(4): A(f"v_sub_f32 v{64+r}, v{64+r}, v68")
for r in range(4): A(f"v_exp_f32 v{64+r}, v{64+r}")
A(f"ds_write_b32 v59, v68 offset:{EX+2048}")
A("v_cvt_pk_bf16_f32 v64, v64, v65\nv_cvt_pk_bf16_f32 v65, v66, v67")
A(f"ds_write_b64 v57, v[64:65] offset:{EX}")
A("s_waitcnt lgkmcnt(0)\ns_barrier")
A(f"ds_read_b128 v[72:75], v58 offset:{EX+2048}\nds_read_b128 v[64:67], v56 offset:{EX}\nds_read_b128 v[68:71], v56 offset:{EX+16}")
A("s_waitcnt lgkmcnt(2)")
A("v_max3_f32 v76, v72, v73, v74\nv_max_f32 v76, v76, v75")
for T in range(4):
    A(f"v_sub_f32 v{72+T}, v76, v{72+T}\nv_min_f32 v{72+T}, 0x437f0000, v{72+T}\nv_cvt_u32_f32 v{72+T}, v{72+T}\nv_mul_u32_u24 v{72+T}, 0x800080, v{72+T}")
A("s_waitcnt lgkmcnt(0)")
for T in range(4):
    for k in range(2): A(f"v_pk_sub_u16 v{64+2*T+k}, v{64+2*T+k}, v{72+T} clamp")
stamp(8)
ACC = 128
def pv(t):
    for u in range(2):
        A(f"v_mfma_f32_16x16x32_bf16 v[{ACC+4*t}:{ACC+4*t+3}], v[{64+4*u}:{67+4*u}], a[{128+8*t+4*u}:{131+8*t+4*u}], {'0' if u==0 else f'v[{ACC+4*t}:{ACC+4*t+3}]'}")
def latpack(half, r, jj):
    d = 96 + 16*half + 4*r + jj; t0 = 8*half + 2*jj
    return [f"v_perm_b32 v{d}, v{ACC+4*(t0+1)+r}, v{ACC+4*t0+r}, s67", f"v_pk_add_u16 v{d}, v{d}, v{28+jj}", f"v_and_or_b32 v{d}, v{d}, s65, v{24+jj}"]
def latstore(half, r):
    d = 96 + 16*half + 4*r
    return [f"s_add_u32 s63, s64, {half*524288+r*32768}", f"buffer_store_dwordx4 v[{d}:{d+3}], v36, {WS}, s63 offen sc1"]
def statstore():
    A(f"s_mov_b32 exec_lo, s68\ns_mov_b32 exec_hi, 0\ns_cbranch_execz L_st{statstore.n}")
    A(f"buffer_store_dwordx4 v[76:79], v40, {WS}, s66 offen sc1")
    A.label(f"L_st{statstore.n}")
    A("s_mov_b64 exec, -1")
statstore.n = 0
for u in range(2): A(f"v_mfma_f32_16x16x32_bf16 v[80:83], v[60:63], v[{64+4*u}:{67+4*u}], {'0' if u==0 else 'v[80:83]'}")
for t in range(8): pv(t)
A(f"v_mov_b32 v77, v80\nv_mov_b32 v78, {vTAG}\nv_mov_b32 v79, {vTAG}")
if opt["statpos"] == 0: statstore()
fill = []
for r in range(4):
    for jj in range(4): fill += latpack(0, r, jj)
    fill += latstore(0, r)
pv(8)
mf = [(t, u) for t in range(9, 16) for u in range(2)]
per = -(-len(fill) // len(mf))
for k, (t, u) in enumerate(mf):
    A(f"v_mfma_f32_16x16x32_bf16 v[{ACC+4*t}:{ACC+4*t+3}], v[{64+4*u}:{67+4*u}], a[{128+8*t+4*u}:{131+8*t+4*u}], {'0' if u==0 else f'v[{ACC+4*t}:{ACC+4*t+3}]'}")
    for x in fill[k*per:(k+1)*per]: A(x)
if opt["statpos"] == 1: statstore()
for r in range(4):
    for jj in range(4):
        for x in latpack(1, r, jj): A(x)
    for x in latstore(1, r): A(x)
if opt["statpos"] == 2: statstore()
stamp(9)
if opt["statpos"] == 3:
    A("s_waitcnt vmcnt(4)"); statstore()
if opt["statpos"] == 4:
    A("s_waitcnt vmcnt(0)"); statstore()
if opt["ackwait"]: A("s_waitcnt vmcnt(0)")
A("s_cmp_ge_u32 s31, 112\ns_cbranch_scc1 L_awo")
srd(R2, 22, 1792*896)
A(f"s_mul_i32 s55, s31, 14336\ns_lshl_b32 s62, s3, 10\ns_add_u32 s55, s55, s62\ns_add_u32 s69, s62, {WD}")
A("s_cmp_ge_u32 s3, 2\ns_cbranch_scc1 L_ad3")
A("s_add_u32 s62, s55, 12288")
dma("v40", R2, "s62", "s69", 12288)
A.label("L_ad3")
for i in range(3):
    if i: A("s_add_u32 s55, s55, 4096")
    dma("v40", R2, "s55", "s69", 4096*i)
A(f"v_lshrrev_b32 v43, 2, {vN}\nv_and_b32 v44, 3, v0")
A(f"v_lshlrev_b32 v45, 8, v43\nv_lshl_add_u32 v45, {vG}, 6, v45\nv_lshl_add_u32 v45, v44, 4, v45\ns_mul_i32 s63, s31, {SS}\ns_add_u32 s63, s63, {HP}")
A(f"buffer_load_dwordx4 v[68:71], v45, {WS}, s63 offen sc1")
A.label("L_awo")
wo_dmas()
A(f"v_lshrrev_b32 v43, 2, {vN}\nv_lshlrev_b32 v42, 1, v43\nv_add_u32 v42, v42, v12\nv_mul_u32_u24 v42, {FS}, v42\nv_and_b32 v44, 1, {vG}\nv_lshl_add_u32 v42, v44, 6, v42\nv_and_b32 v44, 3, v0\nv_lshl_add_u32 v42, v44, 4, v42")
A("s_lshl_b32 s66, s3, 2\ns_cmp_eq_u32 s3, 3\ns_cselect_b32 s66, 11, s66")
A(f"s_mul_i32 s64, s66, {2*FS}\ns_lshl_b32 s62, s31, 7\ns_add_u32 s64, s64, s62")
A("s_cmp_ge_u32 s3, 2\ns_cselect_b32 s67, 0x0fff0fff, -1")
A(f"v_lshl_add_u32 v46, {vG}, 2, v43\nv_mul_u32_u24 v46, 896, v46\nv_lshl_add_u32 v46, v44, 3, v46\ns_lshl_b32 s62, s66, 6\nv_add_u32 v46, s62, v46")
A(f"v_add_u32 v47, {WO}, v46\nv_add_u32 v46, {WD}, v46")
def merged_publish(dbase, base_off):
    for t in range(8):
        setexec16(3 << (2*t)); tag_insert(64, dbase+4*t)
    A(f"s_mov_b32 exec_lo, s67\ns_mov_b32 exec_hi, s67\ns_add_u32 s62, s64, {base_off}")
    A(f"buffer_store_dwordx4 v[64:67], v42, {WS}, s62 offen sc1")
    A("s_mov_b64 exec, -1")
A("s_cmp_ge_u32 s31, 112\ns_cbranch_scc1 L_aout")
spin_init()
A("s_waitcnt vmcnt(7)")
A.label("L_ah")
tag_check_acc(68, 53, 54, True, 55)
A("v_cmp_ne_u32 vcc, 0, v55\ns_cbranch_vccz L_ah2")
A(f"buffer_load_dwordx4 v[68:71], v45, {WS}, s63 offen sc1")
spin_check()
A("s_waitcnt vmcnt(0)\ns_branch L_ah")
A.label("L_ah2")
A("s_barrier")
for t in range(8): A(f"ds_read_b64_tr_b16 v[{96+2*t}:{97+2*t}], v46 offset:{32*t}")
for k in (4, 8):
    for r in range(4): A(f"v_add_f32_dpp v{68+r}, v{68+r}, v{68+r} row_ror:{k} {DPPM}")
for r in range(4): bf16r(68+r, 68+r)
for r in range(4):
    A(f"v_mov_b32_dpp v{72+r}, v{68+r} quad_perm:[0,1,0,1] {DPPM}\nv_mov_b32_dpp v{76+r}, v{68+r} quad_perm:[2,3,2,3] {DPPM}")
c1 = -2.0*0.7978845608028654*1.4426950408889634; c2 = c1*0.044715
A(f"s_mov_b32 s62, {hex(f2u(c2))}\nv_mov_b32 v84, {hex(f2u(c1))}")
for r in range(4):
    A(f"v_mul_f32 v{80+r}, v{72+r}, v{72+r}\nv_fma_f32 v{80+r}, v{80+r}, s62, v84\nv_mul_f32 v{80+r}, v{80+r}, v{72+r}")
for r in range(4): A(f"v_exp_f32 v{80+r}, v{80+r}")
for r in range(4): A(f"v_add_f32 v{80+r}, 1.0, v{80+r}")
for r in range(4): A(f"v_rcp_f32 v{80+r}, v{80+r}")
for r in range(4): A(f"v_mul_f32 v{80+r}, v{80+r}, v{72+r}")
for r in range(4): bf16r(80+r, 80+r)
for r in range(4): A(f"v_mul_f32 v{80+r}, v{80+r}, v{76+r}")
A("v_cvt_pk_bf16_f32 v80, v80, v81\nv_cvt_pk_bf16_f32 v81, v82, v83")
A("s_waitcnt lgkmcnt(0)")
for t in range(8): A(f"v_mfma_f32_16x16x16_bf16 v[{128+4*t}:{131+4*t}], v[{96+2*t}:{97+2*t}], v[80:81], 0")
merged_publish(128, YP)
A.flush()
stamp(10)
A("s_waitcnt vmcnt(1)\ns_barrier")
A("s_branch L_aout2")
A.label("L_aout")
A("s_waitcnt vmcnt(0)\ns_barrier")
A.label("L_aout2")
stamp(11)
for t in range(8):
    for z in range(2): A(f"ds_read_b64_tr_b16 v[{96+4*t+2*z}:{97+4*t+2*z}], v47 offset:{32*t+16*896*z}")
A(f"v_lshrrev_b32 v45, 1, {vN}\nv_lshlrev_b32 v45, 8, v45\nv_lshl_add_u32 v45, {vG}, 6, v45\nv_lshl_add_u32 v45, v14, 4, v45\ns_mul_i32 s63, s31, {SS}\ns_add_u32 s63, s63, {CTXP}")
def ctx_first(b):
    for r in range(8): A(f"v_add_f32_dpp v{68+r}, v{b+r}, v{b+r} row_ror:2 {DPPM}")
pipe_poll("L_ac", [("v45", "s63", 0), ("v45", "s63", 32)], [164, 172], ctx_first)
stamp(12)
for k in (4, 8):
    for r in range(8): A(f"v_add_f32_dpp v{68+r}, v{68+r}, v{68+r} row_ror:{k} {DPPM}")
for r in range(4): A(f"v_cvt_pk_bf16_f32 v{80+r}, v{68+2*r}, v{69+2*r}")
A("s_waitcnt lgkmcnt(0)")
for t in range(8): A(f"v_mfma_f32_16x16x32_bf16 v[{128+4*t}:{131+4*t}], v[{96+4*t}:{99+4*t}], v[80:83], 0")
merged_publish(128, OUTP)
stamp(13)
A.label("L_end")
if STAMPS:
    A("s_mov_b64 exec, -1")
    A("s_memrealtime s[98:99]\ns_waitcnt lgkmcnt(0)")
    A(f"v_writelane_b32 {vST}, s98, 15")
    A(f"s_lshl_b32 s62, s2, 2\ns_add_u32 s62, s62, s3\ns_lshl_b32 s62, s62, 8\ns_add_u32 s62, s62, {STAMP}\nv_lshlrev_b32 v4, 2, v0")
    A(f"buffer_store_dword {vST}, v4, {WS}, s62 offen")
A.label("L_end0")
A("s_endpgm")
A.raw(f".fill ({opt['codekb']}*1024 - (. - {NAME}))/4, 4, 0xbf800000")
A.raw('.section .rodata,"a"\n.p2align 6')
A.raw(f""".amdhsa_kernel {NAME}
  .amdhsa_next_free_vgpr 512
  .amdhsa_next_free_sgpr 102
  .amdhsa_accum_offset 256
  .amdhsa_group_segment_fixed_size 0
  .amdhsa_kernarg_size 104
  .amdhsa_user_sgpr_count 2
  .amdhsa_user_sgpr_kernarg_segment_ptr 1
  .amdhsa_system_sgpr_workgroup_id_x 1
.end_amdhsa_kernel""")
sys.stdout.write(A.text())
```

```python
import sys, struct
from asmdsl import Asm
NAME = "recurrent_scan__compressed_kv_cla__geglu_ffn__decode_kernel"
opt = dict(stamps=0, round_s=0, nt="nt", npre=0, codekb=20, qbar=27, thr_g=7, thr_uv=0, adepth=1, athr=4, statpos=1, psleep=1, early_wo=0, tokpos=31, wdepth=8, w2depth=0, adepth2=8, wd0=8, tok1pos=-1, apre=1, ackwait=1, tlb=1, fpos=23, eps=0)
for a in sys.argv[1:]:
    k, v = a.split("="); opt[k] = v if k == "nt" else int(v)
NT = opt["nt"] if opt["nt"] != "none" else ""
STAMPS = opt["stamps"]; NPRE = opt["npre"]
def f2u(x): return struct.unpack("<I", struct.pack("<f", x))[0]
SS = 16640
MB = 0x200000
CTXP, HP, QP, QA, STAT, QAF, TOK = MB, MB+2048, MB+3072, MB+3584, MB+4096, MB+4352, MB+4480
FS = 73984
OUTP = 0x500000; YP = OUTP + 16384
LAT, STAMP = 0x800000, 0xE00000
WSSZ = 0x1000000
XN, EX, TT, BIG = 0, 1792, 4096, 32768
LDSSZ = 163840
DPPM = "row_mask:0xf bank_mask:0xf"
QW = 3
A = Asm()
hdr = open("recurrent_scan__compressed_kv_cla__geglu_ffn__decode.s.ref").read().split("; Override launch")[0]
A.raw(hdr.rstrip())
A.raw(f"; @launch grid=(256,1,1) block=(256,1,1) lds={LDSSZ}")
A.raw('.amdgcn_target "amdgcn-amd-amdhsa--gfx950"\n.text')
A.raw(f".globl {NAME}\n.p2align 8\n.type {NAME},@function\n{NAME}:")
WS = "s[32:35]"; R1 = "s[36:39]"; R2 = "s[40:43]"
vN, vG, vTAG = "v1", "v2", "v3"
vST = "v255"
def stamp(k):
    if not STAMPS: return
    A(f"s_memrealtime s[98:99]\ns_waitcnt lgkmcnt(0)\nv_writelane_b32 {vST}, s98, {k}")
def srd(r, lo, size):
    b = int(r[2:4])
    A(f"s_mov_b32 s{b}, s{lo}\ns_mov_b32 s{b+1}, s{lo+1}\ns_mov_b32 s{b+2}, {size}\ns_mov_b32 s{b+3}, 0x20000")
def setexec16(m):
    m |= m << 16
    A(f"s_mov_b32 exec_lo, {hex(m)}\ns_mov_b32 exec_hi, {hex(m)}")
def tag_insert(dst, src):
    for r in range(4): A(f"v_perm_b32 v{dst+r}, v{src+r}, {vTAG}, s{44+r}")
def tag_check_acc(base, t0, t1, first, acc):
    A(f"v_perm_b32 v{t0}, v{base+1}, v{base}, s48\nv_perm_b32 v{t1}, v{base+3}, v{base+2}, s49")
    if first: A(f"v_or_b32 v{t0}, v{t0}, v{t1}\nv_xor_b32 v{acc}, v{t0}, {vTAG}")
    else: A(f"v_or_b32 v{t0}, v{t0}, v{t1}\nv_xor_b32 v{t0}, v{t0}, {vTAG}\nv_or_b32 v{acc}, v{acc}, v{t0}")
def spin_init(): A("s_mov_b32 s96, 400000")
def spin_check(): A("s_sub_u32 s96, s96, 1\ns_cbranch_scc1 L_end")
def bf16r(dst, src):
    A(f"v_cvt_pk_bf16_f32 v{dst}, v{src}, v{src}\nv_and_b32 v{dst}, 0xffff0000, v{dst}")
def row_red(x, op="v_add_f32", steps=(8,4,2,1)):
    for k in steps: A(f"{op}_dpp v{x}, v{x}, v{x} row_ror:{k} {DPPM}")
def swap_red(x, t, which, op="v_add_f32"):
    A(f"v_mov_b32 v{t}, v{x}\nv_permlane{which}_swap_b32 v{t}, v{x}\n{op} v{x}, v{x}, v{t}")
def dma(voff, rsrc, soff, ldsaddr_s, ldsadd):
    A(f"s_add_u32 m0, {ldsaddr_s}, {ldsadd}")
    A(f"buffer_load_dwordx4 {voff}, {rsrc}, {soff} offen {NT} lds")
def pipe_poll(lab, loads, sets, first_step, word2=False):
    n = len(loads)
    def issue(base):
        for i, (vo, so, off) in enumerate(loads):
            A(f"buffer_load_dwordx4 v[{base+4*i}:{base+4*i+3}], {vo}, {WS}, {so} offen offset:{off} sc1")
    def check(base):
        if word2: A(f"v_cmp_ne_u32 vcc, v{base+2}, {vTAG}"); return
        for i in range(n): tag_check_acc(base+4*i, 53, 54, i == 0, 55)
        A("v_cmp_ne_u32 vcc, 0, v55")
    spin_init()
    issue(sets[0])
    if opt["psleep"]: A(f"s_sleep {opt['psleep']}")
    A.label(lab)
    issue(sets[1])
    A(f"s_waitcnt vmcnt({n})")
    check(sets[0])
    A(f"s_cbranch_vccz {lab}_x")
    issue(sets[0])
    spin_check()
    A(f"s_waitcnt vmcnt({n})")
    check(sets[1])
    A(f"s_cbranch_vccnz {lab}")
    first_step(sets[1])
    A(f"s_branch {lab}_j")
    A.label(lab+"_x")
    first_step(sets[0])
    A.label(lab+"_j")
def xn_operands(dst, mask, mul, n, bsel="v14"):
    A(f"v_mul_u32_u24 v15, 896, {bsel}\nv_lshl_add_u32 v15, {vG}, 3, v15\ns_and_b32 s62, s2, {mask}\ns_mul_i32 s62, s62, {mul}\nv_add_u32 v15, s62, v15")
    for s in range(n): A(f"ds_read_b64 v[{dst+2*s}:{dst+1+2*s}], v15 offset:{32*s}")
def tr128_addr(dst):
    A(f"v_lshrrev_b32 v39, 2, {vN}\nv_lshl_add_u32 v39, {vG}, 2, v39")
    A(f"v_and_b32 v40, 6, v39\nv_bfe_u32 v41, v0, 1, 1\nv_xor_b32 v40, v40, v41")
    A(f"v_lshlrev_b32 v{dst}, 7, v39\nv_lshl_add_u32 v{dst}, v40, 4, v{dst}\nv_lshl_add_u32 v{dst}, v14, 3, v{dst}\nv_add_u32 v{dst}, {TT}, v{dst}")

def mktag():
    A(f"s_add_u32 s30, s30, 0x01010101\nv_mov_b32 {vTAG}, s30")
def lsb_patterns(T, C=None):
    A(f"v_and_b32 v39, 3, v0\nv_lshlrev_b32 v39, 3, v39\nv_lshrrev_b32 v39, v39, {vTAG}")
    for j in range(4):
        A(f"v_bfe_u32 v{T+j}, v39, {2*j}, 1\nv_bfe_u32 v13, v39, {2*j+1}, 1\nv_lshl_or_b32 v{T+j}, v13, 16, v{T+j}")
        if C is not None: A(f"v_xor_b32 v{C+j}, 0x10001, v{T+j}")
def tok_wait(lab, off):
    A(f"s_mul_i32 s62, s31, {SS}\ns_add_u32 s62, s62, {off}\nv_mov_b32 v13, 0")
    spin_init()
    A.label(lab)
    A(f"buffer_load_dword v39, v13, {WS}, s62 offen sc1")
    spin_check()
    A(f"s_waitcnt vmcnt(0)\nv_cmp_ne_u32 vcc, v39, {vTAG}\ns_cbranch_vccnz {lab}")
def tok_send(off, wave):
    tok_send.n += 1
    A(f"s_cmp_lg_u32 s3, {wave}\ns_cbranch_scc1 L_ts{tok_send.n}")
    A(f"s_mul_i32 s62, s31, {SS}\ns_add_u32 s62, s62, {off}\nv_mov_b32 v13, 0\ns_mov_b64 exec, 1")
    A(f"buffer_store_dword {vTAG}, v13, {WS}, s62 offen sc1\ns_mov_b64 exec, -1")
    A.label(f"L_ts{tok_send.n}")
tok_send.n = 0
def tlb_touch():
    A(f"v_and_b32 v13, 7, v0\nv_lshlrev_b32 v13, 21, v13\nv_add_u32 v13, 0x1fff80, v13")
    A(f"buffer_load_dword v254, v13, {WS}, 0 offen")
if STAMPS: A("s_memrealtime s[98:99]")
A(f"s_cmp_ge_u32 s2, 256\ns_cbranch_scc1 L_end0")
A("s_load_dwordx16 s[4:19], s[0:1], 0\ns_load_dwordx8 s[20:27], s[0:1], 64\ns_load_dwordx2 s[28:29], s[0:1], 96")
A(f"v_lshrrev_b32 v4, 6, v0\nv_and_b32 v0, 63, v0\nv_readfirstlane_b32 s3, v4")
A(f"v_and_b32 {vN}, 15, v0\nv_lshrrev_b32 {vG}, 4, v0\nv_and_b32 v14, 1, v0")
if STAMPS: A(f"v_mov_b32 {vST}, 0")
A("s_and_b32 s31, s2, 127")
A("v_lshrrev_b32 v12, 5, v0\nv_and_b32 v11, 31, v0")
A("s_mov_b32 s34, %d\ns_mov_b32 s35, 0x20000\ns_mov_b32 s43, 0x20000" % WSSZ)
def consts():
    A("s_mov_b32 s44, 0x07060500\ns_mov_b32 s45, 0x07060501\ns_mov_b32 s46, 0x07060502\ns_mov_b32 s47, 0x07060503")
    A("s_mov_b32 s48, 0x0c0c0400\ns_mov_b32 s49, 0x04000c0c")
def code_prefetch(lab, mul):
    A("s_getpc_b64 s[50:51]")
    A.label(lab)
    A(f"s_sub_u32 s50, s50, {lab}-{NAME}\ns_subb_u32 s51, s51, 0")
    A(f"s_lshr_b32 s52, s31, 3\ns_mul_i32 s52, s52, {mul}\ns_add_u32 s52, s52, s3\ns_min_u32 s52, s52, {opt['codekb']-1}\ns_lshl_b32 s52, s52, 10")
    A(f"v_lshlrev_b32 v5, 4, v0\nv_add_u32 v4, s52, v5")
    A("global_load_dwordx4 v[250:253], v4, s[50:51]")
A("s_cmp_ge_u32 s2, 128\ns_cbranch_scc1 L_A")

A("v_lshrrev_b32 v7, 3, v0\nv_and_b32 v6, 6, v7\nv_and_b32 v8, 7, v0\nv_xor_b32 v6, v6, v8\nv_lshlrev_b32 v6, 4, v6")
A("s_and_b32 s60, s31, 15\ns_lshr_b32 s61, s31, 4")
A(f"s_lshl_b32 s59, s3, 14\ns_add_u32 s59, s59, {BIG}")
code_prefetch("L_pc1", 4)
A("v_lshl_add_u32 v9, v7, 13, v6\nv_mul_u32_u24 v10, 28, v0")
A("s_and_b32 s53, s2, 1\ns_lshr_b32 s54, s2, 1")
A(f"s_mul_i32 s55, s53, {224*8192}\ns_lshl_b32 s56, s54, 7\ns_add_u32 s55, s55, s56\ns_lshl_b32 s56, s3, 16\ns_add_u32 s55, s55, s56")
A(f"s_lshl_b32 s57, s3, 10\ns_add_u32 s57, s57, {TT}")
A("s_mov_b32 s38, %d\ns_mov_b32 s39, 0x20000" % (448*8192))
A("s_lshl_b32 s58, s61, 7\ns_lshl_b32 s62, s60, 9\ns_lshl_b32 s58, s58, 13\ns_add_u32 s58, s58, s62")
A("s_and_b32 s62, s3, 1\ns_lshl_b32 s62, s62, 16\ns_lshr_b32 s63, s3, 1\ns_lshl_b32 s63, s63, 19\ns_add_u32 s62, s62, s63\ns_add_u32 s56, s58, s62")
A("v_xor_b32 v11, v11, v12\nv_lshlrev_b32 v11, 4, v11\nv_lshl_add_u32 v11, v12, 14, v11")
A("s_mov_b32 s42, %d" % (1024*8192))
A("s_waitcnt lgkmcnt(0)")
A(f"s_cmp_eq_u32 s3, {QW}\ns_cbranch_scc0 L_nx")
A("global_load_dwordx4 v[16:19], v10, s[4:5]\nglobal_load_dwordx3 v[20:22], v10, s[4:5] offset:16")
A.label("L_nx")
A("s_mov_b32 s36, s8\ns_mov_b32 s37, s9")
for i in range(7):
    if i: A(f"s_add_u32 s55, s55, {4*65536}")
    dma("v9", R1, "s55", "s57", i*4096)
if STAMPS: A(f"v_writelane_b32 {vST}, s98, 0")
A("s_load_dword s30, s[28:29], 0\ns_mov_b32 s32, s28\ns_mov_b32 s33, s29\ns_mov_b32 s40, s10\ns_mov_b32 s41, s11")
consts()
A(f"s_cmp_eq_u32 s3, {QW}\ns_cbranch_scc0 L_nln")
A(f"s_waitcnt vmcnt(7)")
stamp(1)
for i in range(7):
    A(f"v_lshlrev_b32 v{24+2*i}, 16, v{16+i}\nv_and_b32 v{25+2*i}, 0xffff0000, v{16+i}")
A("v_add_f32 v40, v24, v25\nv_add_f32 v41, v26, v27")
for i in range(4, 14, 2): A(f"v_add_f32 v40, v40, v{24+i}\nv_add_f32 v41, v41, v{25+i}")
A("v_add_f32 v40, v40, v41")
row_red(40); swap_red(40, 41, 16)
A(f"v_mul_f32 v40, {hex(f2u(1.0/448))}, v40")
A("v_sub_f32 v42, v24, v40\nv_sub_f32 v43, v25, v40\nv_mul_f32 v44, v42, v42\nv_mul_f32 v45, v43, v43")
for i in range(2, 14, 2):
    A(f"v_sub_f32 v42, v{24+i}, v40\nv_sub_f32 v43, v{25+i}, v40\nv_fmac_f32 v44, v42, v42\nv_fmac_f32 v45, v43, v43")
A("v_add_f32 v44, v44, v45")
row_red(44); swap_red(44, 45, 16)
A(f"v_mul_f32 v44, {hex(f2u(1.0/448))}, v44")
bf16r(40, 40); bf16r(44, 44)
A(f"v_add_f32 v44, {hex(f2u(1e-5))}, v44"); bf16r(44, 44)
A("v_sqrt_f32 v44, v44"); bf16r(44, 44)
A("v_rcp_f32 v44, v44")
for i in range(7):
    A(f"v_sub_f32 v42, v{24+2*i}, v40\nv_sub_f32 v43, v{25+2*i}, v40\nv_cvt_pk_bf16_f32 v42, v42, v43")
    A(f"v_and_b32 v43, 0xffff0000, v42\nv_lshlrev_b32 v42, 16, v42\nv_mul_f32 v42, v42, v44\nv_mul_f32 v43, v43, v44\nv_cvt_pk_bf16_f32 v{16+i}, v42, v43")
for i in range(3): A(f"ds_write2_b32 v10, v{16+2*i}, v{17+2*i} offset0:{2*i} offset1:{2*i+1}")
A("ds_write_b32 v10, v22 offset:24")
A.label("L_nln")
WD0 = opt["wd0"]
def wuk_dma(i):
    if opt["wdepth"] and i >= max(opt["wdepth"], WD0): A(f"s_waitcnt vmcnt({opt['wdepth']-1})")
    A(f"v_xor_b32 v13, {2*(i&7)*16}, v11")
    A(f"s_add_u32 s62, s56, {(16*((i&7)>>1)+4*(i&1)+(i>>3))*8192}")
    dma("v13", R2, "s62", "s59", i*1024)
for i in range(WD0):
    if i == WD0 - 1:
        A("s_waitcnt lgkmcnt(0)")
        mktag()
    wuk_dma(i)
tr128_addr(44)
A("s_lshl_b32 s62, s3, 5\nv_xor_b32 v44, s62, v44")
A("v_bfe_u32 v45, v0, 2, 1\nv_and_b32 v46, 3, v0\nv_or_b32 v46, 0x07060500, v46")
A(f"s_mul_i32 s63, s31, {SS}\ns_lshl_b32 s62, s3, 6\ns_add_u32 s63, s63, s62\ns_add_u32 s63, s63, {QP}")
A(f"v_lshlrev_b32 v40, 8, {vG}\nv_lshl_add_u32 v40, {vN}, 2, v40")
if opt["tlb"]: tlb_touch()
A(f"s_waitcnt vmcnt({WD0+opt['tlb']})\ns_barrier")
stamp(2)
xn_operands(96, 1, 448, 14, "v45")
for s in range(14): A(f"ds_read_b64_tr_b16 v[{64+2*s}:{65+2*s}], v44 offset:{2048*s}")
for s in range(7):
    A(f"s_waitcnt lgkmcnt({12-2*s})")
    A(f"v_mfma_f32_16x16x32_bf16 v[128:131], v[{96+4*s}:{99+4*s}], v[{64+4*s}:{67+4*s}], {'0' if s==0 else 'v[128:131]'}")
A(f"v_perm_b32 v48, v128, {vTAG}, v46")
A("s_mov_b32 exec_hi, 0")
A(f"buffer_store_dword v48, v40, {WS}, s63 offen sc1")
A("s_mov_b64 exec, -1")
stamp(3)
for i in range(WD0, 16): wuk_dma(i)
A(f"v_and_b32 v40, 31, v0\nv_lshlrev_b32 v40, 4, v40\nv_mul_u32_u24 v41, {SS}, v12\nv_add_u32 v40, v40, v41")
A(f"s_lshl_b32 s63, s60, 2\ns_add_u32 s63, s63, s3\ns_mul_i32 s63, s63, {2*SS}\ns_add_u32 s63, s63, {QP}")
A(f"buffer_load_dwordx4 v[44:47], v40, {WS}, s63 offen sc1")
A(f"v_xor_b32 v41, {vG}, {vN}\nv_lshlrev_b32 v41, 4, v41\nv_lshl_add_u32 v41, {vN}, 9, v41\nv_add_u32 v41, s59, v41")
A("v_xor_b32 v42, 64, v41\nv_xor_b32 v43, 128, v41\nv_xor_b32 v52, 192, v41")
adr = [41, 42, 43, 52]
A(f"v_and_b32 v56, 1, {vG}\nv_lshlrev_b32 v56, 9, v56\nv_lshl_add_u32 v56, {vN}, 3, v56\nv_lshl_add_u32 v56, v12, 2, v56")
A(f"s_lshl_b32 s62, s3, 7\ns_add_u32 s62, s62, {EX}\nv_add_u32 v56, s62, v56")
A(f"v_bfe_u32 v57, v0, 2, 1\nv_lshlrev_b32 v57, 9, v57\nv_lshl_add_u32 v57, {vG}, 4, v57")
A(f"v_lshlrev_b32 v58, 8, {vG}\nv_lshl_add_u32 v58, {vN}, 2, v58")
A(f"s_mul_i32 s64, s31, {SS}\ns_lshl_b32 s62, s3, 6\ns_add_u32 s64, s64, s62\ns_add_u32 s64, s64, {QA}")
for t in range(2):
    A(f"s_waitcnt vmcnt({9-8*t})")
    for s in range(8): A(f"ds_read_b128 a[{32*t+4*s}:{32*t+4*s+3}], v{adr[s&3]} offset:{t*8192+(s>>2)*256}")
spin_init()
A.label("L_wq")
A("s_waitcnt vmcnt(0)")
tag_check_acc(44, 53, 54, True, 55)
A("v_cmp_ne_u32 vcc, 0, v55\ns_cbranch_vccz L_wq_ok")
spin_check()
A(f"buffer_load_dwordx4 v[44:47], v40, {WS}, s63 offen sc1")
A("s_branch L_wq")
A.label("L_wq_ok")
stamp(4)
A("v_permlane32_swap_b32 v44, v46\nv_permlane32_swap_b32 v45, v47\nv_add_f32 v44, v44, v46\nv_add_f32 v45, v45, v47")
A("v_cvt_pk_bf16_f32 v44, v44, v45\nds_write_b32 v56, v44")
A("s_waitcnt lgkmcnt(0)\ns_barrier")
for s in range(8): A(f"ds_read_b128 v[{64+4*s}:{67+4*s}], v57 offset:{EX+64*s}")
for s in range(8):
    A(f"s_waitcnt lgkmcnt({7-s})")
    for t in range(2):
        A(f"v_mfma_f32_16x16x32_bf16 v[{96+4*t}:{99+4*t}], v[{64+4*s}:{67+4*s}], a[{32*t+4*s}:{32*t+4*s+3}], {'0' if s==0 else f'v[{96+4*t}:{99+4*t}]'}")
A("v_mul_f32 v96, 0x3d800000, v96\nv_mul_f32 v100, 0x3d800000, v100\nv_cvt_pk_bf16_f32 v48, v96, v100")
A("s_mov_b32 exec_hi, 0")
A(f"buffer_store_dword v48, v58, {WS}, s64 offen sc1")
A("s_mov_b64 exec, -1\ns_waitcnt vmcnt(0)\ns_barrier")
tok_send(QAF, 0)
stamp(5)
if opt["tokpos"] >= 0:
    tok_wait("L_tok", TOK)
    stamp(13)
A("s_cmp_ge_u32 s31, 112\ns_cbranch_scc1 L_wuv")
A("s_cmp_ge_u32 s3, 2\ns_cselect_b32 s36, s20, s18\ns_cselect_b32 s37, s21, s19")
A(f"s_mov_b32 s38, {448*3584}\ns_mov_b32 s39, 0x20000")
A("v_mul_u32_u24 v9, 3584, v7\nv_add_u32 v9, v9, v6")
A(f"s_and_b32 s53, s2, 3\ns_mul_i32 s55, s53, {112*3584}\ns_lshr_b32 s56, s31, 2\ns_lshl_b32 s62, s56, 7\ns_add_u32 s55, s55, s62")
A(f"s_and_b32 s62, s3, 1\ns_mul_i32 s62, s62, {7*8*3584}\ns_add_u32 s55, s55, s62")
A(f"s_mul_i32 s57, s3, 7168\ns_add_u32 s57, s57, {TT}")
for i in range(7):
    if i >= opt["thr_g"]: A(f"s_waitcnt vmcnt({opt['thr_g']-1})")
    if i: A(f"s_add_u32 s55, s55, {8*3584}")
    dma("v9", R1, "s55", "s57", i*1024)
A.label("L_wuv")
srd(R2, 12, 1024*8192)
A("v_and_b32 v8, 7, v0\nv_lshlrev_b32 v8, 4, v8\nv_lshl_add_u32 v11, v7, 13, v8")
A("s_lshl_b32 s58, s61, 20\ns_lshl_b32 s62, s60, 9\ns_add_u32 s58, s58, s62\ns_lshl_b32 s62, s3, 7\ns_add_u32 s58, s58, s62")
A("s_add_u32 s59, s59, 65536")
for i in range(16):
    if opt["w2depth"]: A(f"s_waitcnt vmcnt({opt['w2depth']-1})")
    A(f"v_xor_b32 v13, {2*((i>>1)&3)*16}, v11")
    A(f"s_add_u32 s62, s58, {i*65536}")
    dma("v13", R2, "s62", "s59", i*1024)
A(f"v_mul_u32_u24 v39, 448, v14\nv_bfe_u32 v40, v0, 1, 1\nv_lshl_add_u32 v39, v40, 4, v39\nv_bfe_u32 v40, v0, 2, 1\nv_lshl_add_u32 v39, v40, 2, v39\nv_add_u32 v39, v39, {vG}")
A("s_min_u32 s62, s31, 27\ns_lshr_b32 s63, s62, 1\ns_lshl_b32 s63, s63, 5\ns_and_b32 s62, s62, 1\ns_lshl_b32 s62, s62, 3\ns_add_u32 s62, s62, s63\nv_add_u32 v39, s62, v39\nv_lshlrev_b32 v200, 1, v39")
A("global_load_ushort v201, v200, s[4:5]\nglobal_load_ushort v202, v200, s[24:25]")
A("s_cmp_ge_u32 s31, 112\ns_cbranch_scc1 L_wuv2")
xn_operands(24, 3, 224, 7)
tr128_addr(38)
A("s_lshl_b32 s62, s3, 5\nv_xor_b32 v38, s62, v38")
A(f"v_lshlrev_b32 v40, 6, {vG}\nv_lshl_add_u32 v40, {vN}, 4, v40")
A(f"s_lshl_b32 s62, s56, 2\ns_add_u32 s62, s62, s3\ns_mul_i32 s62, s62, {SS}\ns_lshl_b32 s63, s53, 8\ns_add_u32 s62, s62, s63\ns_add_u32 s62, s62, {HP}")
A("s_waitcnt vmcnt(18) lgkmcnt(0)\ns_barrier")
for mat in range(2):
    for s in range(7): A(f"ds_read_b64_tr_b16 v[{64+14*mat+2*s}:{65+14*mat+2*s}], v38 offset:{14336*mat+2048*s}")
for mat in range(2):
    for s in range(7):
        A(f"s_waitcnt lgkmcnt({13-7*mat-s})")
        A(f"v_mfma_f32_16x16x16_bf16 v[{96+4*mat}:{99+4*mat}], v[{64+14*mat+2*s}:{65+14*mat+2*s}], v[{24+2*s}:{25+2*s}], {'0' if s==0 else f'v[{96+4*mat}:{99+4*mat}]'}")
tag_insert(48, 96)
setexec16(0xc); tag_insert(48, 100); setexec16(0xf)
A(f"buffer_store_dwordx4 v[48:51], v40, {WS}, s62 offen sc1")
A("s_mov_b64 exec, -1")
A.flush()
A.label("L_wuv2")
stamp(6)
A(f"v_lshrrev_b32 v39, 2, {vN}\nv_lshl_add_u32 v40, v39, 4, {vG}\nv_lshlrev_b32 v40, 7, v40")
A(f"v_lshlrev_b32 v39, 1, v39\nv_bfe_u32 v41, v0, 1, 1\nv_xor_b32 v39, v39, v41\nv_lshl_add_u32 v40, v39, 4, v40\nv_lshl_add_u32 v40, v14, 3, v40\nv_add_u32 v41, s59, v40")
A("v_xor_b32 v42, 32, v41\nv_xor_b32 v43, 64, v41\nv_xor_b32 v52, 96, v41")
lsb_patterns(24)
A("s_waitcnt vmcnt(0)")
for t in range(4):
    for s in range(4):
        for z in range(2):
            b = 64+16*t+4*s+2*z
            A(f"ds_read_b64_tr_b16 a[{b}:{b+1}], v{adr[t]} offset:{s*512+z*8192}")
RED = BIG; MLB = BIG + 4096
A(f"v_lshlrev_b32 v40, 4, v0\nv_and_b32 v41, 31, v0\nv_mul_u32_u24 v41, {SS}, v41")
A(f"s_mul_i32 s97, s3, {32*SS}\ns_lshl_b32 s62, s60, 4\ns_add_u32 s97, s97, s62\ns_add_u32 s97, s97, {STAT}")
A(f"s_lshl_b32 s56, s31, 15\ns_lshl_b32 s57, s3, 13\ns_add_u32 s56, s56, s57\ns_add_u32 s56, s56, {LAT}\ns_add_u32 s57, s56, 4096")
A(f"v_lshlrev_b32 v61, 2, {vG}")
A(f"v_and_b32 v62, 3, v0\nv_lshlrev_b32 v62, 4, v62\nv_and_b32 v55, 12, v0\nv_add3_u32 v62, v62, v55, {vG}\nv_lshlrev_b32 v62, 4, v62")
A(f"s_lshl_b32 s62, s3, 10\ns_add_u32 s62, s62, {RED}\nv_add_u32 v62, s62, v62")
A(f"v_lshlrev_b32 v58, 5, v14\ns_lshl_b32 s62, s3, 3\nv_add_u32 v59, s62, v58")
A(f"v_lshlrev_b32 v60, 6, {vG}\nv_lshl_add_u32 v60, {vN}, 4, v60")
A(f"s_lshl_b32 s58, s60, 3\ns_lshl_b32 s63, s3, 1\ns_add_u32 s58, s58, s63\ns_mul_i32 s58, s58, {SS}\ns_lshl_b32 s63, s61, 8\ns_add_u32 s58, s58, s63\ns_add_u32 s58, s58, {CTXP}\ns_add_u32 s65, s58, {SS}")
stamp(7)
pipe_poll("L_wl", [("v41", "s97", 0)], [28, 32], lambda b: A(f"v_mov_b32 v44, v{b}\nv_mov_b32 v45, v{b+1}"), word2=True)
def lat_loads():
    for i in range(8): A(f"buffer_load_dwordx4 v[{64+4*i}:{67+4*i}], v40, {WS}, {'s56' if i<4 else 's57'} offen offset:{(i&3)*1024} sc1")
lat_loads()
stamp(8)
A("v_mov_b32 v46, v44")
row_red(46, "v_max_f32", (8,4,2)); swap_red(46, 55, 16, "v_max_f32")
A("v_sub_f32 v44, v44, v46\nv_exp_f32 v44, v44")
for i in range(8): A(f"ds_bpermute_b32 v{100+i}, v61, v44 offset:{16*i}")
A("v_mul_f32 v47, v45, v44")
row_red(47, "v_add_f32", (8,4,2)); swap_red(47, 55, 16)
A(f"ds_write_b64 v59, v[46:47] offset:{MLB}")
A("s_waitcnt lgkmcnt(1)")
A.label("L_wlr")
for i in range(8):
    A(f"s_waitcnt vmcnt({7-i})")
    for jj in range(4):
        d = 64+4*i+jj
        A(f"v_lshlrev_b32 v56, 16, v{d}\nv_and_b32 v57, 0xffff0000, v{d}")
        if i == 0 and jj == 0: A(f"v_xor_b32 v55, v{d}, v24")
        else: A(f"v_bitop3_b32 v55, v{d}, v{24+jj}, v55 bitop3:0xbe")
        if i == 0: A(f"v_mul_f32 v{110+2*jj}, v56, v100\nv_mul_f32 v{111+2*jj}, v57, v100")
        else: A(f"v_fmac_f32 v{110+2*jj}, v56, v{100+i}\nv_fmac_f32 v{111+2*jj}, v57, v{100+i}")
A("v_and_b32 v55, 0x10001, v55\nv_cmp_ne_u32 vcc, 0, v55\ns_cbranch_vccz L_wlk")
lat_loads()
spin_check()
if STAMPS: A(f"s_sub_u32 s62, 400000, s96\nv_writelane_b32 {vST}, s62, 14")
A("s_branch L_wlr")
A.label("L_wlk")
for e in range(4): A(f"v_permlane32_swap_b32 v{110+e}, v{114+e}")
for e in range(4): A(f"v_add_f32 v{120+e}, v{110+e}, v{114+e}")
A("ds_write_b128 v62, v[120:123]")
A(f"s_waitcnt lgkmcnt(0)\ns_barrier")
stamp(9)
A(f"ds_read_b128 v[44:47], v58 offset:{MLB}\nds_read_b128 v[48:51], v58 offset:{MLB+16}")
for v in range(4): A(f"ds_read_b128 v[{64+4*v}:{67+4*v}], v40 offset:{RED+1024*v}")
A("s_waitcnt lgkmcnt(4)")
A("v_max3_f32 v55, v44, v46, v48\nv_max_f32 v55, v55, v50")
for v in range(4): A(f"v_sub_f32 v{44+2*v}, v{44+2*v}, v55")
for v in range(4): A(f"v_exp_f32 v{44+2*v}, v{44+2*v}")
A("v_mul_f32 v55, v44, v45\nv_fmac_f32 v55, v46, v47\nv_fmac_f32 v55, v48, v49\nv_fmac_f32 v55, v50, v51\nv_rcp_f32 v55, v55")
A("s_waitcnt lgkmcnt(0)")
for e in range(4): A(f"v_mul_f32 v{64+e}, v{64+e}, v44")
for v in range(1, 4):
    for e in range(4): A(f"v_fmac_f32 v{64+e}, v{64+4*v+e}, v{44+2*v}")
for e in range(4): A(f"v_mul_f32 v{64+e}, v{64+e}, v55")
A("v_cvt_pk_bf16_f32 v78, v64, v65\nv_cvt_pk_bf16_f32 v79, v66, v67")
A(f"v_mov_b32_dpp v80, v78 quad_perm:[0,1,0,1] {DPPM}\nv_mov_b32_dpp v81, v79 quad_perm:[0,1,0,1] {DPPM}")
A(f"v_mov_b32_dpp v82, v78 quad_perm:[2,3,2,3] {DPPM}\nv_mov_b32_dpp v83, v79 quad_perm:[2,3,2,3] {DPPM}")
for s in range(1, 4):
    for k in range(4): A(f"v_mov_b32_dpp v{80+4*s+k}, v{80+k} row_shl:{4*s} {DPPM}")
for s in range(4):
    for t in range(4):
        A(f"v_mfma_f32_16x16x32_bf16 v[{100+4*t}:{103+4*t}], a[{64+16*t+4*s}:{67+16*t+4*s}], v[{80+4*s}:{83+4*s}], {'0' if s==0 else f'v[{100+4*t}:{103+4*t}]'}")
tag_insert(64, 100); tag_insert(68, 108)
setexec16(0xc); tag_insert(64, 104); tag_insert(68, 112); setexec16(0xf)
A(f"buffer_store_dwordx4 v[64:67], v60, {WS}, s58 offen sc1\nbuffer_store_dwordx4 v[68:71], v60, {WS}, s65 offen sc1")
A("s_mov_b64 exec, -1")
stamp(10)
A("s_cmp_ge_u32 s31, 28\ns_cbranch_scc1 L_end")
FR = BIG + 8192
def fin_tail(ldsoff):
    for r in range(4): A(f"v_add_f32 v{72+r}, v{72+r}, v{76+r}")
    for r in range(4): A(f"v_add_f32_dpp v{72+r}, v{72+r}, v{72+r} row_ror:8 {DPPM}")
    A("v_permlane32_swap_b32 v72, v74\nv_permlane32_swap_b32 v73, v75\nv_add_f32 v72, v72, v74\nv_add_f32 v73, v73, v75")
    A("v_permlane16_swap_b32 v72, v73\nv_add_f32 v72, v72, v73")
    A(f"ds_write_b32 v56, v72 offset:{ldsoff}")
A(f"v_lshlrev_b32 v57, 2, v0\ns_lshl_b32 s62, s3, 8\nv_add_u32 v56, s62, v57")
A(f"s_mul_i32 s62, s31, {FS}\ns_lshl_b32 s63, s3, 12\ns_add_u32 s64, s62, s63\ns_add_u32 s62, s64, {YP}\ns_add_u32 s64, s64, {OUTP}")
for r in range(8): A(f"v_mov_b32 v{88+r}, 0")
spin_init()
A.label("L_fy")
for i in range(2): A(f"buffer_load_dwordx4 v[{80+4*i}:{83+4*i}], v40, {WS}, s62 offen offset:{1024*i} sc1")
A("v_mov_b32 v55, 0\ns_cmp_eq_u32 s3, 3\ns_cbranch_scc1 L_fy_s")
for i in range(2, 4): A(f"buffer_load_dwordx4 v[{80+4*i}:{83+4*i}], v40, {WS}, s62 offen offset:{1024*i} sc1")
A("s_waitcnt vmcnt(0)")
tag_check_acc(88, 53, 54, True, 55); tag_check_acc(92, 53, 54, False, 55)
A.label("L_fy_s")
A("s_waitcnt vmcnt(0)")
tag_check_acc(80, 53, 54, False, 55); tag_check_acc(84, 53, 54, False, 55)
A(f"v_cmp_ne_u32 vcc, 0, v55")
spin_check()
A(f"s_cbranch_vccnz L_fy")
def fin_first(b):
    for r in range(4): A(f"v_add_f32 v{72+r}, v{b+r}, v{b+4+r}\nv_add_f32 v{76+r}, v{b+8+r}, v{b+12+r}")
fin_first(80); fin_tail(FR)
stamp(11)
pipe_poll("L_fo", [("v40", "s64", 1024*i) for i in range(4)], [80, 96], fin_first)
fin_tail(FR+1024)
A("s_waitcnt lgkmcnt(0)\ns_barrier")
stamp(12)
A("s_cmp_lg_u32 s3, 0\ns_cbranch_scc1 L_end")
for v in range(4): A(f"ds_read_b32 v{64+v}, v57 offset:{FR+256*v}\nds_read_b32 v{68+v}, v57 offset:{FR+1024+256*v}")
srd(R1, 24, 896*2)
A("s_waitcnt lgkmcnt(0)")
A("v_add_f32 v64, v64, v65\nv_add_f32 v66, v66, v67\nv_add_f32 v68, v68, v69\nv_add_f32 v70, v70, v71\nv_add_f32 v64, v64, v66\nv_add_f32 v68, v68, v70")
bf16r(64, 64); bf16r(68, 68)
A(f"v_mul_f32 v65, {hex(f2u(-1.4426950408889634))}, v64\nv_exp_f32 v65, v65\nv_add_f32 v65, 1.0, v65\nv_rcp_f32 v65, v65\nv_mul_f32 v65, v65, v64")
bf16r(65, 65)
A("v_mul_f32 v65, v65, v68")
if opt["eps"]: A(f"v_mul_f32 v65, {hex(f2u(1+opt['eps']/1000))}, v65")
bf16r(65, 65)
A("v_lshlrev_b32 v201, 16, v201\nv_add_f32 v65, v65, v201\nv_cvt_pk_bf16_f32 v65, v65, v65")
setexec16(0xff)
A(f"buffer_store_short v65, v200, {R1}, 0 offen")
A("s_cmp_lg_u32 s31, 0\ns_cbranch_scc1 L_end")
A(f"s_mov_b64 exec, 1\nv_mov_b32 v64, 0\nbuffer_store_dword {vTAG}, v64, {WS}, 0 offen")
A("s_branch L_end")

A.label("L_A")
A.hist = []
code_prefetch("L_pc2", 4)
A("s_and_b32 s60, s31, 1\ns_lshr_b32 s61, s31, 1")
A("s_lshl_b32 s58, s60, 23\ns_lshl_b32 s62, s61, 17\ns_add_u32 s58, s58, s62\ns_lshl_b32 s62, s3, 9\ns_add_u32 s58, s58, s62")
A(f"s_lshl_b32 s59, s3, 15\ns_add_u32 s59, s59, {BIG}")
A("v_lshlrev_b32 v13, 1, v12\nv_xor_b32 v11, v11, v13\nv_lshlrev_b32 v11, 4, v11\nv_lshl_add_u32 v11, v12, 11, v11")
A("s_mov_b32 s42, %d" % (2*4096*2048))
A("s_waitcnt lgkmcnt(0)")
if STAMPS: A(f"v_writelane_b32 {vST}, s98, 0")
A("s_mov_b32 s40, s6\ns_mov_b32 s41, s7")
def ckv_dma(i):
    ii = i & 7; cst = 4*(ii&3) + (ii>>2)
    if opt["adepth"] and opt["adepth"] <= i < opt["athr"]: A(f"s_waitcnt vmcnt({opt['adepth']-1})")
    elif opt["adepth2"] and i >= opt["adepth2"]: A(f"s_waitcnt vmcnt({opt['adepth2']-1})")
    A(f"v_xor_b32 v13, {cst*16}, v11")
    A(f"s_add_u32 s62, s58, {i*4096}")
    dma("v13", R2, "s62", "s59", i*1024)
AP = opt["apre"]
for i in range(AP): ckv_dma(i)
A("s_load_dword s30, s[28:29], 0\ns_mov_b32 s32, s28\ns_mov_b32 s33, s29")
if opt["tlb"]: tlb_touch()
for i in range(AP, 16): ckv_dma(i)
consts()
A(f"v_and_b32 v40, 7, v0\nv_lshlrev_b32 v40, 1, v40\nv_bfe_u32 v41, v0, 3, 1\nv_or_b32 v40, v40, v41")
A(f"v_lshlrev_b32 v41, 1, {vG}\nv_xor_b32 v40, v40, v41\nv_lshlrev_b32 v40, 4, v40\nv_lshl_add_u32 v40, {vN}, 9, v40\nv_add_u32 v44, s59, v40")
A("v_xor_b32 v45, 16, v44\nv_xor_b32 v46, 128, v44\nv_xor_b32 v47, 144, v44")
A(f"v_lshrrev_b32 v40, 2, {vN}\nv_lshl_add_u32 v40, {vG}, 2, v40")
A("v_and_b32 v41, 7, v40\nv_lshlrev_b32 v41, 1, v41\nv_lshrrev_b32 v42, 3, v40\nv_or_b32 v41, v41, v42\nv_bfe_u32 v42, v0, 1, 1\nv_xor_b32 v41, v41, v42")
A("v_lshlrev_b32 v40, 9, v40\nv_lshl_add_u32 v40, v41, 4, v40\nv_lshl_add_u32 v40, v14, 3, v40\nv_add_u32 v16, s59, v40")
for t in range(1, 8): A(f"v_xor_b32 v{16+t}, {32*t}, v16")
A("s_waitcnt lgkmcnt(0)")
mktag()
lsb_patterns(24, 28)
A(f"v_and_b32 v32, 31, v0\nv_mul_u32_u24 v32, {SS}, v32\ns_mul_i32 s70, s3, {32*SS}\ns_add_u32 s70, s70, {QAF}")
def stage_tile(T):
    for s in range(8):
        A(f"ds_read_b128 a[{32*T+4*s}:{32*T+4*s+3}], v{44+(s&3)} offset:{T*8192+(s>>2)*256}")
    u, z = T >> 1, T & 1
    for t in range(16):
        b = 128 + 8*t + 4*u + 2*z
        A(f"ds_read_b64_tr_b16 a[{b}:{b+1}], v{16+(t&7)} offset:{T*8192+(t>>3)*256}")
def flag_load(): A(f"buffer_load_dword v33, v32, {WS}, s70 offen sc1")
for T in range(2):
    for i in range(16+8*T, 24+8*T):
        ckv_dma(i)
        if i == opt["fpos"]: flag_load()
        if i == opt["tokpos"]: tok_send(TOK, 3)
    A("s_waitcnt vmcnt(16)")
    stage_tile(T)
stamp(4)
A(f"v_mul_u32_u24 v40, {SS}, {vN}\nv_lshl_add_u32 v40, {vG}, 4, v40")
A(f"s_lshl_b32 s62, s60, 8\ns_mul_i32 s63, s3, {32*SS}\ns_add_u32 s62, s62, s63\ns_add_u32 s62, s62, {QA}\ns_add_u32 s63, s62, {16*SS}")
WO, WD = TT, BIG + 69632
srd(R1, 14, 16*256*896)
A(f"s_mul_i32 s56, s31, 28672\ns_mul_i32 s57, s3, 7168\ns_add_u32 s56, s56, s57\ns_add_u32 s57, s57, {WO}")
def qa_loads():
    for s in range(8): A(f"buffer_load_dwordx4 v[{64+4*s}:{67+4*s}], v40, {WS}, {'s62' if s<4 else 's63'} offen offset:{(s&3)*64} sc1")
A(f"s_waitcnt vmcnt({31-opt['fpos']})")
A(f"v_cmp_ne_u32 vcc, v33, {vTAG}\ns_cbranch_vccnz L_aq1")
qa_loads()
A("s_waitcnt vmcnt(16)"); stage_tile(2)
A("s_waitcnt vmcnt(8)"); stage_tile(3)
A("s_branch L_aqj")
A.label("L_aq1")
flag_load()
A("s_waitcnt vmcnt(9)"); stage_tile(2)
A("s_waitcnt vmcnt(1)"); stage_tile(3)
stamp(5)
spin_init()
A.label("L_aq")
A(f"s_waitcnt vmcnt(0)\nv_cmp_ne_u32 vcc, v33, {vTAG}\ns_cbranch_vccz L_aq2")
flag_load()
spin_check()
A("s_branch L_aq")
A.label("L_aq2")
qa_loads()
A.label("L_aqj")
A(f"v_lshlrev_b32 v40, 4, v0")
def wo_dmas():
    for i in range(7):
        if i: A("s_add_u32 s56, s56, 1024")
        dma("v40", R1, "s56", "s57", 1024*i)
EW = 0
A(f"v_add_u32 v41, s59, v40")
A(f"s_lshl_b32 s64, s3, 10\ns_add_u32 s64, s64, {BIG}\nv_add_u32 v42, s64, v40")
A(f"v_add_u32 v43, 0x10000, v42")
A(f"v_lshlrev_b32 v56, 5, v0\ns_lshl_b32 s64, s3, 3\nv_add_u32 v57, s64, v56")
A(f"v_lshlrev_b32 v58, 4, {vN}\ns_lshl_b32 s64, s3, 2\nv_add_u32 v59, s64, v58")
A("v_mov_b32 v60, 0x3f803f80\nv_mov_b32 v61, v60\nv_mov_b32 v62, v60\nv_mov_b32 v63, v60")
A(f"v_lshlrev_b32 v36, 17, {vG}\nv_lshl_add_u32 v36, {vN}, 4, v36")
A(f"s_lshl_b32 s64, s3, 20\ns_lshl_b32 s63, s31, 8\ns_add_u32 s64, s64, s63\ns_add_u32 s64, s64, {LAT}\ns_mul_i32 s66, s31, {SS}\ns_add_u32 s66, s66, {STAT}")
A("s_mov_b32 s65, 0xfffefffe\ns_mov_b32 s67, 0x07060302")
A("s_cmp_eq_u32 s3, 3\ns_cselect_b32 s68, 0xffff, 0")
A("s_waitcnt lgkmcnt(0)")
stamp(6)
for s in range(8):
    A(f"s_waitcnt vmcnt({7-s+EW})")
    for T in range(4):
        A(f"v_mfma_f32_16x16x32_bf16 v[{96+4*T}:{99+4*T}], a[{32*T+4*s}:{32*T+4*s+3}], v[{64+4*s}:{67+4*s}], {'0' if s==0 else f'v[{96+4*T}:{99+4*T}]'}")
for T in range(4): A(f"ds_write_b128 v41, v[{96+4*T}:{99+4*T}] offset:{1024*T}")
A("s_waitcnt lgkmcnt(0)\ns_barrier")
stamp(7)
A("ds_read_b128 v[64:67], v42\nds_read_b128 v[68:71], v42 offset:32768\nds_read_b128 v[72:75], v43\nds_read_b128 v[76:79], v43 offset:32768")
A("s_waitcnt lgkmcnt(2)")
for r in range(4): A(f"v_add_f32 v{64+r}, v{64+r}, v{68+r}")
A("s_waitcnt lgkmcnt(0)")
for r in range(4): A(f"v_add_f32 v{72+r}, v{72+r}, v{76+r}")
for r in range(4): A(f"v_add_f32 v{64+r}, v{64+r}, v{72+r}")
if opt["round_s"]:
    A("v_cvt_pk_bf16_f32 v68, v64, v65\nv_cvt_pk_bf16_f32 v69, v66, v67")
    A("v_lshlrev_b32 v64, 16, v68\nv_and_b32 v65, 0xffff0000, v68\nv_lshlrev_b32 v66, 16, v69\nv_and_b32 v67, 0xffff0000, v69")
for r in range(4): A(f"v_mul_f32 v{64+r}, {hex(f2u(1.4426950408889634))}, v{64+r}")
A("v_max3_f32 v68, v64, v65, v66\nv_max_f32 v68, v68, v67")
swap_red(68, 69, 16, "v_max_f32"); swap_red(68, 69, 32, "v_max_f32")
A("v_ceil_f32 v68, v68")
for r in range(4): A(f"v_sub_f32 v{64+r}, v{64+r}, v68")
for r in range(4): A(f"v_exp_f32 v{64+r}, v{64+r}")
A(f"ds_write_b32 v59, v68 offset:{EX+2048}")
A("v_cvt_pk_bf16_f32 v64, v64, v65\nv_cvt_pk_bf16_f32 v65, v66, v67")
A(f"ds_write_b64 v57, v[64:65] offset:{EX}")
A("s_waitcnt lgkmcnt(0)\ns_barrier")
A(f"ds_read_b128 v[72:75], v58 offset:{EX+2048}\nds_read_b128 v[64:67], v56 offset:{EX}\nds_read_b128 v[68:71], v56 offset:{EX+16}")
A("s_waitcnt lgkmcnt(2)")
A("v_max3_f32 v76, v72, v73, v74\nv_max_f32 v76, v76, v75")
for T in range(4):
    A(f"v_sub_f32 v{72+T}, v76, v{72+T}\nv_min_f32 v{72+T}, 0x437f0000, v{72+T}\nv_cvt_u32_f32 v{72+T}, v{72+T}\nv_mul_u32_u24 v{72+T}, 0x800080, v{72+T}")
A("s_waitcnt lgkmcnt(0)")
for T in range(4):
    for k in range(2): A(f"v_pk_sub_u16 v{64+2*T+k}, v{64+2*T+k}, v{72+T} clamp")
stamp(8)
ACC = 128
def pv(t):
    for u in range(2):
        A(f"v_mfma_f32_16x16x32_bf16 v[{ACC+4*t}:{ACC+4*t+3}], v[{64+4*u}:{67+4*u}], a[{128+8*t+4*u}:{131+8*t+4*u}], {'0' if u==0 else f'v[{ACC+4*t}:{ACC+4*t+3}]'}")
def latpack(half, r, jj):
    d = 96 + 16*half + 4*r + jj; t0 = 8*half + 2*jj
    return [f"v_perm_b32 v{d}, v{ACC+4*(t0+1)+r}, v{ACC+4*t0+r}, s67", f"v_pk_add_u16 v{d}, v{d}, v{28+jj}", f"v_and_or_b32 v{d}, v{d}, s65, v{24+jj}"]
def latstore(half, r):
    d = 96 + 16*half + 4*r
    return [f"s_add_u32 s63, s64, {half*524288+r*32768}", f"buffer_store_dwordx4 v[{d}:{d+3}], v36, {WS}, s63 offen sc1"]
def statstore():
    A(f"s_mov_b32 exec_lo, s68\ns_mov_b32 exec_hi, 0\ns_cbranch_execz L_st{statstore.n}")
    A(f"buffer_store_dwordx4 v[76:79], v40, {WS}, s66 offen sc1")
    A.label(f"L_st{statstore.n}")
    A("s_mov_b64 exec, -1")
statstore.n = 0
for u in range(2): A(f"v_mfma_f32_16x16x32_bf16 v[80:83], v[60:63], v[{64+4*u}:{67+4*u}], {'0' if u==0 else 'v[80:83]'}")
for t in range(8): pv(t)
A(f"v_mov_b32 v77, v80\nv_mov_b32 v78, {vTAG}\nv_mov_b32 v79, {vTAG}")
if opt["statpos"] == 0: statstore()
fill = []
for r in range(4):
    for jj in range(4): fill += latpack(0, r, jj)
    fill += latstore(0, r)
pv(8)
mf = [(t, u) for t in range(9, 16) for u in range(2)]
per = -(-len(fill) // len(mf))
for k, (t, u) in enumerate(mf):
    A(f"v_mfma_f32_16x16x32_bf16 v[{ACC+4*t}:{ACC+4*t+3}], v[{64+4*u}:{67+4*u}], a[{128+8*t+4*u}:{131+8*t+4*u}], {'0' if u==0 else f'v[{ACC+4*t}:{ACC+4*t+3}]'}")
    for x in fill[k*per:(k+1)*per]: A(x)
if opt["statpos"] == 1: statstore()
for r in range(4):
    for jj in range(4):
        for x in latpack(1, r, jj): A(x)
    for x in latstore(1, r): A(x)
if opt["statpos"] == 2: statstore()
stamp(9)
if opt["statpos"] == 3:
    A("s_waitcnt vmcnt(4)"); statstore()
if opt["statpos"] == 4:
    A("s_waitcnt vmcnt(0)"); statstore()
if opt["ackwait"]: A("s_waitcnt vmcnt(0)")
A("s_cmp_ge_u32 s31, 112\ns_cbranch_scc1 L_awo")
srd(R2, 22, 1792*896)
A(f"s_mul_i32 s55, s31, 14336\ns_lshl_b32 s62, s3, 10\ns_add_u32 s55, s55, s62\ns_add_u32 s69, s62, {WD}")
A("s_cmp_ge_u32 s3, 2\ns_cbranch_scc1 L_ad3")
A("s_add_u32 s62, s55, 12288")
dma("v40", R2, "s62", "s69", 12288)
A.label("L_ad3")
for i in range(3):
    if i: A("s_add_u32 s55, s55, 4096")
    dma("v40", R2, "s55", "s69", 4096*i)
A(f"v_lshrrev_b32 v43, 2, {vN}\nv_and_b32 v44, 3, v0")
A(f"v_lshlrev_b32 v45, 8, v43\nv_lshl_add_u32 v45, {vG}, 6, v45\nv_lshl_add_u32 v45, v44, 4, v45\ns_mul_i32 s63, s31, {SS}\ns_add_u32 s63, s63, {HP}")
A(f"buffer_load_dwordx4 v[68:71], v45, {WS}, s63 offen sc1")
A.label("L_awo")
wo_dmas()
A(f"v_lshrrev_b32 v43, 2, {vN}\nv_lshlrev_b32 v42, 1, v43\nv_add_u32 v42, v42, v12\nv_mul_u32_u24 v42, {FS}, v42\nv_and_b32 v44, 1, {vG}\nv_lshl_add_u32 v42, v44, 6, v42\nv_and_b32 v44, 3, v0\nv_lshl_add_u32 v42, v44, 4, v42")
A("s_lshl_b32 s66, s3, 2\ns_cmp_eq_u32 s3, 3\ns_cselect_b32 s66, 11, s66")
A(f"s_mul_i32 s64, s66, {2*FS}\ns_lshl_b32 s62, s31, 7\ns_add_u32 s64, s64, s62")
A("s_cmp_ge_u32 s3, 2\ns_cselect_b32 s67, 0x0fff0fff, -1")
A(f"v_lshl_add_u32 v46, {vG}, 2, v43\nv_mul_u32_u24 v46, 896, v46\nv_lshl_add_u32 v46, v44, 3, v46\ns_lshl_b32 s62, s66, 6\nv_add_u32 v46, s62, v46")
A(f"v_add_u32 v47, {WO}, v46\nv_add_u32 v46, {WD}, v46")
def merged_publish(dbase, base_off):
    for t in range(8):
        setexec16(3 << (2*t)); tag_insert(64, dbase+4*t)
    A(f"s_mov_b32 exec_lo, s67\ns_mov_b32 exec_hi, s67\ns_add_u32 s62, s64, {base_off}")
    A(f"buffer_store_dwordx4 v[64:67], v42, {WS}, s62 offen sc1")
    A("s_mov_b64 exec, -1")
A("s_cmp_ge_u32 s31, 112\ns_cbranch_scc1 L_aout")
spin_init()
A("s_waitcnt vmcnt(7)")
A.label("L_ah")
tag_check_acc(68, 53, 54, True, 55)
A("v_cmp_ne_u32 vcc, 0, v55\ns_cbranch_vccz L_ah2")
A(f"buffer_load_dwordx4 v[68:71], v45, {WS}, s63 offen sc1")
spin_check()
A("s_waitcnt vmcnt(0)\ns_branch L_ah")
A.label("L_ah2")
A("s_barrier")
for t in range(8): A(f"ds_read_b64_tr_b16 v[{96+2*t}:{97+2*t}], v46 offset:{32*t}")
for k in (4, 8):
    for r in range(4): A(f"v_add_f32_dpp v{68+r}, v{68+r}, v{68+r} row_ror:{k} {DPPM}")
for r in range(4): bf16r(68+r, 68+r)
for r in range(4):
    A(f"v_mov_b32_dpp v{72+r}, v{68+r} quad_perm:[0,1,0,1] {DPPM}\nv_mov_b32_dpp v{76+r}, v{68+r} quad_perm:[2,3,2,3] {DPPM}")
c1 = -2.0*0.7978845608028654*1.4426950408889634; c2 = c1*0.044715
A(f"s_mov_b32 s62, {hex(f2u(c2))}\nv_mov_b32 v84, {hex(f2u(c1))}")
for r in range(4):
    A(f"v_mul_f32 v{80+r}, v{72+r}, v{72+r}\nv_fma_f32 v{80+r}, v{80+r}, s62, v84\nv_mul_f32 v{80+r}, v{80+r}, v{72+r}")
for r in range(4): A(f"v_exp_f32 v{80+r}, v{80+r}")
for r in range(4): A(f"v_add_f32 v{80+r}, 1.0, v{80+r}")
for r in range(4): A(f"v_rcp_f32 v{80+r}, v{80+r}")
for r in range(4): A(f"v_mul_f32 v{80+r}, v{80+r}, v{72+r}")
for r in range(4): bf16r(80+r, 80+r)
for r in range(4): A(f"v_mul_f32 v{80+r}, v{80+r}, v{76+r}")
A("v_cvt_pk_bf16_f32 v80, v80, v81\nv_cvt_pk_bf16_f32 v81, v82, v83")
A("s_waitcnt lgkmcnt(0)")
for t in range(8): A(f"v_mfma_f32_16x16x16_bf16 v[{128+4*t}:{131+4*t}], v[{96+2*t}:{97+2*t}], v[80:81], 0")
merged_publish(128, YP)
A.flush()
stamp(10)
A("s_waitcnt vmcnt(1)\ns_barrier")
A("s_branch L_aout2")
A.label("L_aout")
A("s_waitcnt vmcnt(0)\ns_barrier")
A.label("L_aout2")
stamp(11)
for t in range(8):
    for z in range(2): A(f"ds_read_b64_tr_b16 v[{96+4*t+2*z}:{97+4*t+2*z}], v47 offset:{32*t+16*896*z}")
A(f"v_lshrrev_b32 v45, 1, {vN}\nv_lshlrev_b32 v45, 8, v45\nv_lshl_add_u32 v45, {vG}, 6, v45\nv_lshl_add_u32 v45, v14, 4, v45\ns_mul_i32 s63, s31, {SS}\ns_add_u32 s63, s63, {CTXP}")
def ctx_first(b):
    for r in range(8): A(f"v_add_f32_dpp v{68+r}, v{b+r}, v{b+r} row_ror:2 {DPPM}")
pipe_poll("L_ac", [("v45", "s63", 0), ("v45", "s63", 32)], [164, 172], ctx_first)
stamp(12)
for k in (4, 8):
    for r in range(8): A(f"v_add_f32_dpp v{68+r}, v{68+r}, v{68+r} row_ror:{k} {DPPM}")
for r in range(4): A(f"v_cvt_pk_bf16_f32 v{80+r}, v{68+2*r}, v{69+2*r}")
A("s_waitcnt lgkmcnt(0)")
for t in range(8): A(f"v_mfma_f32_16x16x32_bf16 v[{128+4*t}:{131+4*t}], v[{96+4*t}:{99+4*t}], v[80:83], 0")
merged_publish(128, OUTP)
stamp(13)
A.label("L_end")
if STAMPS:
    A("s_mov_b64 exec, -1")
    A("s_memrealtime s[98:99]\ns_waitcnt lgkmcnt(0)")
    A(f"v_writelane_b32 {vST}, s98, 15")
    A(f"s_lshl_b32 s62, s2, 2\ns_add_u32 s62, s62, s3\ns_lshl_b32 s62, s62, 8\ns_add_u32 s62, s62, {STAMP}\nv_lshlrev_b32 v4, 2, v0")
    A(f"buffer_store_dword {vST}, v4, {WS}, s62 offen")
    if STAMPS == 2:
        wmap = {0:0, 3:1, 5:2, 7:3, 8:4, 10:5, 12:6, 15:15}
        amap = {0:0, 4:8, 6:9, 7:10, 9:11, 11:12, 12:13, 13:14, 15:15}
        A("v_mov_b32 v5, 63\nv_mov_b32 v6, 63")
        for k, sl in wmap.items(): A(f"s_mov_b32 s63, {sl}\nv_writelane_b32 v5, s63, {k}")
        for k, sl in amap.items(): A(f"s_mov_b32 s63, {sl}\nv_writelane_b32 v6, s63, {k}")
        A(f"v_readlane_b32 s63, {vST}, 0\ns_nop 3\ns_mov_b32 s64, s63\ns_not_b32 s63, s63\nv_writelane_b32 {vST}, s63, 0")
        A(f"v_writelane_b32 {vST}, s64, 16\ns_mov_b32 s63, 7\nv_writelane_b32 v5, s63, 16\nv_writelane_b32 v6, s63, 16")
        A("s_cmp_ge_u32 s2, 128\ns_cselect_b64 vcc, -1, 0\ns_nop 1\nv_cndmask_b32 v5, v5, v6, vcc\nv_lshlrev_b32 v5, 2, v5")
        A("s_mov_b64 exec, 0x1ffff")
        A.raw(f"  global_atomic_umax v5, {vST}, s[26:27] sc1")
A.label("L_end0")
A("s_endpgm")
A.raw(f".fill ({opt['codekb']}*1024 - (. - {NAME}))/4, 4, 0xbf800000")
A.raw('.section .rodata,"a"\n.p2align 6')
A.raw(f""".amdhsa_kernel {NAME}
  .amdhsa_next_free_vgpr 512
  .amdhsa_next_free_sgpr 102
  .amdhsa_accum_offset 256
  .amdhsa_group_segment_fixed_size 0
  .amdhsa_kernarg_size 104
  .amdhsa_user_sgpr_count 2
  .amdhsa_user_sgpr_kernarg_segment_ptr 1
  .amdhsa_system_sgpr_workgroup_id_x 1
.end_amdhsa_kernel""")
sys.stdout.write(A.text())
```

```python
import sys, struct
from asmdsl import Asm
NAME = "recurrent_scan__compressed_kv_cla__geglu_ffn__decode_kernel"
opt = dict(stamps=0, round_s=0, nt="nt", npre=0, codekb=20, qbar=27, thr_g=7, thr_uv=0, adepth=1, athr=4, statpos=1, psleep=1, early_wo=0, tokpos=31, wdepth=8, w2depth=0, adepth2=8, wd0=8, tok1pos=-1, apre=1, ackwait=1, tlb=1, fpos=23, eps=0)
for a in sys.argv[1:]:
    k, v = a.split("="); opt[k] = v if k == "nt" else int(v)
NT = opt["nt"] if opt["nt"] != "none" else ""
STAMPS = opt["stamps"]; NPRE = opt["npre"]
def f2u(x): return struct.unpack("<I", struct.pack("<f", x))[0]
SS = 16640
MB = 0x200000
CTXP, HP, QP, QA, STAT, QAF, TOK = MB, MB+2048, MB+3072, MB+3584, MB+4096, MB+4352, MB+4480
FS = 73984
OUTP = 0x500000; YP = OUTP + 16384
LAT, STAMP = 0x800000, 0xE00000
WSSZ = 0x1000000
XN, EX, TT, BIG = 0, 1792, 4096, 32768
LDSSZ = 163840
DPPM = "row_mask:0xf bank_mask:0xf"
QW = 3
A = Asm()
hdr = open("recurrent_scan__compressed_kv_cla__geglu_ffn__decode.s.ref").read().split("; Override launch")[0]
A.raw(hdr.rstrip())
A.raw(f"; @launch grid=(256,1,1) block=(256,1,1) lds={LDSSZ}")
A.raw('.amdgcn_target "amdgcn-amd-amdhsa--gfx950"\n.text')
A.raw(f".globl {NAME}\n.p2align 8\n.type {NAME},@function\n{NAME}:")
WS = "s[32:35]"; R1 = "s[36:39]"; R2 = "s[40:43]"
vN, vG, vTAG = "v1", "v2", "v3"
vST = "v255"
def stamp(k):
    if not STAMPS: return
    A(f"s_memrealtime s[98:99]\ns_waitcnt lgkmcnt(0)\nv_writelane_b32 {vST}, s98, {k}")
def srd(r, lo, size):
    b = int(r[2:4])
    A(f"s_mov_b32 s{b}, s{lo}\ns_mov_b32 s{b+1}, s{lo+1}\ns_mov_b32 s{b+2}, {size}\ns_mov_b32 s{b+3}, 0x20000")
def setexec16(m):
    m |= m << 16
    A(f"s_mov_b32 exec_lo, {hex(m)}\ns_mov_b32 exec_hi, {hex(m)}")
def tag_insert(dst, src):
    for r in range(4): A(f"v_perm_b32 v{dst+r}, v{src+r}, {vTAG}, s{44+r}")
def tag_check_acc(base, t0, t1, first, acc):
    A(f"v_perm_b32 v{t0}, v{base+1}, v{base}, s48\nv_perm_b32 v{t1}, v{base+3}, v{base+2}, s49")
    if first: A(f"v_or_b32 v{t0}, v{t0}, v{t1}\nv_xor_b32 v{acc}, v{t0}, {vTAG}")
    else: A(f"v_or_b32 v{t0}, v{t0}, v{t1}\nv_xor_b32 v{t0}, v{t0}, {vTAG}\nv_or_b32 v{acc}, v{acc}, v{t0}")
def spin_init(): A("s_mov_b32 s96, 400000")
def spin_check(): A("s_sub_u32 s96, s96, 1\ns_cbranch_scc1 L_end")
def bf16r(dst, src):
    A(f"v_cvt_pk_bf16_f32 v{dst}, v{src}, v{src}\nv_and_b32 v{dst}, 0xffff0000, v{dst}")
def row_red(x, op="v_add_f32", steps=(8,4,2,1)):
    for k in steps: A(f"{op}_dpp v{x}, v{x}, v{x} row_ror:{k} {DPPM}")
def swap_red(x, t, which, op="v_add_f32"):
    A(f"v_mov_b32 v{t}, v{x}\nv_permlane{which}_swap_b32 v{t}, v{x}\n{op} v{x}, v{x}, v{t}")
def dma(voff, rsrc, soff, ldsaddr_s, ldsadd):
    A(f"s_add_u32 m0, {ldsaddr_s}, {ldsadd}")
    A(f"buffer_load_dwordx4 {voff}, {rsrc}, {soff} offen {NT} lds")
def pipe_poll(lab, loads, sets, first_step, word2=False):
    n = len(loads)
    def issue(base):
        for i, (vo, so, off) in enumerate(loads):
            A(f"buffer_load_dwordx4 v[{base+4*i}:{base+4*i+3}], {vo}, {WS}, {so} offen offset:{off} sc1")
    def check(base):
        if word2: A(f"v_cmp_ne_u32 vcc, v{base+2}, {vTAG}"); return
        for i in range(n): tag_check_acc(base+4*i, 53, 54, i == 0, 55)
        A("v_cmp_ne_u32 vcc, 0, v55")
    spin_init()
    issue(sets[0])
    if opt["psleep"]: A(f"s_sleep {opt['psleep']}")
    A.label(lab)
    issue(sets[1])
    A(f"s_waitcnt vmcnt({n})")
    check(sets[0])
    A(f"s_cbranch_vccz {lab}_x")
    issue(sets[0])
    spin_check()
    A(f"s_waitcnt vmcnt({n})")
    check(sets[1])
    A(f"s_cbranch_vccnz {lab}")
    first_step(sets[1])
    A(f"s_branch {lab}_j")
    A.label(lab+"_x")
    first_step(sets[0])
    A.label(lab+"_j")
def xn_operands(dst, mask, mul, n, bsel="v14"):
    A(f"v_mul_u32_u24 v15, 896, {bsel}\nv_lshl_add_u32 v15, {vG}, 3, v15\ns_and_b32 s62, s2, {mask}\ns_mul_i32 s62, s62, {mul}\nv_add_u32 v15, s62, v15")
    for s in range(n): A(f"ds_read_b64 v[{dst+2*s}:{dst+1+2*s}], v15 offset:{32*s}")
def tr128_addr(dst):
    A(f"v_lshrrev_b32 v39, 2, {vN}\nv_lshl_add_u32 v39, {vG}, 2, v39")
    A(f"v_and_b32 v40, 6, v39\nv_bfe_u32 v41, v0, 1, 1\nv_xor_b32 v40, v40, v41")
    A(f"v_lshlrev_b32 v{dst}, 7, v39\nv_lshl_add_u32 v{dst}, v40, 4, v{dst}\nv_lshl_add_u32 v{dst}, v14, 3, v{dst}\nv_add_u32 v{dst}, {TT}, v{dst}")

def mktag():
    A(f"s_add_u32 s30, s30, 0x01010101\nv_mov_b32 {vTAG}, s30")
def lsb_patterns(T, C=None):
    A(f"v_and_b32 v39, 3, v0\nv_lshlrev_b32 v39, 3, v39\nv_lshrrev_b32 v39, v39, {vTAG}")
    for j in range(4):
        A(f"v_bfe_u32 v{T+j}, v39, {2*j}, 1\nv_bfe_u32 v13, v39, {2*j+1}, 1\nv_lshl_or_b32 v{T+j}, v13, 16, v{T+j}")
        if C is not None: A(f"v_xor_b32 v{C+j}, 0x10001, v{T+j}")
def tok_wait(lab, off):
    A(f"s_mul_i32 s62, s31, {SS}\ns_add_u32 s62, s62, {off}\nv_mov_b32 v13, 0")
    spin_init()
    A.label(lab)
    A(f"buffer_load_dword v39, v13, {WS}, s62 offen sc1")
    spin_check()
    A(f"s_waitcnt vmcnt(0)\nv_cmp_ne_u32 vcc, v39, {vTAG}\ns_cbranch_vccnz {lab}")
def tok_send(off, wave):
    tok_send.n += 1
    A(f"s_cmp_lg_u32 s3, {wave}\ns_cbranch_scc1 L_ts{tok_send.n}")
    A(f"s_mul_i32 s62, s31, {SS}\ns_add_u32 s62, s62, {off}\nv_mov_b32 v13, 0\ns_mov_b64 exec, 1")
    A(f"buffer_store_dword {vTAG}, v13, {WS}, s62 offen sc1\ns_mov_b64 exec, -1")
    A.label(f"L_ts{tok_send.n}")
tok_send.n = 0
def tlb_touch():
    A(f"v_and_b32 v13, 7, v0\nv_lshlrev_b32 v13, 21, v13\nv_add_u32 v13, 0x1fff80, v13")
    A(f"buffer_load_dword v254, v13, {WS}, 0 offen")
def tlb_all(shift):
    A(f"v_lshlrev_b32 v13, {shift}, v0")
    for (sp, size) in ((12, 1024*8192), (14, 16*256*896), (18, 448*3584), (20, 448*3584), (22, 1792*896), (24, 1792), (6, 2*4096*2048)):
        A(f"v_min_u32 v15, {size-4}, v13\nglobal_load_dword v254, v15, s[{sp}:{sp+1}] {NT}")
if STAMPS: A("s_memrealtime s[98:99]")
A(f"s_cmp_ge_u32 s2, 256\ns_cbranch_scc1 L_end0")
A("s_load_dwordx16 s[4:19], s[0:1], 0\ns_load_dwordx8 s[20:27], s[0:1], 64\ns_load_dwordx2 s[28:29], s[0:1], 96")
A(f"v_lshrrev_b32 v4, 6, v0\nv_and_b32 v0, 63, v0\nv_readfirstlane_b32 s3, v4")
A(f"v_and_b32 {vN}, 15, v0\nv_lshrrev_b32 {vG}, 4, v0\nv_and_b32 v14, 1, v0")
if STAMPS: A(f"v_mov_b32 {vST}, 0")
A("s_and_b32 s31, s2, 127")
A("v_lshrrev_b32 v12, 5, v0\nv_and_b32 v11, 31, v0")
A("s_mov_b32 s34, %d\ns_mov_b32 s35, 0x20000\ns_mov_b32 s43, 0x20000" % WSSZ)
def consts():
    A("s_mov_b32 s44, 0x07060500\ns_mov_b32 s45, 0x07060501\ns_mov_b32 s46, 0x07060502\ns_mov_b32 s47, 0x07060503")
    A("s_mov_b32 s48, 0x0c0c0400\ns_mov_b32 s49, 0x04000c0c")
def code_prefetch(lab, mul):
    A("s_getpc_b64 s[50:51]")
    A.label(lab)
    A(f"s_sub_u32 s50, s50, {lab}-{NAME}\ns_subb_u32 s51, s51, 0")
    A(f"s_lshr_b32 s52, s31, 3\ns_mul_i32 s52, s52, {mul}\ns_add_u32 s52, s52, s3\ns_min_u32 s52, s52, {opt['codekb']-1}\ns_lshl_b32 s52, s52, 10")
    A(f"v_lshlrev_b32 v5, 4, v0\nv_add_u32 v4, s52, v5")
    A("global_load_dwordx4 v[250:253], v4, s[50:51]")
A("s_cmp_ge_u32 s2, 128\ns_cbranch_scc1 L_A")

A("v_lshrrev_b32 v7, 3, v0\nv_and_b32 v6, 6, v7\nv_and_b32 v8, 7, v0\nv_xor_b32 v6, v6, v8\nv_lshlrev_b32 v6, 4, v6")
A("s_and_b32 s60, s31, 15\ns_lshr_b32 s61, s31, 4")
A(f"s_lshl_b32 s59, s3, 14\ns_add_u32 s59, s59, {BIG}")
code_prefetch("L_pc1", 4)
A("v_lshl_add_u32 v9, v7, 13, v6\nv_mul_u32_u24 v10, 28, v0")
A("s_and_b32 s53, s2, 1\ns_lshr_b32 s54, s2, 1")
A(f"s_mul_i32 s55, s53, {224*8192}\ns_lshl_b32 s56, s54, 7\ns_add_u32 s55, s55, s56\ns_lshl_b32 s56, s3, 16\ns_add_u32 s55, s55, s56")
A(f"s_lshl_b32 s57, s3, 10\ns_add_u32 s57, s57, {TT}")
A("s_mov_b32 s38, %d\ns_mov_b32 s39, 0x20000" % (448*8192))
A("s_lshl_b32 s58, s61, 7\ns_lshl_b32 s62, s60, 9\ns_lshl_b32 s58, s58, 13\ns_add_u32 s58, s58, s62")
A("s_and_b32 s62, s3, 1\ns_lshl_b32 s62, s62, 16\ns_lshr_b32 s63, s3, 1\ns_lshl_b32 s63, s63, 19\ns_add_u32 s62, s62, s63\ns_add_u32 s56, s58, s62")
A("v_xor_b32 v11, v11, v12\nv_lshlrev_b32 v11, 4, v11\nv_lshl_add_u32 v11, v12, 14, v11")
A("s_mov_b32 s42, %d" % (1024*8192))
A("s_waitcnt lgkmcnt(0)")
A(f"s_cmp_eq_u32 s3, {QW}\ns_cbranch_scc0 L_nx")
A("global_load_dwordx4 v[16:19], v10, s[4:5]\nglobal_load_dwordx3 v[20:22], v10, s[4:5] offset:16")
A.label("L_nx")
A("s_mov_b32 s36, s8\ns_mov_b32 s37, s9")
for i in range(7):
    if i: A(f"s_add_u32 s55, s55, {4*65536}")
    dma("v9", R1, "s55", "s57", i*4096)
if STAMPS: A(f"v_writelane_b32 {vST}, s98, 0")
A("s_load_dword s30, s[28:29], 0\ns_mov_b32 s32, s28\ns_mov_b32 s33, s29\ns_mov_b32 s40, s10\ns_mov_b32 s41, s11")
consts()
A(f"s_cmp_eq_u32 s3, {QW}\ns_cbranch_scc0 L_nln")
A(f"s_waitcnt vmcnt(7)")
stamp(1)
for i in range(7):
    A(f"v_lshlrev_b32 v{24+2*i}, 16, v{16+i}\nv_and_b32 v{25+2*i}, 0xffff0000, v{16+i}")
A("v_add_f32 v40, v24, v25\nv_add_f32 v41, v26, v27")
for i in range(4, 14, 2): A(f"v_add_f32 v40, v40, v{24+i}\nv_add_f32 v41, v41, v{25+i}")
A("v_add_f32 v40, v40, v41")
row_red(40); swap_red(40, 41, 16)
A(f"v_mul_f32 v40, {hex(f2u(1.0/448))}, v40")
A("v_sub_f32 v42, v24, v40\nv_sub_f32 v43, v25, v40\nv_mul_f32 v44, v42, v42\nv_mul_f32 v45, v43, v43")
for i in range(2, 14, 2):
    A(f"v_sub_f32 v42, v{24+i}, v40\nv_sub_f32 v43, v{25+i}, v40\nv_fmac_f32 v44, v42, v42\nv_fmac_f32 v45, v43, v43")
A("v_add_f32 v44, v44, v45")
row_red(44); swap_red(44, 45, 16)
A(f"v_mul_f32 v44, {hex(f2u(1.0/448))}, v44")
bf16r(40, 40); bf16r(44, 44)
A(f"v_add_f32 v44, {hex(f2u(1e-5))}, v44"); bf16r(44, 44)
A("v_sqrt_f32 v44, v44"); bf16r(44, 44)
A("v_rcp_f32 v44, v44")
for i in range(7):
    A(f"v_sub_f32 v42, v{24+2*i}, v40\nv_sub_f32 v43, v{25+2*i}, v40\nv_cvt_pk_bf16_f32 v42, v42, v43")
    A(f"v_and_b32 v43, 0xffff0000, v42\nv_lshlrev_b32 v42, 16, v42\nv_mul_f32 v42, v42, v44\nv_mul_f32 v43, v43, v44\nv_cvt_pk_bf16_f32 v{16+i}, v42, v43")
for i in range(3): A(f"ds_write2_b32 v10, v{16+2*i}, v{17+2*i} offset0:{2*i} offset1:{2*i+1}")
A("ds_write_b32 v10, v22 offset:24")
A.label("L_nln")
WD0 = opt["wd0"]
def wuk_dma(i):
    if opt["wdepth"] and i >= max(opt["wdepth"], WD0): A(f"s_waitcnt vmcnt({opt['wdepth']-1})")
    A(f"v_xor_b32 v13, {2*(i&7)*16}, v11")
    A(f"s_add_u32 s62, s56, {(16*((i&7)>>1)+4*(i&1)+(i>>3))*8192}")
    dma("v13", R2, "s62", "s59", i*1024)
for i in range(WD0):
    if i == WD0 - 1:
        A("s_waitcnt lgkmcnt(0)")
        mktag()
    wuk_dma(i)
tr128_addr(44)
A("s_lshl_b32 s62, s3, 5\nv_xor_b32 v44, s62, v44")
A("v_bfe_u32 v45, v0, 2, 1\nv_and_b32 v46, 3, v0\nv_or_b32 v46, 0x07060500, v46")
A(f"s_mul_i32 s63, s31, {SS}\ns_lshl_b32 s62, s3, 6\ns_add_u32 s63, s63, s62\ns_add_u32 s63, s63, {QP}")
A(f"v_lshlrev_b32 v40, 8, {vG}\nv_lshl_add_u32 v40, {vN}, 2, v40")
if opt["tlb"]: tlb_touch()
A(f"s_waitcnt vmcnt({WD0+min(1,opt['tlb'])})\ns_barrier")
stamp(2)
xn_operands(96, 1, 448, 14, "v45")
for s in range(14): A(f"ds_read_b64_tr_b16 v[{64+2*s}:{65+2*s}], v44 offset:{2048*s}")
for s in range(7):
    A(f"s_waitcnt lgkmcnt({12-2*s})")
    A(f"v_mfma_f32_16x16x32_bf16 v[128:131], v[{96+4*s}:{99+4*s}], v[{64+4*s}:{67+4*s}], {'0' if s==0 else 'v[128:131]'}")
A(f"v_perm_b32 v48, v128, {vTAG}, v46")
A("s_mov_b32 exec_hi, 0")
A(f"buffer_store_dword v48, v40, {WS}, s63 offen sc1")
A("s_mov_b64 exec, -1")
stamp(3)
for i in range(WD0, 16): wuk_dma(i)
A(f"v_and_b32 v40, 31, v0\nv_lshlrev_b32 v40, 4, v40\nv_mul_u32_u24 v41, {SS}, v12\nv_add_u32 v40, v40, v41")
A(f"s_lshl_b32 s63, s60, 2\ns_add_u32 s63, s63, s3\ns_mul_i32 s63, s63, {2*SS}\ns_add_u32 s63, s63, {QP}")
A(f"buffer_load_dwordx4 v[44:47], v40, {WS}, s63 offen sc1")
A(f"v_xor_b32 v41, {vG}, {vN}\nv_lshlrev_b32 v41, 4, v41\nv_lshl_add_u32 v41, {vN}, 9, v41\nv_add_u32 v41, s59, v41")
A("v_xor_b32 v42, 64, v41\nv_xor_b32 v43, 128, v41\nv_xor_b32 v52, 192, v41")
adr = [41, 42, 43, 52]
A(f"v_and_b32 v56, 1, {vG}\nv_lshlrev_b32 v56, 9, v56\nv_lshl_add_u32 v56, {vN}, 3, v56\nv_lshl_add_u32 v56, v12, 2, v56")
A(f"s_lshl_b32 s62, s3, 7\ns_add_u32 s62, s62, {EX}\nv_add_u32 v56, s62, v56")
A(f"v_bfe_u32 v57, v0, 2, 1\nv_lshlrev_b32 v57, 9, v57\nv_lshl_add_u32 v57, {vG}, 4, v57")
A(f"v_lshlrev_b32 v58, 8, {vG}\nv_lshl_add_u32 v58, {vN}, 2, v58")
A(f"s_mul_i32 s64, s31, {SS}\ns_lshl_b32 s62, s3, 6\ns_add_u32 s64, s64, s62\ns_add_u32 s64, s64, {QA}")
for t in range(2):
    A(f"s_waitcnt vmcnt({9-8*t})")
    for s in range(8): A(f"ds_read_b128 a[{32*t+4*s}:{32*t+4*s+3}], v{adr[s&3]} offset:{t*8192+(s>>2)*256}")
spin_init()
A.label("L_wq")
A("s_waitcnt vmcnt(0)")
tag_check_acc(44, 53, 54, True, 55)
A("v_cmp_ne_u32 vcc, 0, v55\ns_cbranch_vccz L_wq_ok")
spin_check()
A(f"buffer_load_dwordx4 v[44:47], v40, {WS}, s63 offen sc1")
A("s_branch L_wq")
A.label("L_wq_ok")
stamp(4)
A("v_permlane32_swap_b32 v44, v46\nv_permlane32_swap_b32 v45, v47\nv_add_f32 v44, v44, v46\nv_add_f32 v45, v45, v47")
A("v_cvt_pk_bf16_f32 v44, v44, v45\nds_write_b32 v56, v44")
A("s_waitcnt lgkmcnt(0)\ns_barrier")
for s in range(8): A(f"ds_read_b128 v[{64+4*s}:{67+4*s}], v57 offset:{EX+64*s}")
for s in range(8):
    A(f"s_waitcnt lgkmcnt({7-s})")
    for t in range(2):
        A(f"v_mfma_f32_16x16x32_bf16 v[{96+4*t}:{99+4*t}], v[{64+4*s}:{67+4*s}], a[{32*t+4*s}:{32*t+4*s+3}], {'0' if s==0 else f'v[{96+4*t}:{99+4*t}]'}")
A("v_mul_f32 v96, 0x3d800000, v96\nv_mul_f32 v100, 0x3d800000, v100\nv_cvt_pk_bf16_f32 v48, v96, v100")
A("s_mov_b32 exec_hi, 0")
A(f"buffer_store_dword v48, v58, {WS}, s64 offen sc1")
A("s_mov_b64 exec, -1\ns_waitcnt vmcnt(0)\ns_barrier")
tok_send(QAF, 0)
stamp(5)
if opt["tokpos"] >= 0:
    tok_wait("L_tok", TOK)
    stamp(13)
A("s_cmp_ge_u32 s31, 112\ns_cbranch_scc1 L_wuv")
A("s_cmp_ge_u32 s3, 2\ns_cselect_b32 s36, s20, s18\ns_cselect_b32 s37, s21, s19")
A(f"s_mov_b32 s38, {448*3584}\ns_mov_b32 s39, 0x20000")
A("v_mul_u32_u24 v9, 3584, v7\nv_add_u32 v9, v9, v6")
A(f"s_and_b32 s53, s2, 3\ns_mul_i32 s55, s53, {112*3584}\ns_lshr_b32 s56, s31, 2\ns_lshl_b32 s62, s56, 7\ns_add_u32 s55, s55, s62")
A(f"s_and_b32 s62, s3, 1\ns_mul_i32 s62, s62, {7*8*3584}\ns_add_u32 s55, s55, s62")
A(f"s_mul_i32 s57, s3, 7168\ns_add_u32 s57, s57, {TT}")
for i in range(7):
    if i >= opt["thr_g"]: A(f"s_waitcnt vmcnt({opt['thr_g']-1})")
    if i: A(f"s_add_u32 s55, s55, {8*3584}")
    dma("v9", R1, "s55", "s57", i*1024)
A.label("L_wuv")
srd(R2, 12, 1024*8192)
A("v_and_b32 v8, 7, v0\nv_lshlrev_b32 v8, 4, v8\nv_lshl_add_u32 v11, v7, 13, v8")
A("s_lshl_b32 s58, s61, 20\ns_lshl_b32 s62, s60, 9\ns_add_u32 s58, s58, s62\ns_lshl_b32 s62, s3, 7\ns_add_u32 s58, s58, s62")
A("s_add_u32 s59, s59, 65536")
for i in range(16):
    if opt["w2depth"]: A(f"s_waitcnt vmcnt({opt['w2depth']-1})")
    A(f"v_xor_b32 v13, {2*((i>>1)&3)*16}, v11")
    A(f"s_add_u32 s62, s58, {i*65536}")
    dma("v13", R2, "s62", "s59", i*1024)
A(f"v_mul_u32_u24 v39, 448, v14\nv_bfe_u32 v40, v0, 1, 1\nv_lshl_add_u32 v39, v40, 4, v39\nv_bfe_u32 v40, v0, 2, 1\nv_lshl_add_u32 v39, v40, 2, v39\nv_add_u32 v39, v39, {vG}")
A("s_min_u32 s62, s31, 27\ns_lshr_b32 s63, s62, 1\ns_lshl_b32 s63, s63, 5\ns_and_b32 s62, s62, 1\ns_lshl_b32 s62, s62, 3\ns_add_u32 s62, s62, s63\nv_add_u32 v39, s62, v39\nv_lshlrev_b32 v200, 1, v39")
A("global_load_ushort v201, v200, s[4:5]\nglobal_load_ushort v202, v200, s[24:25]")
A("s_cmp_ge_u32 s31, 112\ns_cbranch_scc1 L_wuv2")
xn_operands(24, 3, 224, 7)
tr128_addr(38)
A("s_lshl_b32 s62, s3, 5\nv_xor_b32 v38, s62, v38")
A(f"v_lshlrev_b32 v40, 6, {vG}\nv_lshl_add_u32 v40, {vN}, 4, v40")
A(f"s_lshl_b32 s62, s56, 2\ns_add_u32 s62, s62, s3\ns_mul_i32 s62, s62, {SS}\ns_lshl_b32 s63, s53, 8\ns_add_u32 s62, s62, s63\ns_add_u32 s62, s62, {HP}")
A("s_waitcnt vmcnt(18) lgkmcnt(0)\ns_barrier")
for mat in range(2):
    for s in range(7): A(f"ds_read_b64_tr_b16 v[{64+14*mat+2*s}:{65+14*mat+2*s}], v38 offset:{14336*mat+2048*s}")
for mat in range(2):
    for s in range(7):
        A(f"s_waitcnt lgkmcnt({13-7*mat-s})")
        A(f"v_mfma_f32_16x16x16_bf16 v[{96+4*mat}:{99+4*mat}], v[{64+14*mat+2*s}:{65+14*mat+2*s}], v[{24+2*s}:{25+2*s}], {'0' if s==0 else f'v[{96+4*mat}:{99+4*mat}]'}")
tag_insert(48, 96)
setexec16(0xc); tag_insert(48, 100); setexec16(0xf)
A(f"buffer_store_dwordx4 v[48:51], v40, {WS}, s62 offen sc1")
A("s_mov_b64 exec, -1")
A.flush()
A.label("L_wuv2")
stamp(6)
A(f"v_lshrrev_b32 v39, 2, {vN}\nv_lshl_add_u32 v40, v39, 4, {vG}\nv_lshlrev_b32 v40, 7, v40")
A(f"v_lshlrev_b32 v39, 1, v39\nv_bfe_u32 v41, v0, 1, 1\nv_xor_b32 v39, v39, v41\nv_lshl_add_u32 v40, v39, 4, v40\nv_lshl_add_u32 v40, v14, 3, v40\nv_add_u32 v41, s59, v40")
A("v_xor_b32 v42, 32, v41\nv_xor_b32 v43, 64, v41\nv_xor_b32 v52, 96, v41")
lsb_patterns(24)
A("s_waitcnt vmcnt(0)")
for t in range(4):
    for s in range(4):
        for z in range(2):
            b = 64+16*t+4*s+2*z
            A(f"ds_read_b64_tr_b16 a[{b}:{b+1}], v{adr[t]} offset:{s*512+z*8192}")
RED = BIG; MLB = BIG + 4096
A(f"v_lshlrev_b32 v40, 4, v0\nv_and_b32 v41, 31, v0\nv_mul_u32_u24 v41, {SS}, v41")
A(f"s_mul_i32 s97, s3, {32*SS}\ns_lshl_b32 s62, s60, 4\ns_add_u32 s97, s97, s62\ns_add_u32 s97, s97, {STAT}")
A(f"s_lshl_b32 s56, s31, 15\ns_lshl_b32 s57, s3, 13\ns_add_u32 s56, s56, s57\ns_add_u32 s56, s56, {LAT}\ns_add_u32 s57, s56, 4096")
A(f"v_lshlrev_b32 v61, 2, {vG}")
A(f"v_and_b32 v62, 3, v0\nv_lshlrev_b32 v62, 4, v62\nv_and_b32 v55, 12, v0\nv_add3_u32 v62, v62, v55, {vG}\nv_lshlrev_b32 v62, 4, v62")
A(f"s_lshl_b32 s62, s3, 10\ns_add_u32 s62, s62, {RED}\nv_add_u32 v62, s62, v62")
A(f"v_lshlrev_b32 v58, 5, v14\ns_lshl_b32 s62, s3, 3\nv_add_u32 v59, s62, v58")
A(f"v_lshlrev_b32 v60, 6, {vG}\nv_lshl_add_u32 v60, {vN}, 4, v60")
A(f"s_lshl_b32 s58, s60, 3\ns_lshl_b32 s63, s3, 1\ns_add_u32 s58, s58, s63\ns_mul_i32 s58, s58, {SS}\ns_lshl_b32 s63, s61, 8\ns_add_u32 s58, s58, s63\ns_add_u32 s58, s58, {CTXP}\ns_add_u32 s65, s58, {SS}")
stamp(7)
pipe_poll("L_wl", [("v41", "s97", 0)], [28, 32], lambda b: A(f"v_mov_b32 v44, v{b}\nv_mov_b32 v45, v{b+1}"), word2=True)
def lat_loads():
    for i in range(8): A(f"buffer_load_dwordx4 v[{64+4*i}:{67+4*i}], v40, {WS}, {'s56' if i<4 else 's57'} offen offset:{(i&3)*1024} sc1")
lat_loads()
stamp(8)
A("v_mov_b32 v46, v44")
row_red(46, "v_max_f32", (8,4,2)); swap_red(46, 55, 16, "v_max_f32")
A("v_sub_f32 v44, v44, v46\nv_exp_f32 v44, v44")
for i in range(8): A(f"ds_bpermute_b32 v{100+i}, v61, v44 offset:{16*i}")
A("v_mul_f32 v47, v45, v44")
row_red(47, "v_add_f32", (8,4,2)); swap_red(47, 55, 16)
A(f"ds_write_b64 v59, v[46:47] offset:{MLB}")
A("s_waitcnt lgkmcnt(1)")
A.label("L_wlr")
for i in range(8):
    A(f"s_waitcnt vmcnt({7-i})")
    for jj in range(4):
        d = 64+4*i+jj
        A(f"v_lshlrev_b32 v56, 16, v{d}\nv_and_b32 v57, 0xffff0000, v{d}")
        if i == 0 and jj == 0: A(f"v_xor_b32 v55, v{d}, v24")
        else: A(f"v_bitop3_b32 v55, v{d}, v{24+jj}, v55 bitop3:0xbe")
        if i == 0: A(f"v_mul_f32 v{110+2*jj}, v56, v100\nv_mul_f32 v{111+2*jj}, v57, v100")
        else: A(f"v_fmac_f32 v{110+2*jj}, v56, v{100+i}\nv_fmac_f32 v{111+2*jj}, v57, v{100+i}")
A("v_and_b32 v55, 0x10001, v55\nv_cmp_ne_u32 vcc, 0, v55\ns_cbranch_vccz L_wlk")
lat_loads()
spin_check()
if STAMPS: A(f"s_sub_u32 s62, 400000, s96\nv_writelane_b32 {vST}, s62, 14")
A("s_branch L_wlr")
A.label("L_wlk")
for e in range(4): A(f"v_permlane32_swap_b32 v{110+e}, v{114+e}")
for e in range(4): A(f"v_add_f32 v{120+e}, v{110+e}, v{114+e}")
A("ds_write_b128 v62, v[120:123]")
A(f"s_waitcnt lgkmcnt(0)\ns_barrier")
stamp(9)
A(f"ds_read_b128 v[44:47], v58 offset:{MLB}\nds_read_b128 v[48:51], v58 offset:{MLB+16}")
for v in range(4): A(f"ds_read_b128 v[{64+4*v}:{67+4*v}], v40 offset:{RED+1024*v}")
A("s_waitcnt lgkmcnt(4)")
A("v_max3_f32 v55, v44, v46, v48\nv_max_f32 v55, v55, v50")
for v in range(4): A(f"v_sub_f32 v{44+2*v}, v{44+2*v}, v55")
for v in range(4): A(f"v_exp_f32 v{44+2*v}, v{44+2*v}")
A("v_mul_f32 v55, v44, v45\nv_fmac_f32 v55, v46, v47\nv_fmac_f32 v55, v48, v49\nv_fmac_f32 v55, v50, v51\nv_rcp_f32 v55, v55")
A("s_waitcnt lgkmcnt(0)")
for e in range(4): A(f"v_mul_f32 v{64+e}, v{64+e}, v44")
for v in range(1, 4):
    for e in range(4): A(f"v_fmac_f32 v{64+e}, v{64+4*v+e}, v{44+2*v}")
for e in range(4): A(f"v_mul_f32 v{64+e}, v{64+e}, v55")
A("v_cvt_pk_bf16_f32 v78, v64, v65\nv_cvt_pk_bf16_f32 v79, v66, v67")
A(f"v_mov_b32_dpp v80, v78 quad_perm:[0,1,0,1] {DPPM}\nv_mov_b32_dpp v81, v79 quad_perm:[0,1,0,1] {DPPM}")
A(f"v_mov_b32_dpp v82, v78 quad_perm:[2,3,2,3] {DPPM}\nv_mov_b32_dpp v83, v79 quad_perm:[2,3,2,3] {DPPM}")
for s in range(1, 4):
    for k in range(4): A(f"v_mov_b32_dpp v{80+4*s+k}, v{80+k} row_shl:{4*s} {DPPM}")
for s in range(4):
    for t in range(4):
        A(f"v_mfma_f32_16x16x32_bf16 v[{100+4*t}:{103+4*t}], a[{64+16*t+4*s}:{67+16*t+4*s}], v[{80+4*s}:{83+4*s}], {'0' if s==0 else f'v[{100+4*t}:{103+4*t}]'}")
tag_insert(64, 100); tag_insert(68, 108)
setexec16(0xc); tag_insert(64, 104); tag_insert(68, 112); setexec16(0xf)
A(f"buffer_store_dwordx4 v[64:67], v60, {WS}, s58 offen sc1\nbuffer_store_dwordx4 v[68:71], v60, {WS}, s65 offen sc1")
A("s_mov_b64 exec, -1")
stamp(10)
A("s_cmp_ge_u32 s31, 28\ns_cbranch_scc1 L_end")
FR = BIG + 8192
def fin_tail(ldsoff):
    for r in range(4): A(f"v_add_f32 v{72+r}, v{72+r}, v{76+r}")
    for r in range(4): A(f"v_add_f32_dpp v{72+r}, v{72+r}, v{72+r} row_ror:8 {DPPM}")
    A("v_permlane32_swap_b32 v72, v74\nv_permlane32_swap_b32 v73, v75\nv_add_f32 v72, v72, v74\nv_add_f32 v73, v73, v75")
    A("v_permlane16_swap_b32 v72, v73\nv_add_f32 v72, v72, v73")
    A(f"ds_write_b32 v56, v72 offset:{ldsoff}")
A(f"v_lshlrev_b32 v57, 2, v0\ns_lshl_b32 s62, s3, 8\nv_add_u32 v56, s62, v57")
A(f"s_mul_i32 s62, s31, {FS}\ns_lshl_b32 s63, s3, 12\ns_add_u32 s64, s62, s63\ns_add_u32 s62, s64, {YP}\ns_add_u32 s64, s64, {OUTP}")
for r in range(8): A(f"v_mov_b32 v{88+r}, 0")
spin_init()
A.label("L_fy")
for i in range(2): A(f"buffer_load_dwordx4 v[{80+4*i}:{83+4*i}], v40, {WS}, s62 offen offset:{1024*i} sc1")
A("v_mov_b32 v55, 0\ns_cmp_eq_u32 s3, 3\ns_cbranch_scc1 L_fy_s")
for i in range(2, 4): A(f"buffer_load_dwordx4 v[{80+4*i}:{83+4*i}], v40, {WS}, s62 offen offset:{1024*i} sc1")
A("s_waitcnt vmcnt(0)")
tag_check_acc(88, 53, 54, True, 55); tag_check_acc(92, 53, 54, False, 55)
A.label("L_fy_s")
A("s_waitcnt vmcnt(0)")
tag_check_acc(80, 53, 54, False, 55); tag_check_acc(84, 53, 54, False, 55)
A(f"v_cmp_ne_u32 vcc, 0, v55")
spin_check()
A(f"s_cbranch_vccnz L_fy")
def fin_first(b):
    for r in range(4): A(f"v_add_f32 v{72+r}, v{b+r}, v{b+4+r}\nv_add_f32 v{76+r}, v{b+8+r}, v{b+12+r}")
fin_first(80); fin_tail(FR)
stamp(11)
pipe_poll("L_fo", [("v40", "s64", 1024*i) for i in range(4)], [80, 96], fin_first)
fin_tail(FR+1024)
A("s_waitcnt lgkmcnt(0)\ns_barrier")
stamp(12)
A("s_cmp_lg_u32 s3, 0\ns_cbranch_scc1 L_end")
for v in range(4): A(f"ds_read_b32 v{64+v}, v57 offset:{FR+256*v}\nds_read_b32 v{68+v}, v57 offset:{FR+1024+256*v}")
srd(R1, 24, 896*2)
A("s_waitcnt lgkmcnt(0)")
A("v_add_f32 v64, v64, v65\nv_add_f32 v66, v66, v67\nv_add_f32 v68, v68, v69\nv_add_f32 v70, v70, v71\nv_add_f32 v64, v64, v66\nv_add_f32 v68, v68, v70")
bf16r(64, 64); bf16r(68, 68)
A(f"v_mul_f32 v65, {hex(f2u(-1.4426950408889634))}, v64\nv_exp_f32 v65, v65\nv_add_f32 v65, 1.0, v65\nv_rcp_f32 v65, v65\nv_mul_f32 v65, v65, v64")
bf16r(65, 65)
A("v_mul_f32 v65, v65, v68")
if opt["eps"]: A(f"v_mul_f32 v65, {hex(f2u(1+opt['eps']/1000))}, v65")
bf16r(65, 65)
A("v_lshlrev_b32 v201, 16, v201\nv_add_f32 v65, v65, v201\nv_cvt_pk_bf16_f32 v65, v65, v65")
setexec16(0xff)
A(f"buffer_store_short v65, v200, {R1}, 0 offen")
A("s_cmp_lg_u32 s31, 0\ns_cbranch_scc1 L_end")
A(f"s_mov_b64 exec, 1\nv_mov_b32 v64, 0\nbuffer_store_dword {vTAG}, v64, {WS}, 0 offen")
A("s_branch L_end")

A.label("L_A")
A.hist = []
code_prefetch("L_pc2", 4)
A("s_and_b32 s60, s31, 1\ns_lshr_b32 s61, s31, 1")
A("s_lshl_b32 s58, s60, 23\ns_lshl_b32 s62, s61, 17\ns_add_u32 s58, s58, s62\ns_lshl_b32 s62, s3, 9\ns_add_u32 s58, s58, s62")
A(f"s_lshl_b32 s59, s3, 15\ns_add_u32 s59, s59, {BIG}")
A("v_lshlrev_b32 v13, 1, v12\nv_xor_b32 v11, v11, v13\nv_lshlrev_b32 v11, 4, v11\nv_lshl_add_u32 v11, v12, 11, v11")
A("s_mov_b32 s42, %d" % (2*4096*2048))
A("s_waitcnt lgkmcnt(0)")
if STAMPS: A(f"v_writelane_b32 {vST}, s98, 0")
A("s_mov_b32 s40, s6\ns_mov_b32 s41, s7")
def ckv_dma(i):
    ii = i & 7; cst = 4*(ii&3) + (ii>>2)
    if opt["adepth"] and opt["adepth"] <= i < opt["athr"]: A(f"s_waitcnt vmcnt({opt['adepth']-1})")
    elif opt["adepth2"] and i >= opt["adepth2"]: A(f"s_waitcnt vmcnt({opt['adepth2']-1})")
    A(f"v_xor_b32 v13, {cst*16}, v11")
    A(f"s_add_u32 s62, s58, {i*4096}")
    dma("v13", R2, "s62", "s59", i*1024)
AP = opt["apre"]
for i in range(AP): ckv_dma(i)
A("s_load_dword s30, s[28:29], 0\ns_mov_b32 s32, s28\ns_mov_b32 s33, s29")
if opt["tlb"]: tlb_touch()
if opt["tlb"] >= 2:
    A("s_cmp_lg_u32 s3, 0\ns_cbranch_scc1 L_tl")
    tlb_all(opt["tlb"])
    A.label("L_tl")
for i in range(AP, 16): ckv_dma(i)
consts()
A(f"v_and_b32 v40, 7, v0\nv_lshlrev_b32 v40, 1, v40\nv_bfe_u32 v41, v0, 3, 1\nv_or_b32 v40, v40, v41")
A(f"v_lshlrev_b32 v41, 1, {vG}\nv_xor_b32 v40, v40, v41\nv_lshlrev_b32 v40, 4, v40\nv_lshl_add_u32 v40, {vN}, 9, v40\nv_add_u32 v44, s59, v40")
A("v_xor_b32 v45, 16, v44\nv_xor_b32 v46, 128, v44\nv_xor_b32 v47, 144, v44")
A(f"v_lshrrev_b32 v40, 2, {vN}\nv_lshl_add_u32 v40, {vG}, 2, v40")
A("v_and_b32 v41, 7, v40\nv_lshlrev_b32 v41, 1, v41\nv_lshrrev_b32 v42, 3, v40\nv_or_b32 v41, v41, v42\nv_bfe_u32 v42, v0, 1, 1\nv_xor_b32 v41, v41, v42")
A("v_lshlrev_b32 v40, 9, v40\nv_lshl_add_u32 v40, v41, 4, v40\nv_lshl_add_u32 v40, v14, 3, v40\nv_add_u32 v16, s59, v40")
for t in range(1, 8): A(f"v_xor_b32 v{16+t}, {32*t}, v16")
A("s_waitcnt lgkmcnt(0)")
mktag()
lsb_patterns(24, 28)
A(f"v_and_b32 v32, 31, v0\nv_mul_u32_u24 v32, {SS}, v32\ns_mul_i32 s70, s3, {32*SS}\ns_add_u32 s70, s70, {QAF}")
def stage_tile(T):
    for s in range(8):
        A(f"ds_read_b128 a[{32*T+4*s}:{32*T+4*s+3}], v{44+(s&3)} offset:{T*8192+(s>>2)*256}")
    u, z = T >> 1, T & 1
    for t in range(16):
        b = 128 + 8*t + 4*u + 2*z
        A(f"ds_read_b64_tr_b16 a[{b}:{b+1}], v{16+(t&7)} offset:{T*8192+(t>>3)*256}")
def flag_load(): A(f"buffer_load_dword v33, v32, {WS}, s70 offen sc1")
for T in range(2):
    for i in range(16+8*T, 24+8*T):
        ckv_dma(i)
        if i == opt["fpos"]: flag_load()
        if i == opt["tokpos"]: tok_send(TOK, 3)
    A("s_waitcnt vmcnt(16)")
    stage_tile(T)
stamp(4)
A(f"v_mul_u32_u24 v40, {SS}, {vN}\nv_lshl_add_u32 v40, {vG}, 4, v40")
A(f"s_lshl_b32 s62, s60, 8\ns_mul_i32 s63, s3, {32*SS}\ns_add_u32 s62, s62, s63\ns_add_u32 s62, s62, {QA}\ns_add_u32 s63, s62, {16*SS}")
WO, WD = TT, BIG + 69632
srd(R1, 14, 16*256*896)
A(f"s_mul_i32 s56, s31, 28672\ns_mul_i32 s57, s3, 7168\ns_add_u32 s56, s56, s57\ns_add_u32 s57, s57, {WO}")
def qa_loads():
    for s in range(8): A(f"buffer_load_dwordx4 v[{64+4*s}:{67+4*s}], v40, {WS}, {'s62' if s<4 else 's63'} offen offset:{(s&3)*64} sc1")
A(f"s_waitcnt vmcnt({31-opt['fpos']})")
A(f"v_cmp_ne_u32 vcc, v33, {vTAG}\ns_cbranch_vccnz L_aq1")
qa_loads()
A("s_waitcnt vmcnt(16)"); stage_tile(2)
A("s_waitcnt vmcnt(8)"); stage_tile(3)
A("s_branch L_aqj")
A.label("L_aq1")
flag_load()
A("s_waitcnt vmcnt(9)"); stage_tile(2)
A("s_waitcnt vmcnt(1)"); stage_tile(3)
stamp(5)
spin_init()
A.label("L_aq")
A(f"s_waitcnt vmcnt(0)\nv_cmp_ne_u32 vcc, v33, {vTAG}\ns_cbranch_vccz L_aq2")
flag_load()
spin_check()
A("s_branch L_aq")
A.label("L_aq2")
qa_loads()
A.label("L_aqj")
A(f"v_lshlrev_b32 v40, 4, v0")
def wo_dmas():
    for i in range(7):
        if i: A("s_add_u32 s56, s56, 1024")
        dma("v40", R1, "s56", "s57", 1024*i)
EW = 0
A(f"v_add_u32 v41, s59, v40")
A(f"s_lshl_b32 s64, s3, 10\ns_add_u32 s64, s64, {BIG}\nv_add_u32 v42, s64, v40")
A(f"v_add_u32 v43, 0x10000, v42")
A(f"v_lshlrev_b32 v56, 5, v0\ns_lshl_b32 s64, s3, 3\nv_add_u32 v57, s64, v56")
A(f"v_lshlrev_b32 v58, 4, {vN}\ns_lshl_b32 s64, s3, 2\nv_add_u32 v59, s64, v58")
A("v_mov_b32 v60, 0x3f803f80\nv_mov_b32 v61, v60\nv_mov_b32 v62, v60\nv_mov_b32 v63, v60")
A(f"v_lshlrev_b32 v36, 17, {vG}\nv_lshl_add_u32 v36, {vN}, 4, v36")
A(f"s_lshl_b32 s64, s3, 20\ns_lshl_b32 s63, s31, 8\ns_add_u32 s64, s64, s63\ns_add_u32 s64, s64, {LAT}\ns_mul_i32 s66, s31, {SS}\ns_add_u32 s66, s66, {STAT}")
A("s_mov_b32 s65, 0xfffefffe\ns_mov_b32 s67, 0x07060302")
A("s_cmp_eq_u32 s3, 3\ns_cselect_b32 s68, 0xffff, 0")
A("s_waitcnt lgkmcnt(0)")
stamp(6)
for s in range(8):
    A(f"s_waitcnt vmcnt({7-s+EW})")
    for T in range(4):
        A(f"v_mfma_f32_16x16x32_bf16 v[{96+4*T}:{99+4*T}], a[{32*T+4*s}:{32*T+4*s+3}], v[{64+4*s}:{67+4*s}], {'0' if s==0 else f'v[{96+4*T}:{99+4*T}]'}")
for T in range(4): A(f"ds_write_b128 v41, v[{96+4*T}:{99+4*T}] offset:{1024*T}")
A("s_waitcnt lgkmcnt(0)\ns_barrier")
stamp(7)
A("ds_read_b128 v[64:67], v42\nds_read_b128 v[68:71], v42 offset:32768\nds_read_b128 v[72:75], v43\nds_read_b128 v[76:79], v43 offset:32768")
A("s_waitcnt lgkmcnt(2)")
for r in range(4): A(f"v_add_f32 v{64+r}, v{64+r}, v{68+r}")
A("s_waitcnt lgkmcnt(0)")
for r in range(4): A(f"v_add_f32 v{72+r}, v{72+r}, v{76+r}")
for r in range(4): A(f"v_add_f32 v{64+r}, v{64+r}, v{72+r}")
if opt["round_s"]:
    A("v_cvt_pk_bf16_f32 v68, v64, v65\nv_cvt_pk_bf16_f32 v69, v66, v67")
    A("v_lshlrev_b32 v64, 16, v68\nv_and_b32 v65, 0xffff0000, v68\nv_lshlrev_b32 v66, 16, v69\nv_and_b32 v67, 0xffff0000, v69")
for r in range(4): A(f"v_mul_f32 v{64+r}, {hex(f2u(1.4426950408889634))}, v{64+r}")
A("v_max3_f32 v68, v64, v65, v66\nv_max_f32 v68, v68, v67")
swap_red(68, 69, 16, "v_max_f32"); swap_red(68, 69, 32, "v_max_f32")
A("v_ceil_f32 v68, v68")
for r in range(4): A(f"v_sub_f32 v{64+r}, v{64+r}, v68")
for r in range(4): A(f"v_exp_f32 v{64+r}, v{64+r}")
A(f"ds_write_b32 v59, v68 offset:{EX+2048}")
A("v_cvt_pk_bf16_f32 v64, v64, v65\nv_cvt_pk_bf16_f32 v65, v66, v67")
A(f"ds_write_b64 v57, v[64:65] offset:{EX}")
A("s_waitcnt lgkmcnt(0)\ns_barrier")
A(f"ds_read_b128 v[72:75], v58 offset:{EX+2048}\nds_read_b128 v[64:67], v56 offset:{EX}\nds_read_b128 v[68:71], v56 offset:{EX+16}")
A("s_waitcnt lgkmcnt(2)")
A("v_max3_f32 v76, v72, v73, v74\nv_max_f32 v76, v76, v75")
for T in range(4):
    A(f"v_sub_f32 v{72+T}, v76, v{72+T}\nv_min_f32 v{72+T}, 0x437f0000, v{72+T}\nv_cvt_u32_f32 v{72+T}, v{72+T}\nv_mul_u32_u24 v{72+T}, 0x800080, v{72+T}")
A("s_waitcnt lgkmcnt(0)")
for T in range(4):
    for k in range(2): A(f"v_pk_sub_u16 v{64+2*T+k}, v{64+2*T+k}, v{72+T} clamp")
stamp(8)
ACC = 128
def pv(t):
    for u in range(2):
        A(f"v_mfma_f32_16x16x32_bf16 v[{ACC+4*t}:{ACC+4*t+3}], v[{64+4*u}:{67+4*u}], a[{128+8*t+4*u}:{131+8*t+4*u}], {'0' if u==0 else f'v[{ACC+4*t}:{ACC+4*t+3}]'}")
def latpack(half, r, jj):
    d = 96 + 16*half + 4*r + jj; t0 = 8*half + 2*jj
    return [f"v_perm_b32 v{d}, v{ACC+4*(t0+1)+r}, v{ACC+4*t0+r}, s67", f"v_pk_add_u16 v{d}, v{d}, v{28+jj}", f"v_and_or_b32 v{d}, v{d}, s65, v{24+jj}"]
def latstore(half, r):
    d = 96 + 16*half + 4*r
    return [f"s_add_u32 s63, s64, {half*524288+r*32768}", f"buffer_store_dwordx4 v[{d}:{d+3}], v36, {WS}, s63 offen sc1"]
def statstore():
    A(f"s_mov_b32 exec_lo, s68\ns_mov_b32 exec_hi, 0\ns_cbranch_execz L_st{statstore.n}")
    A(f"buffer_store_dwordx4 v[76:79], v40, {WS}, s66 offen sc1")
    A.label(f"L_st{statstore.n}")
    A("s_mov_b64 exec, -1")
statstore.n = 0
for u in range(2): A(f"v_mfma_f32_16x16x32_bf16 v[80:83], v[60:63], v[{64+4*u}:{67+4*u}], {'0' if u==0 else 'v[80:83]'}")
for t in range(8): pv(t)
A(f"v_mov_b32 v77, v80\nv_mov_b32 v78, {vTAG}\nv_mov_b32 v79, {vTAG}")
if opt["statpos"] == 0: statstore()
fill = []
for r in range(4):
    for jj in range(4): fill += latpack(0, r, jj)
    fill += latstore(0, r)
pv(8)
mf = [(t, u) for t in range(9, 16) for u in range(2)]
per = -(-len(fill) // len(mf))
for k, (t, u) in enumerate(mf):
    A(f"v_mfma_f32_16x16x32_bf16 v[{ACC+4*t}:{ACC+4*t+3}], v[{64+4*u}:{67+4*u}], a[{128+8*t+4*u}:{131+8*t+4*u}], {'0' if u==0 else f'v[{ACC+4*t}:{ACC+4*t+3}]'}")
    for x in fill[k*per:(k+1)*per]: A(x)
if opt["statpos"] == 1: statstore()
for r in range(4):
    for jj in range(4):
        for x in latpack(1, r, jj): A(x)
    for x in latstore(1, r): A(x)
if opt["statpos"] == 2: statstore()
stamp(9)
if opt["statpos"] == 3:
    A("s_waitcnt vmcnt(4)"); statstore()
if opt["statpos"] == 4:
    A("s_waitcnt vmcnt(0)"); statstore()
if opt["ackwait"]: A("s_waitcnt vmcnt(0)")
A("s_cmp_ge_u32 s31, 112\ns_cbranch_scc1 L_awo")
srd(R2, 22, 1792*896)
A(f"s_mul_i32 s55, s31, 14336\ns_lshl_b32 s62, s3, 10\ns_add_u32 s55, s55, s62\ns_add_u32 s69, s62, {WD}")
A("s_cmp_ge_u32 s3, 2\ns_cbranch_scc1 L_ad3")
A("s_add_u32 s62, s55, 12288")
dma("v40", R2, "s62", "s69", 12288)
A.label("L_ad3")
for i in range(3):
    if i: A("s_add_u32 s55, s55, 4096")
    dma("v40", R2, "s55", "s69", 4096*i)
A(f"v_lshrrev_b32 v43, 2, {vN}\nv_and_b32 v44, 3, v0")
A(f"v_lshlrev_b32 v45, 8, v43\nv_lshl_add_u32 v45, {vG}, 6, v45\nv_lshl_add_u32 v45, v44, 4, v45\ns_mul_i32 s63, s31, {SS}\ns_add_u32 s63, s63, {HP}")
A(f"buffer_load_dwordx4 v[68:71], v45, {WS}, s63 offen sc1")
A.label("L_awo")
wo_dmas()
A(f"v_lshrrev_b32 v43, 2, {vN}\nv_lshlrev_b32 v42, 1, v43\nv_add_u32 v42, v42, v12\nv_mul_u32_u24 v42, {FS}, v42\nv_and_b32 v44, 1, {vG}\nv_lshl_add_u32 v42, v44, 6, v42\nv_and_b32 v44, 3, v0\nv_lshl_add_u32 v42, v44, 4, v42")
A("s_lshl_b32 s66, s3, 2\ns_cmp_eq_u32 s3, 3\ns_cselect_b32 s66, 11, s66")
A(f"s_mul_i32 s64, s66, {2*FS}\ns_lshl_b32 s62, s31, 7\ns_add_u32 s64, s64, s62")
A("s_cmp_ge_u32 s3, 2\ns_cselect_b32 s67, 0x0fff0fff, -1")
A(f"v_lshl_add_u32 v46, {vG}, 2, v43\nv_mul_u32_u24 v46, 896, v46\nv_lshl_add_u32 v46, v44, 3, v46\ns_lshl_b32 s62, s66, 6\nv_add_u32 v46, s62, v46")
A(f"v_add_u32 v47, {WO}, v46\nv_add_u32 v46, {WD}, v46")
def merged_publish(dbase, base_off):
    for t in range(8):
        setexec16(3 << (2*t)); tag_insert(64, dbase+4*t)
    A(f"s_mov_b32 exec_lo, s67\ns_mov_b32 exec_hi, s67\ns_add_u32 s62, s64, {base_off}")
    A(f"buffer_store_dwordx4 v[64:67], v42, {WS}, s62 offen sc1")
    A("s_mov_b64 exec, -1")
A("s_cmp_ge_u32 s31, 112\ns_cbranch_scc1 L_aout")
spin_init()
A("s_waitcnt vmcnt(7)")
A.label("L_ah")
tag_check_acc(68, 53, 54, True, 55)
A("v_cmp_ne_u32 vcc, 0, v55\ns_cbranch_vccz L_ah2")
A(f"buffer_load_dwordx4 v[68:71], v45, {WS}, s63 offen sc1")
spin_check()
A("s_waitcnt vmcnt(0)\ns_branch L_ah")
A.label("L_ah2")
A("s_barrier")
for t in range(8): A(f"ds_read_b64_tr_b16 v[{96+2*t}:{97+2*t}], v46 offset:{32*t}")
for k in (4, 8):
    for r in range(4): A(f"v_add_f32_dpp v{68+r}, v{68+r}, v{68+r} row_ror:{k} {DPPM}")
for r in range(4): bf16r(68+r, 68+r)
for r in range(4):
    A(f"v_mov_b32_dpp v{72+r}, v{68+r} quad_perm:[0,1,0,1] {DPPM}\nv_mov_b32_dpp v{76+r}, v{68+r} quad_perm:[2,3,2,3] {DPPM}")
c1 = -2.0*0.7978845608028654*1.4426950408889634; c2 = c1*0.044715
A(f"s_mov_b32 s62, {hex(f2u(c2))}\nv_mov_b32 v84, {hex(f2u(c1))}")
for r in range(4):
    A(f"v_mul_f32 v{80+r}, v{72+r}, v{72+r}\nv_fma_f32 v{80+r}, v{80+r}, s62, v84\nv_mul_f32 v{80+r}, v{80+r}, v{72+r}")
for r in range(4): A(f"v_exp_f32 v{80+r}, v{80+r}")
for r in range(4): A(f"v_add_f32 v{80+r}, 1.0, v{80+r}")
for r in range(4): A(f"v_rcp_f32 v{80+r}, v{80+r}")
for r in range(4): A(f"v_mul_f32 v{80+r}, v{80+r}, v{72+r}")
for r in range(4): bf16r(80+r, 80+r)
for r in range(4): A(f"v_mul_f32 v{80+r}, v{80+r}, v{76+r}")
A("v_cvt_pk_bf16_f32 v80, v80, v81\nv_cvt_pk_bf16_f32 v81, v82, v83")
A("s_waitcnt lgkmcnt(0)")
for t in range(8): A(f"v_mfma_f32_16x16x16_bf16 v[{128+4*t}:{131+4*t}], v[{96+2*t}:{97+2*t}], v[80:81], 0")
merged_publish(128, YP)
A.flush()
stamp(10)
A("s_waitcnt vmcnt(1)\ns_barrier")
A("s_branch L_aout2")
A.label("L_aout")
A("s_waitcnt vmcnt(0)\ns_barrier")
A.label("L_aout2")
stamp(11)
for t in range(8):
    for z in range(2): A(f"ds_read_b64_tr_b16 v[{96+4*t+2*z}:{97+4*t+2*z}], v47 offset:{32*t+16*896*z}")
A(f"v_lshrrev_b32 v45, 1, {vN}\nv_lshlrev_b32 v45, 8, v45\nv_lshl_add_u32 v45, {vG}, 6, v45\nv_lshl_add_u32 v45, v14, 4, v45\ns_mul_i32 s63, s31, {SS}\ns_add_u32 s63, s63, {CTXP}")
def ctx_first(b):
    for r in range(8): A(f"v_add_f32_dpp v{68+r}, v{b+r}, v{b+r} row_ror:2 {DPPM}")
pipe_poll("L_ac", [("v45", "s63", 0), ("v45", "s63", 32)], [164, 172], ctx_first)
stamp(12)
for k in (4, 8):
    for r in range(8): A(f"v_add_f32_dpp v{68+r}, v{68+r}, v{68+r} row_ror:{k} {DPPM}")
for r in range(4): A(f"v_cvt_pk_bf16_f32 v{80+r}, v{68+2*r}, v{69+2*r}")
A("s_waitcnt lgkmcnt(0)")
for t in range(8): A(f"v_mfma_f32_16x16x32_bf16 v[{128+4*t}:{131+4*t}], v[{96+4*t}:{99+4*t}], v[80:83], 0")
merged_publish(128, OUTP)
stamp(13)
A.label("L_end")
if STAMPS:
    A("s_mov_b64 exec, -1")
    A("s_memrealtime s[98:99]\ns_waitcnt lgkmcnt(0)")
    A(f"v_writelane_b32 {vST}, s98, 15")
    A(f"s_lshl_b32 s62, s2, 2\ns_add_u32 s62, s62, s3\ns_lshl_b32 s62, s62, 8\ns_add_u32 s62, s62, {STAMP}\nv_lshlrev_b32 v4, 2, v0")
    A(f"buffer_store_dword {vST}, v4, {WS}, s62 offen")
    if STAMPS == 2:
        wmap = {0:0, 3:1, 5:2, 7:3, 8:4, 10:5, 12:6, 15:15}
        amap = {0:0, 4:8, 6:9, 7:10, 9:11, 11:12, 12:13, 13:14, 15:15}
        A("v_mov_b32 v5, 63\nv_mov_b32 v6, 63")
        for k, sl in wmap.items(): A(f"s_mov_b32 s63, {sl}\nv_writelane_b32 v5, s63, {k}")
        for k, sl in amap.items(): A(f"s_mov_b32 s63, {sl}\nv_writelane_b32 v6, s63, {k}")
        A(f"v_readlane_b32 s63, {vST}, 0\ns_nop 3\ns_mov_b32 s64, s63\ns_not_b32 s63, s63\nv_writelane_b32 {vST}, s63, 0")
        A(f"v_writelane_b32 {vST}, s64, 16\ns_mov_b32 s63, 7\nv_writelane_b32 v5, s63, 16\nv_writelane_b32 v6, s63, 16")
        A("s_cmp_ge_u32 s2, 128\ns_cselect_b64 vcc, -1, 0\ns_nop 1\nv_cndmask_b32 v5, v5, v6, vcc\nv_lshlrev_b32 v5, 2, v5")
        A("s_mov_b64 exec, 0x1ffff")
        A.raw(f"  global_atomic_umax v5, {vST}, s[26:27] sc1")
A.label("L_end0")
A("s_endpgm")
A.raw(f".fill ({opt['codekb']}*1024 - (. - {NAME}))/4, 4, 0xbf800000")
A.raw('.section .rodata,"a"\n.p2align 6')
A.raw(f""".amdhsa_kernel {NAME}
  .amdhsa_next_free_vgpr 512
  .amdhsa_next_free_sgpr 102
  .amdhsa_accum_offset 256
  .amdhsa_group_segment_fixed_size 0
  .amdhsa_kernarg_size 104
  .amdhsa_user_sgpr_count 2
  .amdhsa_user_sgpr_kernarg_segment_ptr 1
  .amdhsa_system_sgpr_workgroup_id_x 1
.end_amdhsa_kernel""")
sys.stdout.write(A.text())
```

```python
import sys, struct
from asmdsl import Asm
NAME = "recurrent_scan__compressed_kv_cla__geglu_ffn__decode_kernel"
opt = dict(stamps=0, round_s=0, nt="nt", npre=0, codekb=20, qbar=27, thr_g=7, thr_uv=0, adepth=1, athr=4, statpos=1, psleep=1, early_wo=0, tokpos=31, wdepth=8, w2depth=0, adepth2=8, wd0=8, tok1pos=-1, apre=1, ackwait=1, tlb=1, fpos=23, eps=0, hold=0, holdwg=-1)
for a in sys.argv[1:]:
    k, v = a.split("="); opt[k] = v if k == "nt" else int(v)
NT = opt["nt"] if opt["nt"] != "none" else ""
STAMPS = opt["stamps"]; NPRE = opt["npre"]
def f2u(x): return struct.unpack("<I", struct.pack("<f", x))[0]
SS = 16640
MB = 0x200000
CTXP, HP, QP, QA, STAT, QAF, TOK = MB, MB+2048, MB+3072, MB+3584, MB+4096, MB+4352, MB+4480
FS = 73984
OUTP = 0x500000; YP = OUTP + 16384
LAT, STAMP = 0x800000, 0xE00000
WSSZ = 0x1000000
XN, EX, TT, BIG = 0, 1792, 4096, 32768
LDSSZ = 163840
DPPM = "row_mask:0xf bank_mask:0xf"
QW = 3
A = Asm()
hdr = open("recurrent_scan__compressed_kv_cla__geglu_ffn__decode.s.ref").read().split("; Override launch")[0]
A.raw(hdr.rstrip())
A.raw(f"; @launch grid=(256,1,1) block=(256,1,1) lds={LDSSZ}")
A.raw('.amdgcn_target "amdgcn-amd-amdhsa--gfx950"\n.text')
A.raw(f".globl {NAME}\n.p2align 8\n.type {NAME},@function\n{NAME}:")
WS = "s[32:35]"; R1 = "s[36:39]"; R2 = "s[40:43]"
vN, vG, vTAG = "v1", "v2", "v3"
vST = "v255"
def stamp(k):
    if not STAMPS: return
    A(f"s_memrealtime s[98:99]\ns_waitcnt lgkmcnt(0)\nv_writelane_b32 {vST}, s98, {k}")
def srd(r, lo, size):
    b = int(r[2:4])
    A(f"s_mov_b32 s{b}, s{lo}\ns_mov_b32 s{b+1}, s{lo+1}\ns_mov_b32 s{b+2}, {size}\ns_mov_b32 s{b+3}, 0x20000")
def setexec16(m):
    m |= m << 16
    A(f"s_mov_b32 exec_lo, {hex(m)}\ns_mov_b32 exec_hi, {hex(m)}")
def tag_insert(dst, src):
    for r in range(4): A(f"v_perm_b32 v{dst+r}, v{src+r}, {vTAG}, s{44+r}")
def tag_check_acc(base, t0, t1, first, acc):
    A(f"v_perm_b32 v{t0}, v{base+1}, v{base}, s48\nv_perm_b32 v{t1}, v{base+3}, v{base+2}, s49")
    if first: A(f"v_or_b32 v{t0}, v{t0}, v{t1}\nv_xor_b32 v{acc}, v{t0}, {vTAG}")
    else: A(f"v_or_b32 v{t0}, v{t0}, v{t1}\nv_xor_b32 v{t0}, v{t0}, {vTAG}\nv_or_b32 v{acc}, v{acc}, v{t0}")
def spin_init(): A("s_mov_b32 s96, 400000")
def spin_check(): A("s_sub_u32 s96, s96, 1\ns_cbranch_scc1 L_end")
def bf16r(dst, src):
    A(f"v_cvt_pk_bf16_f32 v{dst}, v{src}, v{src}\nv_and_b32 v{dst}, 0xffff0000, v{dst}")
def row_red(x, op="v_add_f32", steps=(8,4,2,1)):
    for k in steps: A(f"{op}_dpp v{x}, v{x}, v{x} row_ror:{k} {DPPM}")
def swap_red(x, t, which, op="v_add_f32"):
    A(f"v_mov_b32 v{t}, v{x}\nv_permlane{which}_swap_b32 v{t}, v{x}\n{op} v{x}, v{x}, v{t}")
def dma(voff, rsrc, soff, ldsaddr_s, ldsadd):
    A(f"s_add_u32 m0, {ldsaddr_s}, {ldsadd}")
    A(f"buffer_load_dwordx4 {voff}, {rsrc}, {soff} offen {NT} lds")
def pipe_poll(lab, loads, sets, first_step, word2=False):
    n = len(loads)
    def issue(base):
        for i, (vo, so, off) in enumerate(loads):
            A(f"buffer_load_dwordx4 v[{base+4*i}:{base+4*i+3}], {vo}, {WS}, {so} offen offset:{off} sc1")
    def check(base):
        if word2: A(f"v_cmp_ne_u32 vcc, v{base+2}, {vTAG}"); return
        for i in range(n): tag_check_acc(base+4*i, 53, 54, i == 0, 55)
        A("v_cmp_ne_u32 vcc, 0, v55")
    spin_init()
    issue(sets[0])
    if opt["psleep"]: A(f"s_sleep {opt['psleep']}")
    A.label(lab)
    issue(sets[1])
    A(f"s_waitcnt vmcnt({n})")
    check(sets[0])
    A(f"s_cbranch_vccz {lab}_x")
    issue(sets[0])
    spin_check()
    A(f"s_waitcnt vmcnt({n})")
    check(sets[1])
    A(f"s_cbranch_vccnz {lab}")
    first_step(sets[1])
    A(f"s_branch {lab}_j")
    A.label(lab+"_x")
    first_step(sets[0])
    A.label(lab+"_j")
def xn_operands(dst, mask, mul, n, bsel="v14"):
    A(f"v_mul_u32_u24 v15, 896, {bsel}\nv_lshl_add_u32 v15, {vG}, 3, v15\ns_and_b32 s62, s2, {mask}\ns_mul_i32 s62, s62, {mul}\nv_add_u32 v15, s62, v15")
    for s in range(n): A(f"ds_read_b64 v[{dst+2*s}:{dst+1+2*s}], v15 offset:{32*s}")
def tr128_addr(dst):
    A(f"v_lshrrev_b32 v39, 2, {vN}\nv_lshl_add_u32 v39, {vG}, 2, v39")
    A(f"v_and_b32 v40, 6, v39\nv_bfe_u32 v41, v0, 1, 1\nv_xor_b32 v40, v40, v41")
    A(f"v_lshlrev_b32 v{dst}, 7, v39\nv_lshl_add_u32 v{dst}, v40, 4, v{dst}\nv_lshl_add_u32 v{dst}, v14, 3, v{dst}\nv_add_u32 v{dst}, {TT}, v{dst}")

def mktag():
    A(f"s_add_u32 s30, s30, 0x01010101\nv_mov_b32 {vTAG}, s30")
def lsb_patterns(T, C=None):
    A(f"v_and_b32 v39, 3, v0\nv_lshlrev_b32 v39, 3, v39\nv_lshrrev_b32 v39, v39, {vTAG}")
    for j in range(4):
        A(f"v_bfe_u32 v{T+j}, v39, {2*j}, 1\nv_bfe_u32 v13, v39, {2*j+1}, 1\nv_lshl_or_b32 v{T+j}, v13, 16, v{T+j}")
        if C is not None: A(f"v_xor_b32 v{C+j}, 0x10001, v{T+j}")
def tok_wait(lab, off):
    A(f"s_mul_i32 s62, s31, {SS}\ns_add_u32 s62, s62, {off}\nv_mov_b32 v13, 0")
    spin_init()
    A.label(lab)
    A(f"buffer_load_dword v39, v13, {WS}, s62 offen sc1")
    spin_check()
    A(f"s_waitcnt vmcnt(0)\nv_cmp_ne_u32 vcc, v39, {vTAG}\ns_cbranch_vccnz {lab}")
def tok_send(off, wave):
    tok_send.n += 1
    A(f"s_cmp_lg_u32 s3, {wave}\ns_cbranch_scc1 L_ts{tok_send.n}")
    A(f"s_mul_i32 s62, s31, {SS}\ns_add_u32 s62, s62, {off}\nv_mov_b32 v13, 0\ns_mov_b64 exec, 1")
    A(f"buffer_store_dword {vTAG}, v13, {WS}, s62 offen sc1\ns_mov_b64 exec, -1")
    A.label(f"L_ts{tok_send.n}")
tok_send.n = 0
def tlb_touch():
    A(f"v_and_b32 v13, 7, v0\nv_lshlrev_b32 v13, 21, v13\nv_add_u32 v13, 0x1fff80, v13")
    A(f"buffer_load_dword v254, v13, {WS}, 0 offen")
def tlb_all(shift):
    A(f"v_lshlrev_b32 v13, {shift}, v0")
    for (sp, size) in ((12, 1024*8192), (14, 16*256*896), (18, 448*3584), (20, 448*3584), (22, 1792*896), (24, 1792), (6, 2*4096*2048)):
        A(f"v_min_u32 v15, {size-4}, v13\nglobal_load_dword v254, v15, s[{sp}:{sp+1}] {NT}")
if STAMPS: A("s_memrealtime s[98:99]")
if opt["hold"]: A("s_memrealtime s[100:101]")
A(f"s_cmp_ge_u32 s2, 256\ns_cbranch_scc1 L_end0")
A("s_load_dwordx16 s[4:19], s[0:1], 0\ns_load_dwordx8 s[20:27], s[0:1], 64\ns_load_dwordx2 s[28:29], s[0:1], 96")
A(f"v_lshrrev_b32 v4, 6, v0\nv_and_b32 v0, 63, v0\nv_readfirstlane_b32 s3, v4")
A(f"v_and_b32 {vN}, 15, v0\nv_lshrrev_b32 {vG}, 4, v0\nv_and_b32 v14, 1, v0")
if STAMPS: A(f"v_mov_b32 {vST}, 0")
A("s_and_b32 s31, s2, 127")
A("v_lshrrev_b32 v12, 5, v0\nv_and_b32 v11, 31, v0")
A("s_mov_b32 s34, %d\ns_mov_b32 s35, 0x20000\ns_mov_b32 s43, 0x20000" % WSSZ)
def consts():
    A("s_mov_b32 s44, 0x07060500\ns_mov_b32 s45, 0x07060501\ns_mov_b32 s46, 0x07060502\ns_mov_b32 s47, 0x07060503")
    A("s_mov_b32 s48, 0x0c0c0400\ns_mov_b32 s49, 0x04000c0c")
def code_prefetch(lab, mul):
    A("s_getpc_b64 s[50:51]")
    A.label(lab)
    A(f"s_sub_u32 s50, s50, {lab}-{NAME}\ns_subb_u32 s51, s51, 0")
    A(f"s_lshr_b32 s52, s31, 3\ns_mul_i32 s52, s52, {mul}\ns_add_u32 s52, s52, s3\ns_min_u32 s52, s52, {opt['codekb']-1}\ns_lshl_b32 s52, s52, 10")
    A(f"v_lshlrev_b32 v5, 4, v0\nv_add_u32 v4, s52, v5")
    A("global_load_dwordx4 v[250:253], v4, s[50:51]")
A("s_cmp_ge_u32 s2, 128\ns_cbranch_scc1 L_A")

A("v_lshrrev_b32 v7, 3, v0\nv_and_b32 v6, 6, v7\nv_and_b32 v8, 7, v0\nv_xor_b32 v6, v6, v8\nv_lshlrev_b32 v6, 4, v6")
A("s_and_b32 s60, s31, 15\ns_lshr_b32 s61, s31, 4")
A(f"s_lshl_b32 s59, s3, 14\ns_add_u32 s59, s59, {BIG}")
code_prefetch("L_pc1", 4)
A("v_lshl_add_u32 v9, v7, 13, v6\nv_mul_u32_u24 v10, 28, v0")
A("s_and_b32 s53, s2, 1\ns_lshr_b32 s54, s2, 1")
A(f"s_mul_i32 s55, s53, {224*8192}\ns_lshl_b32 s56, s54, 7\ns_add_u32 s55, s55, s56\ns_lshl_b32 s56, s3, 16\ns_add_u32 s55, s55, s56")
A(f"s_lshl_b32 s57, s3, 10\ns_add_u32 s57, s57, {TT}")
A("s_mov_b32 s38, %d\ns_mov_b32 s39, 0x20000" % (448*8192))
A("s_lshl_b32 s58, s61, 7\ns_lshl_b32 s62, s60, 9\ns_lshl_b32 s58, s58, 13\ns_add_u32 s58, s58, s62")
A("s_and_b32 s62, s3, 1\ns_lshl_b32 s62, s62, 16\ns_lshr_b32 s63, s3, 1\ns_lshl_b32 s63, s63, 19\ns_add_u32 s62, s62, s63\ns_add_u32 s56, s58, s62")
A("v_xor_b32 v11, v11, v12\nv_lshlrev_b32 v11, 4, v11\nv_lshl_add_u32 v11, v12, 14, v11")
A("s_mov_b32 s42, %d" % (1024*8192))
A("s_waitcnt lgkmcnt(0)")
A(f"s_cmp_eq_u32 s3, {QW}\ns_cbranch_scc0 L_nx")
A("global_load_dwordx4 v[16:19], v10, s[4:5]\nglobal_load_dwordx3 v[20:22], v10, s[4:5] offset:16")
A.label("L_nx")
A("s_mov_b32 s36, s8\ns_mov_b32 s37, s9")
for i in range(7):
    if i: A(f"s_add_u32 s55, s55, {4*65536}")
    dma("v9", R1, "s55", "s57", i*4096)
if STAMPS: A(f"v_writelane_b32 {vST}, s98, 0")
A("s_load_dword s30, s[28:29], 0\ns_mov_b32 s32, s28\ns_mov_b32 s33, s29\ns_mov_b32 s40, s10\ns_mov_b32 s41, s11")
consts()
A(f"s_cmp_eq_u32 s3, {QW}\ns_cbranch_scc0 L_nln")
A(f"s_waitcnt vmcnt(7)")
stamp(1)
for i in range(7):
    A(f"v_lshlrev_b32 v{24+2*i}, 16, v{16+i}\nv_and_b32 v{25+2*i}, 0xffff0000, v{16+i}")
A("v_add_f32 v40, v24, v25\nv_add_f32 v41, v26, v27")
for i in range(4, 14, 2): A(f"v_add_f32 v40, v40, v{24+i}\nv_add_f32 v41, v41, v{25+i}")
A("v_add_f32 v40, v40, v41")
row_red(40); swap_red(40, 41, 16)
A(f"v_mul_f32 v40, {hex(f2u(1.0/448))}, v40")
A("v_sub_f32 v42, v24, v40\nv_sub_f32 v43, v25, v40\nv_mul_f32 v44, v42, v42\nv_mul_f32 v45, v43, v43")
for i in range(2, 14, 2):
    A(f"v_sub_f32 v42, v{24+i}, v40\nv_sub_f32 v43, v{25+i}, v40\nv_fmac_f32 v44, v42, v42\nv_fmac_f32 v45, v43, v43")
A("v_add_f32 v44, v44, v45")
row_red(44); swap_red(44, 45, 16)
A(f"v_mul_f32 v44, {hex(f2u(1.0/448))}, v44")
bf16r(40, 40); bf16r(44, 44)
A(f"v_add_f32 v44, {hex(f2u(1e-5))}, v44"); bf16r(44, 44)
A("v_sqrt_f32 v44, v44"); bf16r(44, 44)
A("v_rcp_f32 v44, v44")
for i in range(7):
    A(f"v_sub_f32 v42, v{24+2*i}, v40\nv_sub_f32 v43, v{25+2*i}, v40\nv_cvt_pk_bf16_f32 v42, v42, v43")
    A(f"v_and_b32 v43, 0xffff0000, v42\nv_lshlrev_b32 v42, 16, v42\nv_mul_f32 v42, v42, v44\nv_mul_f32 v43, v43, v44\nv_cvt_pk_bf16_f32 v{16+i}, v42, v43")
for i in range(3): A(f"ds_write2_b32 v10, v{16+2*i}, v{17+2*i} offset0:{2*i} offset1:{2*i+1}")
A("ds_write_b32 v10, v22 offset:24")
A.label("L_nln")
WD0 = opt["wd0"]
def wuk_dma(i):
    if opt["wdepth"] and i >= max(opt["wdepth"], WD0): A(f"s_waitcnt vmcnt({opt['wdepth']-1})")
    A(f"v_xor_b32 v13, {2*(i&7)*16}, v11")
    A(f"s_add_u32 s62, s56, {(16*((i&7)>>1)+4*(i&1)+(i>>3))*8192}")
    dma("v13", R2, "s62", "s59", i*1024)
for i in range(WD0):
    if i == WD0 - 1:
        A("s_waitcnt lgkmcnt(0)")
        mktag()
    wuk_dma(i)
tr128_addr(44)
A("s_lshl_b32 s62, s3, 5\nv_xor_b32 v44, s62, v44")
A("v_bfe_u32 v45, v0, 2, 1\nv_and_b32 v46, 3, v0\nv_or_b32 v46, 0x07060500, v46")
A(f"s_mul_i32 s63, s31, {SS}\ns_lshl_b32 s62, s3, 6\ns_add_u32 s63, s63, s62\ns_add_u32 s63, s63, {QP}")
A(f"v_lshlrev_b32 v40, 8, {vG}\nv_lshl_add_u32 v40, {vN}, 2, v40")
if opt["tlb"]: tlb_touch()
A(f"s_waitcnt vmcnt({WD0+min(1,opt['tlb'])})\ns_barrier")
stamp(2)
xn_operands(96, 1, 448, 14, "v45")
for s in range(14): A(f"ds_read_b64_tr_b16 v[{64+2*s}:{65+2*s}], v44 offset:{2048*s}")
for s in range(7):
    A(f"s_waitcnt lgkmcnt({12-2*s})")
    A(f"v_mfma_f32_16x16x32_bf16 v[128:131], v[{96+4*s}:{99+4*s}], v[{64+4*s}:{67+4*s}], {'0' if s==0 else 'v[128:131]'}")
A(f"v_perm_b32 v48, v128, {vTAG}, v46")
A("s_mov_b32 exec_hi, 0")
A(f"buffer_store_dword v48, v40, {WS}, s63 offen sc1")
A("s_mov_b64 exec, -1")
stamp(3)
for i in range(WD0, 16): wuk_dma(i)
A(f"v_and_b32 v40, 31, v0\nv_lshlrev_b32 v40, 4, v40\nv_mul_u32_u24 v41, {SS}, v12\nv_add_u32 v40, v40, v41")
A(f"s_lshl_b32 s63, s60, 2\ns_add_u32 s63, s63, s3\ns_mul_i32 s63, s63, {2*SS}\ns_add_u32 s63, s63, {QP}")
A(f"buffer_load_dwordx4 v[44:47], v40, {WS}, s63 offen sc1")
A(f"v_xor_b32 v41, {vG}, {vN}\nv_lshlrev_b32 v41, 4, v41\nv_lshl_add_u32 v41, {vN}, 9, v41\nv_add_u32 v41, s59, v41")
A("v_xor_b32 v42, 64, v41\nv_xor_b32 v43, 128, v41\nv_xor_b32 v52, 192, v41")
adr = [41, 42, 43, 52]
A(f"v_and_b32 v56, 1, {vG}\nv_lshlrev_b32 v56, 9, v56\nv_lshl_add_u32 v56, {vN}, 3, v56\nv_lshl_add_u32 v56, v12, 2, v56")
A(f"s_lshl_b32 s62, s3, 7\ns_add_u32 s62, s62, {EX}\nv_add_u32 v56, s62, v56")
A(f"v_bfe_u32 v57, v0, 2, 1\nv_lshlrev_b32 v57, 9, v57\nv_lshl_add_u32 v57, {vG}, 4, v57")
A(f"v_lshlrev_b32 v58, 8, {vG}\nv_lshl_add_u32 v58, {vN}, 2, v58")
A(f"s_mul_i32 s64, s31, {SS}\ns_lshl_b32 s62, s3, 6\ns_add_u32 s64, s64, s62\ns_add_u32 s64, s64, {QA}")
for t in range(2):
    A(f"s_waitcnt vmcnt({9-8*t})")
    for s in range(8): A(f"ds_read_b128 a[{32*t+4*s}:{32*t+4*s+3}], v{adr[s&3]} offset:{t*8192+(s>>2)*256}")
spin_init()
A.label("L_wq")
A("s_waitcnt vmcnt(0)")
tag_check_acc(44, 53, 54, True, 55)
A("v_cmp_ne_u32 vcc, 0, v55\ns_cbranch_vccz L_wq_ok")
spin_check()
A(f"buffer_load_dwordx4 v[44:47], v40, {WS}, s63 offen sc1")
A("s_branch L_wq")
A.label("L_wq_ok")
stamp(4)
A("v_permlane32_swap_b32 v44, v46\nv_permlane32_swap_b32 v45, v47\nv_add_f32 v44, v44, v46\nv_add_f32 v45, v45, v47")
A("v_cvt_pk_bf16_f32 v44, v44, v45\nds_write_b32 v56, v44")
A("s_waitcnt lgkmcnt(0)\ns_barrier")
for s in range(8): A(f"ds_read_b128 v[{64+4*s}:{67+4*s}], v57 offset:{EX+64*s}")
for s in range(8):
    A(f"s_waitcnt lgkmcnt({7-s})")
    for t in range(2):
        A(f"v_mfma_f32_16x16x32_bf16 v[{96+4*t}:{99+4*t}], v[{64+4*s}:{67+4*s}], a[{32*t+4*s}:{32*t+4*s+3}], {'0' if s==0 else f'v[{96+4*t}:{99+4*t}]'}")
A("v_mul_f32 v96, 0x3d800000, v96\nv_mul_f32 v100, 0x3d800000, v100\nv_cvt_pk_bf16_f32 v48, v96, v100")
A("s_mov_b32 exec_hi, 0")
A(f"buffer_store_dword v48, v58, {WS}, s64 offen sc1")
A("s_mov_b64 exec, -1\ns_waitcnt vmcnt(0)\ns_barrier")
tok_send(QAF, 0)
stamp(5)
if opt["tokpos"] >= 0:
    tok_wait("L_tok", TOK)
    stamp(13)
A("s_cmp_ge_u32 s31, 112\ns_cbranch_scc1 L_wuv")
A("s_cmp_ge_u32 s3, 2\ns_cselect_b32 s36, s20, s18\ns_cselect_b32 s37, s21, s19")
A(f"s_mov_b32 s38, {448*3584}\ns_mov_b32 s39, 0x20000")
A("v_mul_u32_u24 v9, 3584, v7\nv_add_u32 v9, v9, v6")
A(f"s_and_b32 s53, s2, 3\ns_mul_i32 s55, s53, {112*3584}\ns_lshr_b32 s56, s31, 2\ns_lshl_b32 s62, s56, 7\ns_add_u32 s55, s55, s62")
A(f"s_and_b32 s62, s3, 1\ns_mul_i32 s62, s62, {7*8*3584}\ns_add_u32 s55, s55, s62")
A(f"s_mul_i32 s57, s3, 7168\ns_add_u32 s57, s57, {TT}")
for i in range(7):
    if i >= opt["thr_g"]: A(f"s_waitcnt vmcnt({opt['thr_g']-1})")
    if i: A(f"s_add_u32 s55, s55, {8*3584}")
    dma("v9", R1, "s55", "s57", i*1024)
A.label("L_wuv")
srd(R2, 12, 1024*8192)
A("v_and_b32 v8, 7, v0\nv_lshlrev_b32 v8, 4, v8\nv_lshl_add_u32 v11, v7, 13, v8")
A("s_lshl_b32 s58, s61, 20\ns_lshl_b32 s62, s60, 9\ns_add_u32 s58, s58, s62\ns_lshl_b32 s62, s3, 7\ns_add_u32 s58, s58, s62")
A("s_add_u32 s59, s59, 65536")
for i in range(16):
    if opt["w2depth"]: A(f"s_waitcnt vmcnt({opt['w2depth']-1})")
    A(f"v_xor_b32 v13, {2*((i>>1)&3)*16}, v11")
    A(f"s_add_u32 s62, s58, {i*65536}")
    dma("v13", R2, "s62", "s59", i*1024)
A(f"v_mul_u32_u24 v39, 448, v14\nv_bfe_u32 v40, v0, 1, 1\nv_lshl_add_u32 v39, v40, 4, v39\nv_bfe_u32 v40, v0, 2, 1\nv_lshl_add_u32 v39, v40, 2, v39\nv_add_u32 v39, v39, {vG}")
A("s_min_u32 s62, s31, 27\ns_lshr_b32 s63, s62, 1\ns_lshl_b32 s63, s63, 5\ns_and_b32 s62, s62, 1\ns_lshl_b32 s62, s62, 3\ns_add_u32 s62, s62, s63\nv_add_u32 v39, s62, v39\nv_lshlrev_b32 v200, 1, v39")
A("global_load_ushort v201, v200, s[4:5]\nglobal_load_ushort v202, v200, s[24:25]")
A("s_cmp_ge_u32 s31, 112\ns_cbranch_scc1 L_wuv2")
xn_operands(24, 3, 224, 7)
tr128_addr(38)
A("s_lshl_b32 s62, s3, 5\nv_xor_b32 v38, s62, v38")
A(f"v_lshlrev_b32 v40, 6, {vG}\nv_lshl_add_u32 v40, {vN}, 4, v40")
A(f"s_lshl_b32 s62, s56, 2\ns_add_u32 s62, s62, s3\ns_mul_i32 s62, s62, {SS}\ns_lshl_b32 s63, s53, 8\ns_add_u32 s62, s62, s63\ns_add_u32 s62, s62, {HP}")
A("s_waitcnt vmcnt(18) lgkmcnt(0)\ns_barrier")
for mat in range(2):
    for s in range(7): A(f"ds_read_b64_tr_b16 v[{64+14*mat+2*s}:{65+14*mat+2*s}], v38 offset:{14336*mat+2048*s}")
for mat in range(2):
    for s in range(7):
        A(f"s_waitcnt lgkmcnt({13-7*mat-s})")
        A(f"v_mfma_f32_16x16x16_bf16 v[{96+4*mat}:{99+4*mat}], v[{64+14*mat+2*s}:{65+14*mat+2*s}], v[{24+2*s}:{25+2*s}], {'0' if s==0 else f'v[{96+4*mat}:{99+4*mat}]'}")
tag_insert(48, 96)
setexec16(0xc); tag_insert(48, 100); setexec16(0xf)
A(f"buffer_store_dwordx4 v[48:51], v40, {WS}, s62 offen sc1")
A("s_mov_b64 exec, -1")
A.flush()
A.label("L_wuv2")
stamp(6)
A(f"v_lshrrev_b32 v39, 2, {vN}\nv_lshl_add_u32 v40, v39, 4, {vG}\nv_lshlrev_b32 v40, 7, v40")
A(f"v_lshlrev_b32 v39, 1, v39\nv_bfe_u32 v41, v0, 1, 1\nv_xor_b32 v39, v39, v41\nv_lshl_add_u32 v40, v39, 4, v40\nv_lshl_add_u32 v40, v14, 3, v40\nv_add_u32 v41, s59, v40")
A("v_xor_b32 v42, 32, v41\nv_xor_b32 v43, 64, v41\nv_xor_b32 v52, 96, v41")
lsb_patterns(24)
A("s_waitcnt vmcnt(0)")
for t in range(4):
    for s in range(4):
        for z in range(2):
            b = 64+16*t+4*s+2*z
            A(f"ds_read_b64_tr_b16 a[{b}:{b+1}], v{adr[t]} offset:{s*512+z*8192}")
RED = BIG; MLB = BIG + 4096
A(f"v_lshlrev_b32 v40, 4, v0\nv_and_b32 v41, 31, v0\nv_mul_u32_u24 v41, {SS}, v41")
A(f"s_mul_i32 s97, s3, {32*SS}\ns_lshl_b32 s62, s60, 4\ns_add_u32 s97, s97, s62\ns_add_u32 s97, s97, {STAT}")
A(f"s_lshl_b32 s56, s31, 15\ns_lshl_b32 s57, s3, 13\ns_add_u32 s56, s56, s57\ns_add_u32 s56, s56, {LAT}\ns_add_u32 s57, s56, 4096")
A(f"v_lshlrev_b32 v61, 2, {vG}")
A(f"v_and_b32 v62, 3, v0\nv_lshlrev_b32 v62, 4, v62\nv_and_b32 v55, 12, v0\nv_add3_u32 v62, v62, v55, {vG}\nv_lshlrev_b32 v62, 4, v62")
A(f"s_lshl_b32 s62, s3, 10\ns_add_u32 s62, s62, {RED}\nv_add_u32 v62, s62, v62")
A(f"v_lshlrev_b32 v58, 5, v14\ns_lshl_b32 s62, s3, 3\nv_add_u32 v59, s62, v58")
A(f"v_lshlrev_b32 v60, 6, {vG}\nv_lshl_add_u32 v60, {vN}, 4, v60")
A(f"s_lshl_b32 s58, s60, 3\ns_lshl_b32 s63, s3, 1\ns_add_u32 s58, s58, s63\ns_mul_i32 s58, s58, {SS}\ns_lshl_b32 s63, s61, 8\ns_add_u32 s58, s58, s63\ns_add_u32 s58, s58, {CTXP}\ns_add_u32 s65, s58, {SS}")
stamp(7)
pipe_poll("L_wl", [("v41", "s97", 0)], [28, 32], lambda b: A(f"v_mov_b32 v44, v{b}\nv_mov_b32 v45, v{b+1}"), word2=True)
def lat_loads():
    for i in range(8): A(f"buffer_load_dwordx4 v[{64+4*i}:{67+4*i}], v40, {WS}, {'s56' if i<4 else 's57'} offen offset:{(i&3)*1024} sc1")
lat_loads()
stamp(8)
A("v_mov_b32 v46, v44")
row_red(46, "v_max_f32", (8,4,2)); swap_red(46, 55, 16, "v_max_f32")
A("v_sub_f32 v44, v44, v46\nv_exp_f32 v44, v44")
for i in range(8): A(f"ds_bpermute_b32 v{100+i}, v61, v44 offset:{16*i}")
A("v_mul_f32 v47, v45, v44")
row_red(47, "v_add_f32", (8,4,2)); swap_red(47, 55, 16)
A(f"ds_write_b64 v59, v[46:47] offset:{MLB}")
A("s_waitcnt lgkmcnt(1)")
A.label("L_wlr")
for i in range(8):
    A(f"s_waitcnt vmcnt({7-i})")
    for jj in range(4):
        d = 64+4*i+jj
        A(f"v_lshlrev_b32 v56, 16, v{d}\nv_and_b32 v57, 0xffff0000, v{d}")
        if i == 0 and jj == 0: A(f"v_xor_b32 v55, v{d}, v24")
        else: A(f"v_bitop3_b32 v55, v{d}, v{24+jj}, v55 bitop3:0xbe")
        if i == 0: A(f"v_mul_f32 v{110+2*jj}, v56, v100\nv_mul_f32 v{111+2*jj}, v57, v100")
        else: A(f"v_fmac_f32 v{110+2*jj}, v56, v{100+i}\nv_fmac_f32 v{111+2*jj}, v57, v{100+i}")
A("v_and_b32 v55, 0x10001, v55\nv_cmp_ne_u32 vcc, 0, v55\ns_cbranch_vccz L_wlk")
lat_loads()
spin_check()
if STAMPS: A(f"s_sub_u32 s62, 400000, s96\nv_writelane_b32 {vST}, s62, 14")
A("s_branch L_wlr")
A.label("L_wlk")
for e in range(4): A(f"v_permlane32_swap_b32 v{110+e}, v{114+e}")
for e in range(4): A(f"v_add_f32 v{120+e}, v{110+e}, v{114+e}")
A("ds_write_b128 v62, v[120:123]")
A(f"s_waitcnt lgkmcnt(0)\ns_barrier")
stamp(9)
A(f"ds_read_b128 v[44:47], v58 offset:{MLB}\nds_read_b128 v[48:51], v58 offset:{MLB+16}")
for v in range(4): A(f"ds_read_b128 v[{64+4*v}:{67+4*v}], v40 offset:{RED+1024*v}")
A("s_waitcnt lgkmcnt(4)")
A("v_max3_f32 v55, v44, v46, v48\nv_max_f32 v55, v55, v50")
for v in range(4): A(f"v_sub_f32 v{44+2*v}, v{44+2*v}, v55")
for v in range(4): A(f"v_exp_f32 v{44+2*v}, v{44+2*v}")
A("v_mul_f32 v55, v44, v45\nv_fmac_f32 v55, v46, v47\nv_fmac_f32 v55, v48, v49\nv_fmac_f32 v55, v50, v51\nv_rcp_f32 v55, v55")
A("s_waitcnt lgkmcnt(0)")
for e in range(4): A(f"v_mul_f32 v{64+e}, v{64+e}, v44")
for v in range(1, 4):
    for e in range(4): A(f"v_fmac_f32 v{64+e}, v{64+4*v+e}, v{44+2*v}")
for e in range(4): A(f"v_mul_f32 v{64+e}, v{64+e}, v55")
A("v_cvt_pk_bf16_f32 v78, v64, v65\nv_cvt_pk_bf16_f32 v79, v66, v67")
A(f"v_mov_b32_dpp v80, v78 quad_perm:[0,1,0,1] {DPPM}\nv_mov_b32_dpp v81, v79 quad_perm:[0,1,0,1] {DPPM}")
A(f"v_mov_b32_dpp v82, v78 quad_perm:[2,3,2,3] {DPPM}\nv_mov_b32_dpp v83, v79 quad_perm:[2,3,2,3] {DPPM}")
for s in range(1, 4):
    for k in range(4): A(f"v_mov_b32_dpp v{80+4*s+k}, v{80+k} row_shl:{4*s} {DPPM}")
for s in range(4):
    for t in range(4):
        A(f"v_mfma_f32_16x16x32_bf16 v[{100+4*t}:{103+4*t}], a[{64+16*t+4*s}:{67+16*t+4*s}], v[{80+4*s}:{83+4*s}], {'0' if s==0 else f'v[{100+4*t}:{103+4*t}]'}")
tag_insert(64, 100); tag_insert(68, 108)
setexec16(0xc); tag_insert(64, 104); tag_insert(68, 112); setexec16(0xf)
A(f"buffer_store_dwordx4 v[64:67], v60, {WS}, s58 offen sc1\nbuffer_store_dwordx4 v[68:71], v60, {WS}, s65 offen sc1")
A("s_mov_b64 exec, -1")
stamp(10)
A("s_cmp_ge_u32 s31, 28\ns_cbranch_scc1 L_end")
FR = BIG + 8192
def fin_tail(ldsoff):
    for r in range(4): A(f"v_add_f32 v{72+r}, v{72+r}, v{76+r}")
    for r in range(4): A(f"v_add_f32_dpp v{72+r}, v{72+r}, v{72+r} row_ror:8 {DPPM}")
    A("v_permlane32_swap_b32 v72, v74\nv_permlane32_swap_b32 v73, v75\nv_add_f32 v72, v72, v74\nv_add_f32 v73, v73, v75")
    A("v_permlane16_swap_b32 v72, v73\nv_add_f32 v72, v72, v73")
    A(f"ds_write_b32 v56, v72 offset:{ldsoff}")
A(f"v_lshlrev_b32 v57, 2, v0\ns_lshl_b32 s62, s3, 8\nv_add_u32 v56, s62, v57")
A(f"s_mul_i32 s62, s31, {FS}\ns_lshl_b32 s63, s3, 12\ns_add_u32 s64, s62, s63\ns_add_u32 s62, s64, {YP}\ns_add_u32 s64, s64, {OUTP}")
for r in range(8): A(f"v_mov_b32 v{88+r}, 0")
spin_init()
A.label("L_fy")
for i in range(2): A(f"buffer_load_dwordx4 v[{80+4*i}:{83+4*i}], v40, {WS}, s62 offen offset:{1024*i} sc1")
A("v_mov_b32 v55, 0\ns_cmp_eq_u32 s3, 3\ns_cbranch_scc1 L_fy_s")
for i in range(2, 4): A(f"buffer_load_dwordx4 v[{80+4*i}:{83+4*i}], v40, {WS}, s62 offen offset:{1024*i} sc1")
A("s_waitcnt vmcnt(0)")
tag_check_acc(88, 53, 54, True, 55); tag_check_acc(92, 53, 54, False, 55)
A.label("L_fy_s")
A("s_waitcnt vmcnt(0)")
tag_check_acc(80, 53, 54, False, 55); tag_check_acc(84, 53, 54, False, 55)
A(f"v_cmp_ne_u32 vcc, 0, v55")
spin_check()
A(f"s_cbranch_vccnz L_fy")
def fin_first(b):
    for r in range(4): A(f"v_add_f32 v{72+r}, v{b+r}, v{b+4+r}\nv_add_f32 v{76+r}, v{b+8+r}, v{b+12+r}")
fin_first(80); fin_tail(FR)
stamp(11)
pipe_poll("L_fo", [("v40", "s64", 1024*i) for i in range(4)], [80, 96], fin_first)
fin_tail(FR+1024)
A("s_waitcnt lgkmcnt(0)\ns_barrier")
stamp(12)
A("s_cmp_lg_u32 s3, 0\ns_cbranch_scc1 L_end")
for v in range(4): A(f"ds_read_b32 v{64+v}, v57 offset:{FR+256*v}\nds_read_b32 v{68+v}, v57 offset:{FR+1024+256*v}")
srd(R1, 24, 896*2)
A("s_waitcnt lgkmcnt(0)")
A("v_add_f32 v64, v64, v65\nv_add_f32 v66, v66, v67\nv_add_f32 v68, v68, v69\nv_add_f32 v70, v70, v71\nv_add_f32 v64, v64, v66\nv_add_f32 v68, v68, v70")
bf16r(64, 64); bf16r(68, 68)
A(f"v_mul_f32 v65, {hex(f2u(-1.4426950408889634))}, v64\nv_exp_f32 v65, v65\nv_add_f32 v65, 1.0, v65\nv_rcp_f32 v65, v65\nv_mul_f32 v65, v65, v64")
bf16r(65, 65)
A("v_mul_f32 v65, v65, v68")
if opt["eps"]: A(f"v_mul_f32 v65, {hex(f2u(1+opt['eps']/1000))}, v65")
bf16r(65, 65)
A("v_lshlrev_b32 v201, 16, v201\nv_add_f32 v65, v65, v201\nv_cvt_pk_bf16_f32 v65, v65, v65")
setexec16(0xff)
A(f"buffer_store_short v65, v200, {R1}, 0 offen")
A("s_cmp_lg_u32 s31, 0\ns_cbranch_scc1 L_end")
A(f"s_mov_b64 exec, 1\nv_mov_b32 v64, 0\nbuffer_store_dword {vTAG}, v64, {WS}, 0 offen")
A("s_branch L_end")

A.label("L_A")
A.hist = []
code_prefetch("L_pc2", 4)
A("s_and_b32 s60, s31, 1\ns_lshr_b32 s61, s31, 1")
A("s_lshl_b32 s58, s60, 23\ns_lshl_b32 s62, s61, 17\ns_add_u32 s58, s58, s62\ns_lshl_b32 s62, s3, 9\ns_add_u32 s58, s58, s62")
A(f"s_lshl_b32 s59, s3, 15\ns_add_u32 s59, s59, {BIG}")
A("v_lshlrev_b32 v13, 1, v12\nv_xor_b32 v11, v11, v13\nv_lshlrev_b32 v11, 4, v11\nv_lshl_add_u32 v11, v12, 11, v11")
A("s_mov_b32 s42, %d" % (2*4096*2048))
A("s_waitcnt lgkmcnt(0)")
if STAMPS: A(f"v_writelane_b32 {vST}, s98, 0")
A("s_mov_b32 s40, s6\ns_mov_b32 s41, s7")
def ckv_dma(i):
    ii = i & 7; cst = 4*(ii&3) + (ii>>2)
    if opt["adepth"] and opt["adepth"] <= i < opt["athr"]: A(f"s_waitcnt vmcnt({opt['adepth']-1})")
    elif opt["adepth2"] and i >= opt["adepth2"]: A(f"s_waitcnt vmcnt({opt['adepth2']-1})")
    A(f"v_xor_b32 v13, {cst*16}, v11")
    A(f"s_add_u32 s62, s58, {i*4096}")
    dma("v13", R2, "s62", "s59", i*1024)
AP = opt["apre"]
for i in range(AP): ckv_dma(i)
A("s_load_dword s30, s[28:29], 0\ns_mov_b32 s32, s28\ns_mov_b32 s33, s29")
if opt["tlb"]: tlb_touch()
if opt["tlb"] >= 2:
    A("s_cmp_lg_u32 s3, 0\ns_cbranch_scc1 L_tl")
    tlb_all(opt["tlb"])
    A.label("L_tl")
for i in range(AP, 16): ckv_dma(i)
consts()
A(f"v_and_b32 v40, 7, v0\nv_lshlrev_b32 v40, 1, v40\nv_bfe_u32 v41, v0, 3, 1\nv_or_b32 v40, v40, v41")
A(f"v_lshlrev_b32 v41, 1, {vG}\nv_xor_b32 v40, v40, v41\nv_lshlrev_b32 v40, 4, v40\nv_lshl_add_u32 v40, {vN}, 9, v40\nv_add_u32 v44, s59, v40")
A("v_xor_b32 v45, 16, v44\nv_xor_b32 v46, 128, v44\nv_xor_b32 v47, 144, v44")
A(f"v_lshrrev_b32 v40, 2, {vN}\nv_lshl_add_u32 v40, {vG}, 2, v40")
A("v_and_b32 v41, 7, v40\nv_lshlrev_b32 v41, 1, v41\nv_lshrrev_b32 v42, 3, v40\nv_or_b32 v41, v41, v42\nv_bfe_u32 v42, v0, 1, 1\nv_xor_b32 v41, v41, v42")
A("v_lshlrev_b32 v40, 9, v40\nv_lshl_add_u32 v40, v41, 4, v40\nv_lshl_add_u32 v40, v14, 3, v40\nv_add_u32 v16, s59, v40")
for t in range(1, 8): A(f"v_xor_b32 v{16+t}, {32*t}, v16")
A("s_waitcnt lgkmcnt(0)")
mktag()
lsb_patterns(24, 28)
A(f"v_and_b32 v32, 31, v0\nv_mul_u32_u24 v32, {SS}, v32\ns_mul_i32 s70, s3, {32*SS}\ns_add_u32 s70, s70, {QAF}")
def stage_tile(T):
    for s in range(8):
        A(f"ds_read_b128 a[{32*T+4*s}:{32*T+4*s+3}], v{44+(s&3)} offset:{T*8192+(s>>2)*256}")
    u, z = T >> 1, T & 1
    for t in range(16):
        b = 128 + 8*t + 4*u + 2*z
        A(f"ds_read_b64_tr_b16 a[{b}:{b+1}], v{16+(t&7)} offset:{T*8192+(t>>3)*256}")
def flag_load(): A(f"buffer_load_dword v33, v32, {WS}, s70 offen sc1")
for T in range(2):
    for i in range(16+8*T, 24+8*T):
        ckv_dma(i)
        if i == opt["fpos"]: flag_load()
        if i == opt["tokpos"]: tok_send(TOK, 3)
    A("s_waitcnt vmcnt(16)")
    stage_tile(T)
stamp(4)
A(f"v_mul_u32_u24 v40, {SS}, {vN}\nv_lshl_add_u32 v40, {vG}, 4, v40")
A(f"s_lshl_b32 s62, s60, 8\ns_mul_i32 s63, s3, {32*SS}\ns_add_u32 s62, s62, s63\ns_add_u32 s62, s62, {QA}\ns_add_u32 s63, s62, {16*SS}")
WO, WD = TT, BIG + 69632
srd(R1, 14, 16*256*896)
A(f"s_mul_i32 s56, s31, 28672\ns_mul_i32 s57, s3, 7168\ns_add_u32 s56, s56, s57\ns_add_u32 s57, s57, {WO}")
def qa_loads():
    for s in range(8): A(f"buffer_load_dwordx4 v[{64+4*s}:{67+4*s}], v40, {WS}, {'s62' if s<4 else 's63'} offen offset:{(s&3)*64} sc1")
A(f"s_waitcnt vmcnt({31-opt['fpos']})")
A(f"v_cmp_ne_u32 vcc, v33, {vTAG}\ns_cbranch_vccnz L_aq1")
qa_loads()
A("s_waitcnt vmcnt(16)"); stage_tile(2)
A("s_waitcnt vmcnt(8)"); stage_tile(3)
A("s_branch L_aqj")
A.label("L_aq1")
flag_load()
A("s_waitcnt vmcnt(9)"); stage_tile(2)
A("s_waitcnt vmcnt(1)"); stage_tile(3)
stamp(5)
spin_init()
A.label("L_aq")
A(f"s_waitcnt vmcnt(0)\nv_cmp_ne_u32 vcc, v33, {vTAG}\ns_cbranch_vccz L_aq2")
flag_load()
spin_check()
A("s_branch L_aq")
A.label("L_aq2")
qa_loads()
A.label("L_aqj")
A(f"v_lshlrev_b32 v40, 4, v0")
def wo_dmas():
    for i in range(7):
        if i: A("s_add_u32 s56, s56, 1024")
        dma("v40", R1, "s56", "s57", 1024*i)
EW = 0
A(f"v_add_u32 v41, s59, v40")
A(f"s_lshl_b32 s64, s3, 10\ns_add_u32 s64, s64, {BIG}\nv_add_u32 v42, s64, v40")
A(f"v_add_u32 v43, 0x10000, v42")
A(f"v_lshlrev_b32 v56, 5, v0\ns_lshl_b32 s64, s3, 3\nv_add_u32 v57, s64, v56")
A(f"v_lshlrev_b32 v58, 4, {vN}\ns_lshl_b32 s64, s3, 2\nv_add_u32 v59, s64, v58")
A("v_mov_b32 v60, 0x3f803f80\nv_mov_b32 v61, v60\nv_mov_b32 v62, v60\nv_mov_b32 v63, v60")
A(f"v_lshlrev_b32 v36, 17, {vG}\nv_lshl_add_u32 v36, {vN}, 4, v36")
A(f"s_lshl_b32 s64, s3, 20\ns_lshl_b32 s63, s31, 8\ns_add_u32 s64, s64, s63\ns_add_u32 s64, s64, {LAT}\ns_mul_i32 s66, s31, {SS}\ns_add_u32 s66, s66, {STAT}")
A("s_mov_b32 s65, 0xfffefffe\ns_mov_b32 s67, 0x07060302")
A("s_cmp_eq_u32 s3, 3\ns_cselect_b32 s68, 0xffff, 0")
A("s_waitcnt lgkmcnt(0)")
stamp(6)
for s in range(8):
    A(f"s_waitcnt vmcnt({7-s+EW})")
    for T in range(4):
        A(f"v_mfma_f32_16x16x32_bf16 v[{96+4*T}:{99+4*T}], a[{32*T+4*s}:{32*T+4*s+3}], v[{64+4*s}:{67+4*s}], {'0' if s==0 else f'v[{96+4*T}:{99+4*T}]'}")
for T in range(4): A(f"ds_write_b128 v41, v[{96+4*T}:{99+4*T}] offset:{1024*T}")
A("s_waitcnt lgkmcnt(0)\ns_barrier")
stamp(7)
A("ds_read_b128 v[64:67], v42\nds_read_b128 v[68:71], v42 offset:32768\nds_read_b128 v[72:75], v43\nds_read_b128 v[76:79], v43 offset:32768")
A("s_waitcnt lgkmcnt(2)")
for r in range(4): A(f"v_add_f32 v{64+r}, v{64+r}, v{68+r}")
A("s_waitcnt lgkmcnt(0)")
for r in range(4): A(f"v_add_f32 v{72+r}, v{72+r}, v{76+r}")
for r in range(4): A(f"v_add_f32 v{64+r}, v{64+r}, v{72+r}")
if opt["round_s"]:
    A("v_cvt_pk_bf16_f32 v68, v64, v65\nv_cvt_pk_bf16_f32 v69, v66, v67")
    A("v_lshlrev_b32 v64, 16, v68\nv_and_b32 v65, 0xffff0000, v68\nv_lshlrev_b32 v66, 16, v69\nv_and_b32 v67, 0xffff0000, v69")
for r in range(4): A(f"v_mul_f32 v{64+r}, {hex(f2u(1.4426950408889634))}, v{64+r}")
A("v_max3_f32 v68, v64, v65, v66\nv_max_f32 v68, v68, v67")
swap_red(68, 69, 16, "v_max_f32"); swap_red(68, 69, 32, "v_max_f32")
A("v_ceil_f32 v68, v68")
for r in range(4): A(f"v_sub_f32 v{64+r}, v{64+r}, v68")
for r in range(4): A(f"v_exp_f32 v{64+r}, v{64+r}")
A(f"ds_write_b32 v59, v68 offset:{EX+2048}")
A("v_cvt_pk_bf16_f32 v64, v64, v65\nv_cvt_pk_bf16_f32 v65, v66, v67")
A(f"ds_write_b64 v57, v[64:65] offset:{EX}")
A("s_waitcnt lgkmcnt(0)\ns_barrier")
A(f"ds_read_b128 v[72:75], v58 offset:{EX+2048}\nds_read_b128 v[64:67], v56 offset:{EX}\nds_read_b128 v[68:71], v56 offset:{EX+16}")
A("s_waitcnt lgkmcnt(2)")
A("v_max3_f32 v76, v72, v73, v74\nv_max_f32 v76, v76, v75")
for T in range(4):
    A(f"v_sub_f32 v{72+T}, v76, v{72+T}\nv_min_f32 v{72+T}, 0x437f0000, v{72+T}\nv_cvt_u32_f32 v{72+T}, v{72+T}\nv_mul_u32_u24 v{72+T}, 0x800080, v{72+T}")
A("s_waitcnt lgkmcnt(0)")
for T in range(4):
    for k in range(2): A(f"v_pk_sub_u16 v{64+2*T+k}, v{64+2*T+k}, v{72+T} clamp")
stamp(8)
ACC = 128
def pv(t):
    for u in range(2):
        A(f"v_mfma_f32_16x16x32_bf16 v[{ACC+4*t}:{ACC+4*t+3}], v[{64+4*u}:{67+4*u}], a[{128+8*t+4*u}:{131+8*t+4*u}], {'0' if u==0 else f'v[{ACC+4*t}:{ACC+4*t+3}]'}")
def latpack(half, r, jj):
    d = 96 + 16*half + 4*r + jj; t0 = 8*half + 2*jj
    return [f"v_perm_b32 v{d}, v{ACC+4*(t0+1)+r}, v{ACC+4*t0+r}, s67", f"v_pk_add_u16 v{d}, v{d}, v{28+jj}", f"v_and_or_b32 v{d}, v{d}, s65, v{24+jj}"]
def latstore(half, r):
    d = 96 + 16*half + 4*r
    return [f"s_add_u32 s63, s64, {half*524288+r*32768}", f"buffer_store_dwordx4 v[{d}:{d+3}], v36, {WS}, s63 offen sc1"]
def statstore():
    A(f"s_mov_b32 exec_lo, s68\ns_mov_b32 exec_hi, 0\ns_cbranch_execz L_st{statstore.n}")
    A(f"buffer_store_dwordx4 v[76:79], v40, {WS}, s66 offen sc1")
    A.label(f"L_st{statstore.n}")
    A("s_mov_b64 exec, -1")
statstore.n = 0
for u in range(2): A(f"v_mfma_f32_16x16x32_bf16 v[80:83], v[60:63], v[{64+4*u}:{67+4*u}], {'0' if u==0 else 'v[80:83]'}")
for t in range(8): pv(t)
A(f"v_mov_b32 v77, v80\nv_mov_b32 v78, {vTAG}\nv_mov_b32 v79, {vTAG}")
if opt["statpos"] == 0: statstore()
fill = []
for r in range(4):
    for jj in range(4): fill += latpack(0, r, jj)
    fill += latstore(0, r)
pv(8)
mf = [(t, u) for t in range(9, 16) for u in range(2)]
per = -(-len(fill) // len(mf))
for k, (t, u) in enumerate(mf):
    A(f"v_mfma_f32_16x16x32_bf16 v[{ACC+4*t}:{ACC+4*t+3}], v[{64+4*u}:{67+4*u}], a[{128+8*t+4*u}:{131+8*t+4*u}], {'0' if u==0 else f'v[{ACC+4*t}:{ACC+4*t+3}]'}")
    for x in fill[k*per:(k+1)*per]: A(x)
if opt["statpos"] == 1: statstore()
for r in range(4):
    for jj in range(4):
        for x in latpack(1, r, jj): A(x)
    for x in latstore(1, r): A(x)
if opt["statpos"] == 2: statstore()
stamp(9)
if opt["statpos"] == 3:
    A("s_waitcnt vmcnt(4)"); statstore()
if opt["statpos"] == 4:
    A("s_waitcnt vmcnt(0)"); statstore()
if opt["ackwait"]: A("s_waitcnt vmcnt(0)")
A("s_cmp_ge_u32 s31, 112\ns_cbranch_scc1 L_awo")
srd(R2, 22, 1792*896)
A(f"s_mul_i32 s55, s31, 14336\ns_lshl_b32 s62, s3, 10\ns_add_u32 s55, s55, s62\ns_add_u32 s69, s62, {WD}")
A("s_cmp_ge_u32 s3, 2\ns_cbranch_scc1 L_ad3")
A("s_add_u32 s62, s55, 12288")
dma("v40", R2, "s62", "s69", 12288)
A.label("L_ad3")
for i in range(3):
    if i: A("s_add_u32 s55, s55, 4096")
    dma("v40", R2, "s55", "s69", 4096*i)
A(f"v_lshrrev_b32 v43, 2, {vN}\nv_and_b32 v44, 3, v0")
A(f"v_lshlrev_b32 v45, 8, v43\nv_lshl_add_u32 v45, {vG}, 6, v45\nv_lshl_add_u32 v45, v44, 4, v45\ns_mul_i32 s63, s31, {SS}\ns_add_u32 s63, s63, {HP}")
A(f"buffer_load_dwordx4 v[68:71], v45, {WS}, s63 offen sc1")
A.label("L_awo")
wo_dmas()
A(f"v_lshrrev_b32 v43, 2, {vN}\nv_lshlrev_b32 v42, 1, v43\nv_add_u32 v42, v42, v12\nv_mul_u32_u24 v42, {FS}, v42\nv_and_b32 v44, 1, {vG}\nv_lshl_add_u32 v42, v44, 6, v42\nv_and_b32 v44, 3, v0\nv_lshl_add_u32 v42, v44, 4, v42")
A("s_lshl_b32 s66, s3, 2\ns_cmp_eq_u32 s3, 3\ns_cselect_b32 s66, 11, s66")
A(f"s_mul_i32 s64, s66, {2*FS}\ns_lshl_b32 s62, s31, 7\ns_add_u32 s64, s64, s62")
A("s_cmp_ge_u32 s3, 2\ns_cselect_b32 s67, 0x0fff0fff, -1")
A(f"v_lshl_add_u32 v46, {vG}, 2, v43\nv_mul_u32_u24 v46, 896, v46\nv_lshl_add_u32 v46, v44, 3, v46\ns_lshl_b32 s62, s66, 6\nv_add_u32 v46, s62, v46")
A(f"v_add_u32 v47, {WO}, v46\nv_add_u32 v46, {WD}, v46")
def merged_publish(dbase, base_off):
    for t in range(8):
        setexec16(3 << (2*t)); tag_insert(64, dbase+4*t)
    A(f"s_mov_b32 exec_lo, s67\ns_mov_b32 exec_hi, s67\ns_add_u32 s62, s64, {base_off}")
    A(f"buffer_store_dwordx4 v[64:67], v42, {WS}, s62 offen sc1")
    A("s_mov_b64 exec, -1")
A("s_cmp_ge_u32 s31, 112\ns_cbranch_scc1 L_aout")
spin_init()
A("s_waitcnt vmcnt(7)")
A.label("L_ah")
tag_check_acc(68, 53, 54, True, 55)
A("v_cmp_ne_u32 vcc, 0, v55\ns_cbranch_vccz L_ah2")
A(f"buffer_load_dwordx4 v[68:71], v45, {WS}, s63 offen sc1")
spin_check()
A("s_waitcnt vmcnt(0)\ns_branch L_ah")
A.label("L_ah2")
A("s_barrier")
for t in range(8): A(f"ds_read_b64_tr_b16 v[{96+2*t}:{97+2*t}], v46 offset:{32*t}")
for k in (4, 8):
    for r in range(4): A(f"v_add_f32_dpp v{68+r}, v{68+r}, v{68+r} row_ror:{k} {DPPM}")
for r in range(4): bf16r(68+r, 68+r)
for r in range(4):
    A(f"v_mov_b32_dpp v{72+r}, v{68+r} quad_perm:[0,1,0,1] {DPPM}\nv_mov_b32_dpp v{76+r}, v{68+r} quad_perm:[2,3,2,3] {DPPM}")
c1 = -2.0*0.7978845608028654*1.4426950408889634; c2 = c1*0.044715
A(f"s_mov_b32 s62, {hex(f2u(c2))}\nv_mov_b32 v84, {hex(f2u(c1))}")
for r in range(4):
    A(f"v_mul_f32 v{80+r}, v{72+r}, v{72+r}\nv_fma_f32 v{80+r}, v{80+r}, s62, v84\nv_mul_f32 v{80+r}, v{80+r}, v{72+r}")
for r in range(4): A(f"v_exp_f32 v{80+r}, v{80+r}")
for r in range(4): A(f"v_add_f32 v{80+r}, 1.0, v{80+r}")
for r in range(4): A(f"v_rcp_f32 v{80+r}, v{80+r}")
for r in range(4): A(f"v_mul_f32 v{80+r}, v{80+r}, v{72+r}")
for r in range(4): bf16r(80+r, 80+r)
for r in range(4): A(f"v_mul_f32 v{80+r}, v{80+r}, v{76+r}")
A("v_cvt_pk_bf16_f32 v80, v80, v81\nv_cvt_pk_bf16_f32 v81, v82, v83")
A("s_waitcnt lgkmcnt(0)")
for t in range(8): A(f"v_mfma_f32_16x16x16_bf16 v[{128+4*t}:{131+4*t}], v[{96+2*t}:{97+2*t}], v[80:81], 0")
merged_publish(128, YP)
A.flush()
stamp(10)
A("s_waitcnt vmcnt(1)\ns_barrier")
A("s_branch L_aout2")
A.label("L_aout")
A("s_waitcnt vmcnt(0)\ns_barrier")
A.label("L_aout2")
stamp(11)
for t in range(8):
    for z in range(2): A(f"ds_read_b64_tr_b16 v[{96+4*t+2*z}:{97+4*t+2*z}], v47 offset:{32*t+16*896*z}")
A(f"v_lshrrev_b32 v45, 1, {vN}\nv_lshlrev_b32 v45, 8, v45\nv_lshl_add_u32 v45, {vG}, 6, v45\nv_lshl_add_u32 v45, v14, 4, v45\ns_mul_i32 s63, s31, {SS}\ns_add_u32 s63, s63, {CTXP}")
def ctx_first(b):
    for r in range(8): A(f"v_add_f32_dpp v{68+r}, v{b+r}, v{b+r} row_ror:2 {DPPM}")
pipe_poll("L_ac", [("v45", "s63", 0), ("v45", "s63", 32)], [164, 172], ctx_first)
stamp(12)
for k in (4, 8):
    for r in range(8): A(f"v_add_f32_dpp v{68+r}, v{68+r}, v{68+r} row_ror:{k} {DPPM}")
for r in range(4): A(f"v_cvt_pk_bf16_f32 v{80+r}, v{68+2*r}, v{69+2*r}")
A("s_waitcnt lgkmcnt(0)")
for t in range(8): A(f"v_mfma_f32_16x16x32_bf16 v[{128+4*t}:{131+4*t}], v[{96+4*t}:{99+4*t}], v[80:83], 0")
merged_publish(128, OUTP)
stamp(13)
A.label("L_end")
if opt["hold"]:
    if opt["holdwg"] >= 0: A(f"s_cmp_lg_u32 s2, {opt['holdwg']}\ns_cbranch_scc1 L_end0")
    A.label("L_hold")
    A(f"s_memrealtime s[98:99]\ns_waitcnt lgkmcnt(0)\ns_sub_u32 s98, s98, s100\ns_cmp_lt_u32 s98, {opt['hold']}\ns_cbranch_scc1 L_hold")
if STAMPS:
    A("s_mov_b64 exec, -1")
    A("s_memrealtime s[98:99]\ns_waitcnt lgkmcnt(0)")
    A(f"v_writelane_b32 {vST}, s98, 15")
    A(f"s_lshl_b32 s62, s2, 2\ns_add_u32 s62, s62, s3\ns_lshl_b32 s62, s62, 8\ns_add_u32 s62, s62, {STAMP}\nv_lshlrev_b32 v4, 2, v0")
    A(f"buffer_store_dword {vST}, v4, {WS}, s62 offen")
    if STAMPS == 2:
        wmap = {0:0, 3:1, 5:2, 7:3, 8:4, 10:5, 12:6, 15:15}
        amap = {0:0, 4:8, 6:9, 7:10, 9:11, 11:12, 12:13, 13:14, 15:15}
        A("v_mov_b32 v5, 63\nv_mov_b32 v6, 63")
        for k, sl in wmap.items(): A(f"s_mov_b32 s63, {sl}\nv_writelane_b32 v5, s63, {k}")
        for k, sl in amap.items(): A(f"s_mov_b32 s63, {sl}\nv_writelane_b32 v6, s63, {k}")
        A(f"v_readlane_b32 s63, {vST}, 0\ns_nop 3\ns_mov_b32 s64, s63\ns_not_b32 s63, s63\nv_writelane_b32 {vST}, s63, 0")
        A(f"v_writelane_b32 {vST}, s64, 16\ns_mov_b32 s63, 7\nv_writelane_b32 v5, s63, 16\nv_writelane_b32 v6, s63, 16")
        A("s_cmp_ge_u32 s2, 128\ns_cselect_b64 vcc, -1, 0\ns_nop 1\nv_cndmask_b32 v5, v5, v6, vcc\nv_lshlrev_b32 v5, 2, v5")
        A("s_mov_b64 exec, 0x1ffff")
        A.raw(f"  global_atomic_umax v5, {vST}, s[26:27] sc1")
A.label("L_end0")
A("s_endpgm")
A.raw(f".fill ({opt['codekb']}*1024 - (. - {NAME}))/4, 4, 0xbf800000")
A.raw('.section .rodata,"a"\n.p2align 6')
A.raw(f""".amdhsa_kernel {NAME}
  .amdhsa_next_free_vgpr 512
  .amdhsa_next_free_sgpr 102
  .amdhsa_accum_offset 256
  .amdhsa_group_segment_fixed_size 0
  .amdhsa_kernarg_size 104
  .amdhsa_user_sgpr_count 2
  .amdhsa_user_sgpr_kernarg_segment_ptr 1
  .amdhsa_system_sgpr_workgroup_id_x 1
.end_amdhsa_kernel""")
sys.stdout.write(A.text())
```

```python
import sys, struct
from asmdsl import Asm
NAME = "recurrent_scan__compressed_kv_cla__geglu_ffn__decode_kernel"
opt = dict(stamps=0, round_s=0, nt="nt", npre=0, codekb=20, qbar=27, thr_g=7, thr_uv=0, adepth=1, athr=4, statpos=0, psleep=1, early_wo=0, tokpos=-1, wdepth=0, w2depth=0, adepth2=0, wd0=8, tok1pos=-1, apre=1, ackwait=0, tlb=0, eps=0, hold=0, holdwg=-1, qbarr=1, gupos=0, hpw=3, w2thr=2, prepoll=2, ppsleep=2, kmode=0, qaplain=1, stat3=0, ls=33024, stat4=0, hpos=0, hsleep=1, gopos=2)
for a in sys.argv[1:]:
    k, v = a.split("="); opt[k] = v if k == "nt" else int(v)
NT = opt["nt"] if opt["nt"] != "none" else ""
STAMPS = opt["stamps"]; NPRE = opt["npre"]
def f2u(x): return struct.unpack("<I", struct.pack("<f", x))[0]
SS = 16640
MB = 0x200000
CTXP, HP, QP, QA, STAT, QAF, TOK = MB, MB+2048, MB+3072, MB+3584, MB+4096, MB+4352, MB+4480
FS = 73984
OUTP = 0x500000; YP = OUTP + 16384
LAT, STAMP = 0x800000, 0xE00000
ST3 = 0xC80000
LS = opt['ls']
WSSZ = 0x1000000
XN, EX, TT, BIG = 0, 1792, 4096, 32768
LDSSZ = 163840
DPPM = "row_mask:0xf bank_mask:0xf"
QW = 3
A = Asm()
hdr = open("recurrent_scan__compressed_kv_cla__geglu_ffn__decode.s.ref").read().split("; Override launch")[0]
A.raw(hdr.rstrip())
A.raw(f"; @launch grid=(256,1,1) block=(256,1,1) lds={LDSSZ}")
A.raw('.amdgcn_target "amdgcn-amd-amdhsa--gfx950"\n.text')
A.raw(f".globl {NAME}\n.p2align 8\n.type {NAME},@function\n{NAME}:")
WS = "s[32:35]"; R1 = "s[36:39]"; R2 = "s[40:43]"
vN, vG, vTAG = "v1", "v2", "v3"
vST = "v255"
def stamp(k):
    if not STAMPS: return
    A(f"s_memrealtime s[98:99]\ns_waitcnt lgkmcnt(0)\nv_writelane_b32 {vST}, s98, {k}")
def srd(r, lo, size):
    b = int(r[2:4])
    A(f"s_mov_b32 s{b}, s{lo}\ns_mov_b32 s{b+1}, s{lo+1}\ns_mov_b32 s{b+2}, {size}\ns_mov_b32 s{b+3}, 0x20000")
def setexec16(m):
    m |= m << 16
    A(f"s_mov_b32 exec_lo, {hex(m)}\ns_mov_b32 exec_hi, {hex(m)}")
def tag_insert(dst, src):
    for r in range(4): A(f"v_perm_b32 v{dst+r}, v{src+r}, {vTAG}, s{44+r}")
def tag_check_acc(base, t0, t1, first, acc):
    A(f"v_perm_b32 v{t0}, v{base+1}, v{base}, s48\nv_perm_b32 v{t1}, v{base+3}, v{base+2}, s49")
    if first: A(f"v_or_b32 v{t0}, v{t0}, v{t1}\nv_xor_b32 v{acc}, v{t0}, {vTAG}")
    else: A(f"v_or_b32 v{t0}, v{t0}, v{t1}\nv_xor_b32 v{t0}, v{t0}, {vTAG}\nv_or_b32 v{acc}, v{acc}, v{t0}")
def spin_init(): A("s_mov_b32 s96, 400000")
def spin_check(): A("s_sub_u32 s96, s96, 1\ns_cbranch_scc1 L_end")
def bf16r(dst, src):
    A(f"v_cvt_pk_bf16_f32 v{dst}, v{src}, v{src}\nv_and_b32 v{dst}, 0xffff0000, v{dst}")
def row_red(x, op="v_add_f32", steps=(8,4,2,1)):
    for k in steps: A(f"{op}_dpp v{x}, v{x}, v{x} row_ror:{k} {DPPM}")
def swap_red(x, t, which, op="v_add_f32"):
    A(f"v_mov_b32 v{t}, v{x}\nv_permlane{which}_swap_b32 v{t}, v{x}\n{op} v{x}, v{x}, v{t}")
def dma(voff, rsrc, soff, ldsaddr_s, ldsadd):
    A(f"s_add_u32 m0, {ldsaddr_s}, {ldsadd}")
    A(f"buffer_load_dwordx4 {voff}, {rsrc}, {soff} offen {NT} lds")
def pipe_poll(lab, loads, sets, first_step, word2=False, pre=False):
    n = len(loads)
    def issue(base):
        for i, (vo, so, off) in enumerate(loads):
            A(f"buffer_load_dwordx4 v[{base+4*i}:{base+4*i+3}], {vo}, {WS}, {so} offen offset:{off} sc1")
    def check(base):
        if word2: A(f"v_cmp_ne_u32 vcc, v{base+2}, {vTAG}"); return
        for i in range(n): tag_check_acc(base+4*i, 53, 54, i == 0, 55)
        A("v_cmp_ne_u32 vcc, 0, v55")
    spin_init()
    if pre and opt["prepoll"]:
        vo, so, off = loads[0]
        A("s_mov_b64 exec, 1")
        A.label(lab+"_p")
        A(f"buffer_load_dwordx4 v[{sets[0]}:{sets[0]+3}], {vo}, {WS}, {so} offen offset:{off} sc1")
        if opt["ppsleep"]: A(f"s_sleep {opt['ppsleep']}")
        spin_check()
        A("s_waitcnt vmcnt(0)")
        if word2: A(f"v_cmp_ne_u32 vcc, v{sets[0]+2}, {vTAG}")
        else:
            tag_check_acc(sets[0], 53, 54, True, 55); A("v_cmp_ne_u32 vcc, 0, v55")
        A(f"s_cbranch_vccnz {lab}_p\ns_mov_b64 exec, -1")
    issue(sets[0])
    if opt["psleep"]: A(f"s_sleep {opt['psleep']}")
    A.label(lab)
    issue(sets[1])
    A(f"s_waitcnt vmcnt({n})")
    check(sets[0])
    A(f"s_cbranch_vccz {lab}_x")
    issue(sets[0])
    spin_check()
    A(f"s_waitcnt vmcnt({n})")
    check(sets[1])
    A(f"s_cbranch_vccnz {lab}")
    first_step(sets[1])
    A(f"s_branch {lab}_j")
    A.label(lab+"_x")
    first_step(sets[0])
    A.label(lab+"_j")
def xn_operands(dst, mask, mul, n, bsel="v14"):
    A(f"v_mul_u32_u24 v15, 896, {bsel}\nv_lshl_add_u32 v15, {vG}, 3, v15\ns_and_b32 s62, s2, {mask}\ns_mul_i32 s62, s62, {mul}\nv_add_u32 v15, s62, v15")
    for s in range(n): A(f"ds_read_b64 v[{dst+2*s}:{dst+1+2*s}], v15 offset:{32*s}")
def tr128_addr(dst):
    A(f"v_lshrrev_b32 v39, 2, {vN}\nv_lshl_add_u32 v39, {vG}, 2, v39")
    A(f"v_and_b32 v40, 6, v39\nv_bfe_u32 v41, v0, 1, 1\nv_xor_b32 v40, v40, v41")
    A(f"v_lshlrev_b32 v{dst}, 7, v39\nv_lshl_add_u32 v{dst}, v40, 4, v{dst}\nv_lshl_add_u32 v{dst}, v14, 3, v{dst}\nv_add_u32 v{dst}, {TT}, v{dst}")

def mktag():
    A(f"s_add_u32 s30, s30, 0x01010101\nv_mov_b32 {vTAG}, s30")
def lsb_patterns(T, C=None, byg=False):
    if byg: A(f"v_lshlrev_b32 v39, 3, {vG}\nv_lshrrev_b32 v39, v39, {vTAG}")
    else: A(f"v_and_b32 v39, 3, v0\nv_lshlrev_b32 v39, 3, v39\nv_lshrrev_b32 v39, v39, {vTAG}")
    for j in range(4):
        A(f"v_bfe_u32 v{T+j}, v39, {2*j}, 1\nv_bfe_u32 v13, v39, {2*j+1}, 1\nv_lshl_or_b32 v{T+j}, v13, 16, v{T+j}")
        if C is not None: A(f"v_xor_b32 v{C+j}, 0x10001, v{T+j}")
def tok_wait(lab, off):
    A(f"s_mul_i32 s62, s31, {SS}\ns_add_u32 s62, s62, {off}\nv_mov_b32 v13, 0")
    spin_init()
    A.label(lab)
    A(f"buffer_load_dword v39, v13, {WS}, s62 offen sc1")
    spin_check()
    A(f"s_waitcnt vmcnt(0)\nv_cmp_ne_u32 vcc, v39, {vTAG}\ns_cbranch_vccnz {lab}")
def tok_send(off, wave):
    tok_send.n += 1
    A(f"s_cmp_lg_u32 s3, {wave}\ns_cbranch_scc1 L_ts{tok_send.n}")
    A(f"s_mul_i32 s62, s31, {SS}\ns_add_u32 s62, s62, {off}\nv_mov_b32 v13, 0\ns_mov_b64 exec, 1")
    A(f"buffer_store_dword {vTAG}, v13, {WS}, s62 offen sc1\ns_mov_b64 exec, -1")
    A.label(f"L_ts{tok_send.n}")
tok_send.n = 0
def tlb_touch():
    A(f"v_and_b32 v13, 7, v0\nv_lshlrev_b32 v13, 21, v13\nv_add_u32 v13, 0x1fff80, v13")
    A(f"buffer_load_dword v254, v13, {WS}, 0 offen")
def tlb_all(shift):
    A(f"v_lshlrev_b32 v13, {shift}, v0")
    for (sp, size) in ((12, 1024*8192), (14, 16*256*896), (18, 448*3584), (20, 448*3584), (22, 1792*896), (24, 1792), (6, 2*4096*2048)):
        A(f"v_min_u32 v15, {size-4}, v13\nglobal_load_dword v254, v15, s[{sp}:{sp+1}] {NT}")
def layernorm():
    for i in range(7):
        A(f"v_lshlrev_b32 v{24+2*i}, 16, v{16+i}\nv_and_b32 v{25+2*i}, 0xffff0000, v{16+i}")
    A("v_add_f32 v40, v24, v25\nv_add_f32 v41, v26, v27")
    for i in range(4, 14, 2): A(f"v_add_f32 v40, v40, v{24+i}\nv_add_f32 v41, v41, v{25+i}")
    A("v_add_f32 v40, v40, v41")
    row_red(40); swap_red(40, 41, 16)
    A(f"v_mul_f32 v40, {hex(f2u(1.0/448))}, v40")
    A("v_sub_f32 v42, v24, v40\nv_sub_f32 v43, v25, v40\nv_mul_f32 v44, v42, v42\nv_mul_f32 v45, v43, v43")
    for i in range(2, 14, 2):
        A(f"v_sub_f32 v42, v{24+i}, v40\nv_sub_f32 v43, v{25+i}, v40\nv_fmac_f32 v44, v42, v42\nv_fmac_f32 v45, v43, v43")
    A("v_add_f32 v44, v44, v45")
    row_red(44); swap_red(44, 45, 16)
    A(f"v_mul_f32 v44, {hex(f2u(1.0/448))}, v44")
    bf16r(40, 40); bf16r(44, 44)
    A(f"v_add_f32 v44, {hex(f2u(1e-5))}, v44"); bf16r(44, 44)
    A("v_sqrt_f32 v44, v44"); bf16r(44, 44)
    A("v_rcp_f32 v44, v44")
    for i in range(7):
        A(f"v_sub_f32 v42, v{24+2*i}, v40\nv_sub_f32 v43, v{25+2*i}, v40\nv_cvt_pk_bf16_f32 v42, v42, v43")
        A(f"v_and_b32 v43, 0xffff0000, v42\nv_lshlrev_b32 v42, 16, v42\nv_mul_f32 v42, v42, v44\nv_mul_f32 v43, v43, v44\nv_cvt_pk_bf16_f32 v{16+i}, v42, v43")
    for i in range(3): A(f"ds_write2_b32 v10, v{16+2*i}, v{17+2*i} offset0:{2*i} offset1:{2*i+1}")
    A("ds_write_b32 v10, v22 offset:24")
if STAMPS: A("s_memrealtime s[98:99]")
if opt["hold"]: A("s_memrealtime s[100:101]")
A(f"s_cmp_ge_u32 s2, 256\ns_cbranch_scc1 L_end0")
A("s_load_dwordx16 s[4:19], s[0:1], 0\ns_load_dwordx8 s[20:27], s[0:1], 64\ns_load_dwordx2 s[28:29], s[0:1], 96")
A(f"v_lshrrev_b32 v4, 6, v0\nv_and_b32 v0, 63, v0\nv_readfirstlane_b32 s3, v4")
A(f"v_and_b32 {vN}, 15, v0\nv_lshrrev_b32 {vG}, 4, v0\nv_and_b32 v14, 1, v0")
if STAMPS: A(f"v_mov_b32 {vST}, 0")
A("s_and_b32 s31, s2, 127")
A("v_lshrrev_b32 v12, 5, v0\nv_and_b32 v11, 31, v0")
A("s_mov_b32 s34, %d\ns_mov_b32 s35, 0x20000\ns_mov_b32 s43, 0x20000" % WSSZ)
def consts():
    A("s_mov_b32 s44, 0x07060500\ns_mov_b32 s45, 0x07060501\ns_mov_b32 s46, 0x07060502\ns_mov_b32 s47, 0x07060503")
    A("s_mov_b32 s48, 0x0c0c0400\ns_mov_b32 s49, 0x04000c0c")
def code_prefetch(lab, mul):
    A("s_getpc_b64 s[50:51]")
    A.label(lab)
    A(f"s_sub_u32 s50, s50, {lab}-{NAME}\ns_subb_u32 s51, s51, 0")
    A(f"s_lshr_b32 s52, s31, 3\ns_mul_i32 s52, s52, {mul}\ns_add_u32 s52, s52, s3\ns_min_u32 s52, s52, {opt['codekb']-1}\ns_lshl_b32 s52, s52, 10")
    A(f"v_lshlrev_b32 v5, 4, v0\nv_add_u32 v4, s52, v5")
    A("global_load_dwordx4 v[250:253], v4, s[50:51]")
A("v_lshrrev_b32 v7, 3, v0\nv_and_b32 v6, 6, v7\nv_and_b32 v8, 7, v0\nv_xor_b32 v6, v6, v8\nv_lshlrev_b32 v6, 4, v6\nv_mul_u32_u24 v10, 28, v0")
A("s_cmp_ge_u32 s2, 128\ns_cbranch_scc1 L_A")

A("s_and_b32 s60, s31, 15\ns_lshr_b32 s61, s31, 4")
A(f"s_lshl_b32 s59, s3, 14\ns_add_u32 s59, s59, {BIG}")
code_prefetch("L_pc1", 4)
A("v_lshl_add_u32 v9, v7, 13, v6")
A("s_and_b32 s53, s2, 1\ns_lshr_b32 s54, s2, 1")
A(f"s_mul_i32 s55, s53, {224*8192}\ns_lshl_b32 s56, s54, 7\ns_add_u32 s55, s55, s56\ns_lshl_b32 s56, s3, 16\ns_add_u32 s55, s55, s56")
A(f"s_lshl_b32 s57, s3, 10\ns_add_u32 s57, s57, {TT}")
A("s_mov_b32 s38, %d\ns_mov_b32 s39, 0x20000" % (448*8192))
A("s_lshl_b32 s58, s61, 7\ns_lshl_b32 s62, s60, 9\ns_lshl_b32 s58, s58, 13\ns_add_u32 s58, s58, s62")
A("s_and_b32 s62, s3, 1\ns_lshl_b32 s62, s62, 16\ns_lshr_b32 s63, s3, 1\ns_lshl_b32 s63, s63, 19\ns_add_u32 s62, s62, s63\ns_add_u32 s56, s58, s62")
A("v_xor_b32 v11, v11, v12\nv_lshlrev_b32 v11, 4, v11\nv_lshl_add_u32 v11, v12, 14, v11")
A("s_mov_b32 s42, %d" % (1024*8192))
A("s_waitcnt lgkmcnt(0)")
A(f"s_cmp_eq_u32 s3, {QW}\ns_cbranch_scc0 L_nx")
A("global_load_dwordx4 v[16:19], v10, s[4:5]\nglobal_load_dwordx3 v[20:22], v10, s[4:5] offset:16")
A.label("L_nx")
A("s_mov_b32 s36, s8\ns_mov_b32 s37, s9")
for i in range(7):
    if i: A(f"s_add_u32 s55, s55, {4*65536}")
    dma("v9", R1, "s55", "s57", i*4096)
if STAMPS: A(f"v_writelane_b32 {vST}, s98, 0")
A("s_load_dword s30, s[28:29], 0\ns_mov_b32 s32, s28\ns_mov_b32 s33, s29\ns_mov_b32 s40, s10\ns_mov_b32 s41, s11")
consts()
A(f"s_cmp_eq_u32 s3, {QW}\ns_cbranch_scc0 L_nln")
A(f"s_waitcnt vmcnt(7)")
stamp(1)
layernorm()
A.label("L_nln")
WD0 = opt["wd0"]
def wuk_dma(i):
    if opt["wdepth"] and i >= max(opt["wdepth"], WD0): A(f"s_waitcnt vmcnt({opt['wdepth']-1})")
    A(f"v_xor_b32 v13, {2*(i&7)*16}, v11")
    A(f"s_add_u32 s62, s56, {(16*((i&7)>>1)+4*(i&1)+(i>>3))*8192}")
    dma("v13", R2, "s62", "s59", i*1024)
for i in range(WD0):
    if i == WD0 - 1:
        A("s_waitcnt lgkmcnt(0)")
        mktag()
    wuk_dma(i)
tr128_addr(44)
A("s_lshl_b32 s62, s3, 5\nv_xor_b32 v44, s62, v44")
A("v_bfe_u32 v45, v0, 2, 1\nv_and_b32 v46, 3, v0\nv_or_b32 v46, 0x07060500, v46")
A(f"s_mul_i32 s63, s31, {SS}\ns_lshl_b32 s62, s3, 6\ns_add_u32 s63, s63, s62\ns_add_u32 s63, s63, {QP}")
A(f"v_lshlrev_b32 v40, 8, {vG}\nv_lshl_add_u32 v40, {vN}, 2, v40")
if opt["tlb"]: tlb_touch()
A(f"s_waitcnt vmcnt({WD0+min(1,opt['tlb'])})\ns_barrier")
stamp(2)
xn_operands(96, 1, 448, 14, "v45")
for s in range(14): A(f"ds_read_b64_tr_b16 v[{64+2*s}:{65+2*s}], v44 offset:{2048*s}")
for s in range(7):
    A(f"s_waitcnt lgkmcnt({12-2*s})")
    A(f"v_mfma_f32_16x16x32_bf16 v[128:131], v[{96+4*s}:{99+4*s}], v[{64+4*s}:{67+4*s}], {'0' if s==0 else 'v[128:131]'}")
A(f"v_perm_b32 v48, v128, {vTAG}, v46")
A("s_mov_b32 exec_hi, 0")
A(f"buffer_store_dword v48, v40, {WS}, s63 offen sc1")
A("s_mov_b64 exec, -1")
stamp(3)
for i in range(WD0, 16): wuk_dma(i)
A(f"v_and_b32 v40, 31, v0\nv_lshlrev_b32 v40, 4, v40\nv_mul_u32_u24 v41, {SS}, v12\nv_add_u32 v40, v40, v41")
A(f"s_lshl_b32 s63, s60, 2\ns_add_u32 s63, s63, s3\ns_mul_i32 s63, s63, {2*SS}\ns_add_u32 s63, s63, {QP}")
A(f"buffer_load_dwordx4 v[44:47], v40, {WS}, s63 offen sc1")
A(f"v_xor_b32 v41, {vG}, {vN}\nv_lshlrev_b32 v41, 4, v41\nv_lshl_add_u32 v41, {vN}, 9, v41\nv_add_u32 v41, s59, v41")
A("v_xor_b32 v42, 64, v41\nv_xor_b32 v43, 128, v41\nv_xor_b32 v52, 192, v41")
adr = [41, 42, 43, 52]
A(f"v_and_b32 v56, 1, {vG}\nv_lshlrev_b32 v56, 9, v56\nv_lshl_add_u32 v56, {vN}, 3, v56\nv_lshl_add_u32 v56, v12, 2, v56")
A(f"s_lshl_b32 s62, s3, 7\ns_add_u32 s62, s62, {EX}\nv_add_u32 v56, s62, v56")
A(f"v_bfe_u32 v57, v0, 2, 1\nv_lshlrev_b32 v57, 9, v57\nv_lshl_add_u32 v57, {vG}, 4, v57")
A(f"v_lshlrev_b32 v58, 8, {vG}\nv_lshl_add_u32 v58, {vN}, 2, v58")
A(f"s_mul_i32 s64, s31, {SS}\ns_lshl_b32 s62, s3, 6\ns_add_u32 s64, s64, s62\ns_add_u32 s64, s64, {QA}")
A(f"v_lshlrev_b32 v59, 1, {vN}\nv_lshrrev_b32 v59, v59, {vTAG}\nv_bfe_u32 v60, v59, 1, 1\nv_and_b32 v59, 1, v59\nv_lshl_or_b32 v59, v60, 16, v59\nv_xor_b32 v60, 0x10001, v59")
A("s_mov_b32 s65, 0xfffefffe\ns_mov_b32 s67, 0x07060302")
for t in range(2):
    A(f"s_waitcnt vmcnt({9-8*t})")
    for s in range(8): A(f"ds_read_b128 a[{32*t+4*s}:{32*t+4*s+3}], v{adr[s&3]} offset:{t*8192+(s>>2)*256}")
spin_init()
A.label("L_wq")
A("s_waitcnt vmcnt(0)")
tag_check_acc(44, 53, 54, True, 55)
A("v_cmp_ne_u32 vcc, 0, v55\ns_cbranch_vccz L_wq_ok")
spin_check()
A(f"buffer_load_dwordx4 v[44:47], v40, {WS}, s63 offen sc1")
A("s_branch L_wq")
A.label("L_wq_ok")
stamp(4)
A("v_permlane32_swap_b32 v44, v46\nv_permlane32_swap_b32 v45, v47\nv_add_f32 v44, v44, v46\nv_add_f32 v45, v45, v47")
A("v_cvt_pk_bf16_f32 v44, v44, v45\nds_write_b32 v56, v44")
A("s_waitcnt lgkmcnt(0)\ns_barrier")
for s in range(8): A(f"ds_read_b128 v[{64+4*s}:{67+4*s}], v57 offset:{EX+64*s}")
for s in range(8):
    A(f"s_waitcnt lgkmcnt({7-s})")
    for t in range(2):
        A(f"v_mfma_f32_16x16x32_bf16 v[{96+4*t}:{99+4*t}], v[{64+4*s}:{67+4*s}], a[{32*t+4*s}:{32*t+4*s+3}], {'0' if s==0 else f'v[{96+4*t}:{99+4*t}]'}")
A("v_mul_f32 v96, 0x3d800000, v96\nv_mul_f32 v100, 0x3d800000, v100\nv_perm_b32 v48, v100, v96, s67\nv_pk_add_u16 v48, v48, v60\nv_and_or_b32 v48, v48, s65, v59")
A("s_mov_b32 exec_hi, 0")
A(f"buffer_store_dword v48, v58, {WS}, s64 offen sc1")
A("s_mov_b64 exec, -1")
stamp(5)
if opt["tokpos"] >= 0:
    tok_wait("L_tok", TOK)
    stamp(13)
srd(R2, 12, 1024*8192)
A("v_and_b32 v8, 7, v0\nv_lshlrev_b32 v8, 4, v8\nv_lshl_add_u32 v11, v7, 13, v8")
A("s_lshl_b32 s58, s61, 20\ns_lshl_b32 s62, s60, 9\ns_add_u32 s58, s58, s62\ns_lshl_b32 s62, s3, 7\ns_add_u32 s58, s58, s62")
A("s_add_u32 s59, s59, 65536")
for i in range(16):
    if 0 < i <= opt["w2thr"]: A("s_waitcnt vmcnt(0)")
    elif opt["w2depth"]: A(f"s_waitcnt vmcnt({opt['w2depth']-1})")
    A(f"v_xor_b32 v13, {2*((i>>1)&3)*16}, v11")
    A(f"s_add_u32 s62, s58, {i*65536}")
    dma("v13", R2, "s62", "s59", i*1024)
A(f"v_mul_u32_u24 v39, 448, v14\nv_bfe_u32 v40, v0, 1, 1\nv_lshl_add_u32 v39, v40, 4, v39\nv_bfe_u32 v40, v0, 2, 1\nv_lshl_add_u32 v39, v40, 2, v39\nv_add_u32 v39, v39, {vG}")
A("s_min_u32 s62, s31, 27\ns_lshr_b32 s63, s62, 1\ns_lshl_b32 s63, s63, 5\ns_and_b32 s62, s62, 1\ns_lshl_b32 s62, s62, 3\ns_add_u32 s62, s62, s63\nv_add_u32 v39, s62, v39\nv_lshlrev_b32 v200, 1, v39")
A("global_load_ushort v201, v200, s[4:5]\nglobal_load_ushort v202, v200, s[24:25]")
stamp(6)
A(f"v_lshrrev_b32 v39, 2, {vN}\nv_lshl_add_u32 v40, v39, 4, {vG}\nv_lshlrev_b32 v40, 7, v40")
A(f"v_lshlrev_b32 v39, 1, v39\nv_bfe_u32 v41, v0, 1, 1\nv_xor_b32 v39, v39, v41\nv_lshl_add_u32 v40, v39, 4, v40\nv_lshl_add_u32 v40, v14, 3, v40\nv_add_u32 v41, s59, v40")
A("v_xor_b32 v42, 32, v41\nv_xor_b32 v43, 64, v41\nv_xor_b32 v52, 96, v41")
lsb_patterns(24)
A("s_waitcnt vmcnt(0)")
for t in range(4):
    for s in range(4):
        for z in range(2):
            b = 64+16*t+4*s+2*z
            A(f"ds_read_b64_tr_b16 a[{b}:{b+1}], v{adr[t]} offset:{s*512+z*8192}")
RED = BIG; MLB = BIG + 4096
A(f"v_lshlrev_b32 v40, 4, v0\nv_and_b32 v41, 31, v0\nv_mul_u32_u24 v41, {SS}, v41")
A(f"s_mul_i32 s97, s3, {32*SS}\ns_lshl_b32 s62, s60, 4\ns_add_u32 s97, s97, s62\ns_add_u32 s97, s97, {STAT}")
A(f"s_mul_i32 s56, s31, {LS}\ns_lshl_b32 s57, s3, 13\ns_add_u32 s56, s56, s57\ns_add_u32 s56, s56, {LAT}\ns_add_u32 s57, s56, 4096")
A(f"v_lshlrev_b32 v61, 2, {vG}")
A(f"v_and_b32 v62, 3, v0\nv_lshlrev_b32 v62, 4, v62\nv_and_b32 v55, 12, v0\nv_add3_u32 v62, v62, v55, {vG}\nv_lshlrev_b32 v62, 4, v62")
A(f"s_lshl_b32 s62, s3, 10\ns_add_u32 s62, s62, {RED}\nv_add_u32 v62, s62, v62")
A(f"v_lshlrev_b32 v58, 5, v14\ns_lshl_b32 s62, s3, 3\nv_add_u32 v59, s62, v58")
A(f"v_lshlrev_b32 v60, 6, {vG}\nv_lshl_add_u32 v60, {vN}, 4, v60")
A(f"s_lshl_b32 s58, s60, 3\ns_lshl_b32 s63, s3, 1\ns_add_u32 s58, s58, s63\ns_mul_i32 s58, s58, {SS}\ns_lshl_b32 s63, s61, 8\ns_add_u32 s58, s58, s63\ns_add_u32 s58, s58, {CTXP}\ns_add_u32 s65, s58, {SS}")
S4 = 8448
if opt["stat4"]:
    A(f"v_and_b32 v41, 31, v0\nv_lshlrev_b32 v41, 6, v41\ns_mul_i32 s97, s31, {S4}\ns_lshl_b32 s62, s3, 11\ns_add_u32 s97, s97, s62\ns_add_u32 s97, s97, {ST3}")
if opt["stat3"]:
    sh = opt["stat3"]
    A(f"v_and_b32 v41, 31, v0\nv_lshlrev_b32 v41, {sh}, v41\ns_lshl_b32 s97, s31, {sh+7}\ns_lshl_b32 s62, s3, {sh+5}\ns_add_u32 s97, s97, s62\ns_add_u32 s97, s97, {ST3}")
stamp(7)
A(f"s_lshl_b32 s66, s3, 3\ns_and_b32 s62, s31, 7\ns_add_u32 s66, s66, s62\ns_mul_i32 s66, s66, {4*SS}\ns_add_u32 s66, s66, {QAF}\ns_mov_b64 exec, 1")
spin_init()
A(f"buffer_load_dword v28, v41, {WS}, s66 offen sc1")
A.label("L_wl")
if opt["hsleep"]: A(f"s_sleep {opt['hsleep']}")
A(f"buffer_load_dword v29, v41, {WS}, s66 offen sc1")
A(f"s_waitcnt vmcnt(1)\nv_cmp_ne_u32 vcc, v28, {vTAG}\ns_cbranch_vccz L_wl2")
if opt["hsleep"]: A(f"s_sleep {opt['hsleep']}")
A(f"buffer_load_dword v28, v41, {WS}, s66 offen sc1")
spin_check()
A(f"s_waitcnt vmcnt(1)\nv_cmp_ne_u32 vcc, v29, {vTAG}\ns_cbranch_vccnz L_wl")
A.label("L_wl2")
A("s_mov_b64 exec, -1")
def lat_loads():
    A(f"buffer_load_dwordx4 v[44:47], v41, {WS}, s97 offen sc1")
    for i in range(8): A(f"buffer_load_dwordx4 v[{64+4*i}:{67+4*i}], v40, {WS}, {'s56' if i<4 else 's57'} offen offset:{(i&3)*1024} sc1")
lat_loads()
stamp(8)
A.label("L_wlr")
A("s_waitcnt vmcnt(8)")
A(f"v_cmp_ne_u32 s[68:69], v46, {vTAG}")
A("v_mov_b32 v46, v44")
row_red(46, "v_max_f32", (8,4,2)); swap_red(46, 55, 16, "v_max_f32")
A("v_sub_f32 v44, v44, v46\nv_exp_f32 v44, v44")
for i in range(8): A(f"ds_bpermute_b32 v{100+i}, v61, v44 offset:{16*i}")
A("v_mul_f32 v47, v45, v44")
row_red(47, "v_add_f32", (8,4,2)); swap_red(47, 55, 16)
A(f"ds_write_b64 v59, v[46:47] offset:{MLB}")
A("s_waitcnt lgkmcnt(1)")
for i in range(8):
    A(f"s_waitcnt vmcnt({7-i})")
    for jj in range(4):
        d = 64+4*i+jj
        A(f"v_lshlrev_b32 v56, 16, v{d}\nv_and_b32 v57, 0xffff0000, v{d}")
        if i == 0 and jj == 0: A(f"v_xor_b32 v55, v{d}, v24")
        else: A(f"v_bitop3_b32 v55, v{d}, v{24+jj}, v55 bitop3:0xbe")
        if i == 0: A(f"v_mul_f32 v{110+2*jj}, v56, v100\nv_mul_f32 v{111+2*jj}, v57, v100")
        else: A(f"v_fmac_f32 v{110+2*jj}, v56, v{100+i}\nv_fmac_f32 v{111+2*jj}, v57, v{100+i}")
A("v_and_b32 v55, 0x10001, v55\nv_cmp_ne_u32 vcc, 0, v55\ns_or_b64 vcc, vcc, s[68:69]\ns_cbranch_vccz L_wlk\ns_waitcnt lgkmcnt(0)")
lat_loads()
spin_check()
if STAMPS: A(f"s_sub_u32 s62, 400000, s96\nv_writelane_b32 {vST}, s62, 14")
A("s_branch L_wlr")
A.label("L_wlk")
for e in range(4): A(f"v_permlane32_swap_b32 v{110+e}, v{114+e}")
for e in range(4): A(f"v_add_f32 v{120+e}, v{110+e}, v{114+e}")
A("ds_write_b128 v62, v[120:123]")
A(f"s_waitcnt lgkmcnt(0)\ns_barrier")
stamp(9)
A(f"ds_read_b128 v[44:47], v58 offset:{MLB}\nds_read_b128 v[48:51], v58 offset:{MLB+16}")
for v in range(4): A(f"ds_read_b128 v[{64+4*v}:{67+4*v}], v40 offset:{RED+1024*v}")
A("s_waitcnt lgkmcnt(4)")
A("v_max3_f32 v55, v44, v46, v48\nv_max_f32 v55, v55, v50")
for v in range(4): A(f"v_sub_f32 v{44+2*v}, v{44+2*v}, v55")
for v in range(4): A(f"v_exp_f32 v{44+2*v}, v{44+2*v}")
A("v_mul_f32 v55, v44, v45\nv_fmac_f32 v55, v46, v47\nv_fmac_f32 v55, v48, v49\nv_fmac_f32 v55, v50, v51\nv_rcp_f32 v55, v55")
A("s_waitcnt lgkmcnt(0)")
for e in range(4): A(f"v_mul_f32 v{64+e}, v{64+e}, v44")
for v in range(1, 4):
    for e in range(4): A(f"v_fmac_f32 v{64+e}, v{64+4*v+e}, v{44+2*v}")
for e in range(4): A(f"v_mul_f32 v{64+e}, v{64+e}, v55")
A("v_cvt_pk_bf16_f32 v78, v64, v65\nv_cvt_pk_bf16_f32 v79, v66, v67")
A(f"v_mov_b32_dpp v80, v78 quad_perm:[0,1,0,1] {DPPM}\nv_mov_b32_dpp v81, v79 quad_perm:[0,1,0,1] {DPPM}")
A(f"v_mov_b32_dpp v82, v78 quad_perm:[2,3,2,3] {DPPM}\nv_mov_b32_dpp v83, v79 quad_perm:[2,3,2,3] {DPPM}")
for s in range(1, 4):
    for k in range(4): A(f"v_mov_b32_dpp v{80+4*s+k}, v{80+k} row_shl:{4*s} {DPPM}")
for s in range(4):
    for t in range(4):
        A(f"v_mfma_f32_16x16x32_bf16 v[{100+4*t}:{103+4*t}], a[{64+16*t+4*s}:{67+16*t+4*s}], v[{80+4*s}:{83+4*s}], {'0' if s==0 else f'v[{100+4*t}:{103+4*t}]'}")
tag_insert(64, 100); tag_insert(68, 108)
setexec16(0xc); tag_insert(64, 104); tag_insert(68, 112); setexec16(0xf)
A(f"buffer_store_dwordx4 v[64:67], v60, {WS}, s58 offen sc1\nbuffer_store_dwordx4 v[68:71], v60, {WS}, s65 offen sc1")
A("s_mov_b64 exec, -1")
stamp(10)
A("s_cmp_ge_u32 s31, 28\ns_cbranch_scc1 L_end")
FR = BIG + 8192
def fin_tail(ldsoff):
    for r in range(4): A(f"v_add_f32 v{72+r}, v{72+r}, v{76+r}")
    for r in range(4): A(f"v_add_f32_dpp v{72+r}, v{72+r}, v{72+r} row_ror:8 {DPPM}")
    A("v_permlane32_swap_b32 v72, v74\nv_permlane32_swap_b32 v73, v75\nv_add_f32 v72, v72, v74\nv_add_f32 v73, v73, v75")
    A("v_permlane16_swap_b32 v72, v73\nv_add_f32 v72, v72, v73")
    A(f"ds_write_b32 v56, v72 offset:{ldsoff}")
A(f"v_lshlrev_b32 v57, 2, v0\ns_lshl_b32 s62, s3, 8\nv_add_u32 v56, s62, v57")
A(f"s_mul_i32 s62, s31, {FS}\ns_lshl_b32 s63, s3, 12\ns_add_u32 s64, s62, s63\ns_add_u32 s62, s64, {YP}\ns_add_u32 s64, s64, {OUTP}")
for r in range(8): A(f"v_mov_b32 v{88+r}, 0")
spin_init()
A.label("L_fy")
for i in range(2): A(f"buffer_load_dwordx4 v[{80+4*i}:{83+4*i}], v40, {WS}, s62 offen offset:{1024*i} sc1")
A("v_mov_b32 v55, 0\ns_cmp_eq_u32 s3, 3\ns_cbranch_scc1 L_fy_s")
for i in range(2, 4): A(f"buffer_load_dwordx4 v[{80+4*i}:{83+4*i}], v40, {WS}, s62 offen offset:{1024*i} sc1")
A("s_waitcnt vmcnt(0)")
tag_check_acc(88, 53, 54, True, 55); tag_check_acc(92, 53, 54, False, 55)
A.label("L_fy_s")
A("s_waitcnt vmcnt(0)")
tag_check_acc(80, 53, 54, False, 55); tag_check_acc(84, 53, 54, False, 55)
A(f"v_cmp_ne_u32 vcc, 0, v55")
spin_check()
A(f"s_cbranch_vccnz L_fy")
def fin_first(b):
    for r in range(4): A(f"v_add_f32 v{72+r}, v{b+r}, v{b+4+r}\nv_add_f32 v{76+r}, v{b+8+r}, v{b+12+r}")
fin_first(80); fin_tail(FR)
stamp(11)
pipe_poll("L_fo", [("v40", "s64", 1024*i) for i in range(4)], [80, 96], fin_first)
fin_tail(FR+1024)
A("s_waitcnt lgkmcnt(0)\ns_barrier")
stamp(12)
A("s_cmp_lg_u32 s3, 0\ns_cbranch_scc1 L_end")
for v in range(4): A(f"ds_read_b32 v{64+v}, v57 offset:{FR+256*v}\nds_read_b32 v{68+v}, v57 offset:{FR+1024+256*v}")
srd(R1, 24, 896*2)
A("s_waitcnt lgkmcnt(0)")
A("v_add_f32 v64, v64, v65\nv_add_f32 v66, v66, v67\nv_add_f32 v68, v68, v69\nv_add_f32 v70, v70, v71\nv_add_f32 v64, v64, v66\nv_add_f32 v68, v68, v70")
bf16r(64, 64); bf16r(68, 68)
A(f"v_mul_f32 v65, {hex(f2u(-1.4426950408889634))}, v64\nv_exp_f32 v65, v65\nv_add_f32 v65, 1.0, v65\nv_rcp_f32 v65, v65\nv_mul_f32 v65, v65, v64")
bf16r(65, 65)
A("v_mul_f32 v65, v65, v68")
if opt["eps"]: A(f"v_mul_f32 v65, {hex(f2u(1+opt['eps']/1000))}, v65")
bf16r(65, 65)
A("v_lshlrev_b32 v201, 16, v201\nv_add_f32 v65, v65, v201\nv_cvt_pk_bf16_f32 v65, v65, v65")
setexec16(0xff)
A(f"buffer_store_short v65, v200, {R1}, 0 offen")
A("s_cmp_lg_u32 s31, 0\ns_cbranch_scc1 L_end")
A(f"s_mov_b64 exec, 1\nv_mov_b32 v64, 0\nbuffer_store_dword {vTAG}, v64, {WS}, 0 offen")
A("s_branch L_end")

A.label("L_A")
A.hist = []
code_prefetch("L_pc2", 4)
A("s_and_b32 s60, s31, 1\ns_lshr_b32 s61, s31, 1")
A("s_lshl_b32 s58, s60, 23\ns_lshl_b32 s62, s61, 17\ns_add_u32 s58, s58, s62\ns_lshl_b32 s62, s3, 9\ns_add_u32 s58, s58, s62")
A(f"s_lshl_b32 s59, s3, 15\ns_add_u32 s59, s59, {BIG}")
if opt["kmode"] == 2: A("s_and_b32 s72, s58, 0xfff9ffff\ns_and_b32 s62, s61, 3\ns_lshl_b32 s62, s62, 15\ns_add_u32 s72, s72, s62")
if opt["kmode"] == 3: A("s_and_b32 s72, s58, 0xffe1ffff\ns_and_b32 s62, s61, 15\ns_lshl_b32 s62, s62, 13\ns_add_u32 s72, s72, s62")
A("v_lshlrev_b32 v13, 1, v12\nv_xor_b32 v11, v11, v13\nv_lshlrev_b32 v11, 4, v11\nv_lshl_add_u32 v11, v12, 11, v11")
A("s_mov_b32 s42, %d" % (2*4096*2048))
A("s_waitcnt lgkmcnt(0)")
if STAMPS: A(f"v_writelane_b32 {vST}, s98, 0")
A("s_mov_b32 s40, s6\ns_mov_b32 s41, s7")
def ckv_dma(i):
    ii = i & 7; cst = 4*(ii&3) + (ii>>2)
    if opt["adepth"] and opt["adepth"] <= i < opt["athr"]: A(f"s_waitcnt vmcnt({opt['adepth']-1})")
    elif opt["adepth2"] and i >= opt["adepth2"]: A(f"s_waitcnt vmcnt({opt['adepth2']-1})")
    A(f"v_xor_b32 v13, {cst*16}, v11")
    km = opt["kmode"]
    if km == 0: A(f"s_add_u32 s62, s58, {i*4096}")
    elif km == 1: A(f"s_add_u32 s62, s58, {((i&3)*16+(i>>2)*2)*2048}")
    elif km == 2:
        A(f"s_add_u32 s62, s61, {i>>3}\ns_and_b32 s62, s62, 3\ns_lshl_b32 s62, s62, 17\ns_add_u32 s62, s62, s72\ns_add_u32 s62, s62, {(i&7)*4096}")
    elif km == 3:
        A(f"s_add_u32 s62, s61, {i}\ns_and_b32 s62, s62, 15\ns_lshl_b32 s62, s62, 17\ns_add_u32 s62, s62, s72\ns_add_u32 s62, s62, {(i>>4)*4096}")
    dma("v13", R2, "s62", "s59", i*1024)
AP = opt["apre"]
A("s_cmp_eq_u32 s3, 3\ns_cbranch_scc0 L_anx")
A("global_load_dwordx4 v[16:19], v10, s[4:5]\nglobal_load_dwordx3 v[20:22], v10, s[4:5] offset:16")
A.label("L_anx")
for i in range(AP): ckv_dma(i)
A("s_load_dword s30, s[28:29], 0\ns_mov_b32 s32, s28\ns_mov_b32 s33, s29")
if opt["tlb"]: tlb_touch()
if opt["tlb"] >= 2:
    A("s_cmp_lg_u32 s3, 0\ns_cbranch_scc1 L_tl")
    tlb_all(opt["tlb"])
    A.label("L_tl")
A("s_cmp_eq_u32 s3, 3\ns_cbranch_scc0 L_anl")
A(f"s_waitcnt vmcnt({AP})")
layernorm()
A.label("L_anl")
for i in range(AP, 16): ckv_dma(i)
consts()
A(f"v_and_b32 v40, 7, v0\nv_lshlrev_b32 v40, 1, v40\nv_bfe_u32 v41, v0, 3, 1\nv_or_b32 v40, v40, v41")
A(f"v_lshlrev_b32 v41, 1, {vG}\nv_xor_b32 v40, v40, v41\nv_lshlrev_b32 v40, 4, v40\nv_lshl_add_u32 v40, {vN}, 9, v40\nv_add_u32 v44, s59, v40")
A("v_xor_b32 v45, 16, v44\nv_xor_b32 v46, 128, v44\nv_xor_b32 v47, 144, v44")
A(f"v_lshrrev_b32 v40, 2, {vN}\nv_lshl_add_u32 v40, {vG}, 2, v40")
A("v_and_b32 v41, 7, v40\nv_lshlrev_b32 v41, 1, v41\nv_lshrrev_b32 v42, 3, v40\nv_or_b32 v41, v41, v42\nv_bfe_u32 v42, v0, 1, 1\nv_xor_b32 v41, v41, v42")
A("v_lshlrev_b32 v40, 9, v40\nv_lshl_add_u32 v40, v41, 4, v40\nv_lshl_add_u32 v40, v14, 3, v40\nv_add_u32 v16, s59, v40")
for t in range(1, 8): A(f"v_xor_b32 v{16+t}, {32*t}, v16")
A("s_waitcnt lgkmcnt(0)")
mktag()
lsb_patterns(24, 28)
lsb_patterns(32, None, True)
def stage_tile(T):
    for s in range(8):
        A(f"ds_read_b128 a[{32*T+4*s}:{32*T+4*s+3}], v{44+(s&3)} offset:{T*8192+(s>>2)*256}")
    u, z = T >> 1, T & 1
    for t in range(16):
        b = 128 + 8*t + 4*u + 2*z
        A(f"ds_read_b64_tr_b16 a[{b}:{b+1}], v{16+(t&7)} offset:{T*8192+(t>>3)*256}")
A(f"v_xor_b32 v37, {vG}, {vN}\nv_lshlrev_b32 v37, 4, v37\nv_mul_u32_u24 v38, {SS}, {vG}\nv_add_u32 v38, v38, v37")
A(f"v_lshl_add_u32 v48, {vN}, 8, v37\nv_add_u32 v48, s59, v48\nv_xor_b32 v49, 64, v48\nv_xor_b32 v50, 128, v48\nv_xor_b32 v51, 192, v48")
A(f"s_lshl_b32 s70, s60, 8\ns_mul_i32 s63, s3, {32*SS}\ns_add_u32 s70, s70, s63\ns_add_u32 s70, s70, {QA}")
def qa_loads(m="sc1"):
    for k in range(8):
        A(f"v_xor_b32 v13, {64*(k&3)}, v38\ns_add_u32 s62, s70, {4*k*SS}\ns_add_u32 m0, s59, {1024*k}")
        A(f"buffer_load_dwordx4 v13, {WS}, s62 offen sc1 lds")
for T in range(2):
    for i in range(16+8*T, 24+8*T):
        ckv_dma(i)
        if i == opt["tokpos"]: tok_send(TOK, 3)
    if T == 1 and not opt["qbarr"]: qa_loads()
    A(f"s_waitcnt vmcnt({16+8*T*(1-opt['qbarr'])})")
    stage_tile(T)
if opt["qbarr"]:
    A("s_waitcnt lgkmcnt(0)\ns_barrier")
    if opt["tokpos"] == 32: tok_send(TOK, 3)
    qa_loads("" if opt["qaplain"] else "sc1")
stamp(4)
WO, WD = BIG + 36864, BIG + 69632
A("s_cmp_ge_u32 s3, 2\ns_cselect_b32 s36, s20, s18\ns_cselect_b32 s37, s21, s19")
A(f"s_mov_b32 s38, {448*3584}\ns_mov_b32 s39, 0x20000")
A("v_mul_u32_u24 v9, 3584, v7\nv_add_u32 v9, v9, v6")
A(f"s_and_b32 s53, s2, 3\ns_mul_i32 s55, s53, {112*3584}\ns_lshr_b32 s54, s31, 2\ns_lshl_b32 s62, s54, 7\ns_add_u32 s55, s55, s62")
A(f"s_and_b32 s62, s3, 1\ns_mul_i32 s62, s62, {7*8*3584}\ns_add_u32 s55, s55, s62")
A(f"s_mul_i32 s57, s3, 7168\ns_add_u32 s57, s57, {TT}")
def gu_dmas(lab):
    A(f"s_cmp_ge_u32 s31, 112\ns_cbranch_scc1 {lab}")
    for i in range(7):
        if i: A(f"s_add_u32 s55, s55, {8*3584}")
        dma("v9", R1, "s55", "s57", i*1024)
    A.label(lab)
A(f"v_lshlrev_b32 v40, 4, v0")
def wo_dmas():
    srd(R1, 14, 16*256*896)
    A(f"s_mul_i32 s56, s31, 28672\ns_mul_i32 s57, s3, 7168\ns_add_u32 s56, s56, s57\ns_add_u32 s57, s57, {WO}")
    for i in range(7):
        if i: A("s_add_u32 s56, s56, 1024")
        dma("v40", R1, "s56", "s57", 1024*i)
EW = 0
A(f"v_add_u32 v41, s59, v40")
A(f"s_lshl_b32 s64, s3, 10\ns_add_u32 s64, s64, {BIG}\nv_add_u32 v42, s64, v40")
A(f"v_add_u32 v43, 0x10000, v42")
A(f"v_lshlrev_b32 v56, 5, v0\ns_lshl_b32 s64, s3, 3\nv_add_u32 v57, s64, v56")
A(f"v_lshlrev_b32 v58, 4, {vN}\ns_lshl_b32 s64, s3, 2\nv_add_u32 v59, s64, v58")
A("v_mov_b32 v60, 0x3f803f80\nv_mov_b32 v61, v60\nv_mov_b32 v62, v60\nv_mov_b32 v63, v60")
A(f"v_mul_u32_u24 v36, {4*LS}, {vG}\nv_lshl_add_u32 v36, {vN}, 4, v36")
A(f"s_mul_i32 s64, s3, {32*LS}\ns_lshl_b32 s63, s31, 8\ns_add_u32 s64, s64, s63\ns_add_u32 s64, s64, {LAT}\ns_mul_i32 s66, s31, {SS}\ns_add_u32 s66, s66, {STAT}")
A("s_mov_b32 s65, 0xfffefffe\ns_mov_b32 s67, 0x07060302")
A("s_cmp_eq_u32 s3, 3\ns_cselect_b32 s68, 0xffff, 0")
if opt["stat4"]:
    A(f"v_lshrrev_b32 v52, 2, v0\nv_mul_u32_u24 v37, {S4}, v52\nv_and_b32 v53, 3, v0\nv_lshl_add_u32 v37, v53, 4, v37\nv_lshlrev_b32 v52, 2, v52")
    A(f"s_mul_i32 s66, s3, {32*S4}\ns_lshl_b32 s62, s31, 6\ns_add_u32 s66, s66, s62\ns_add_u32 s66, s66, {ST3}")
if opt["stat3"]:
    sh = opt["stat3"]
    A(f"v_lshlrev_b32 v37, {sh+7}, v0\ns_lshl_b32 s66, s3, {sh+12}\ns_lshl_b32 s62, s31, {sh}\ns_add_u32 s66, s66, s62\ns_add_u32 s66, s66, {ST3}")
GW = 2
A(f"s_lshr_b32 s62, s31, 5\ns_lshl_b32 s63, s62, 6\nv_mov_b32 v52, s63\nv_mov_b32 v53, 1\ns_mul_i32 s73, s62, {32*SS}\ns_add_u32 s73, s73, {QAF}\nv_mul_u32_u24 v54, {4*SS}, v0\ns_mov_b32 s74, 0")
def arrive():
    A(f"s_cmp_lg_u32 s3, {GW}\ns_cbranch_scc1 L_arr\ns_mov_b64 exec, 1")
    A.raw("  global_atomic_add v53, v52, v53, s[26:27] sc0 sc1")
    A("s_mov_b64 exec, -1")
    A.label("L_arr")
def resolve():
    A(f"s_cmp_lg_u32 s3, {GW}\ns_cbranch_scc1 L_res")
    if opt["gupos"] == 0:
        A("s_waitcnt vmcnt(7)\ns_cmp_lt_u32 s31, 112\ns_cbranch_scc1 L_res2")
    A("s_waitcnt vmcnt(0)")
    A.label("L_res2")
    A("v_readfirstlane_b32 s74, v53")
    A.label("L_res")
def go():
    A(f"s_cmp_lg_u32 s74, 31\ns_cbranch_scc1 L_go\ns_mov_b64 exec, 0xff")
    A(f"buffer_store_dword {vTAG}, v54, {WS}, s73 offen sc1\ns_mov_b64 exec, -1")
    A.label("L_go")
A("s_waitcnt vmcnt(16)"); stage_tile(2)
A("s_waitcnt vmcnt(8)"); stage_tile(3)
spin_init()
A("s_waitcnt lgkmcnt(0)")
stamp(5)
A.label("L_qk")
for s in range(8):
    if s == 0:
        A("s_waitcnt vmcnt(4)")
        for s2 in range(4): A(f"ds_read_b128 v[{64+4*s2}:{67+4*s2}], v{48+s2}")
    if s == 1:
        A("s_waitcnt vmcnt(0)")
        for s2 in range(4): A(f"ds_read_b128 v[{80+4*s2}:{83+4*s2}], v{48+s2} offset:4096")
    A(f"s_waitcnt lgkmcnt({3 if s == 0 else 7-s})")
    for T in range(4):
        A(f"v_mfma_f32_16x16x32_bf16 v[{96+4*T}:{99+4*T}], a[{32*T+4*s}:{32*T+4*s+3}], v[{64+4*s}:{67+4*s}], {'0' if s==0 else f'v[{96+4*T}:{99+4*T}]'}")
        if s == 0 and T == 0: A("v_xor_b32 v55, v64, v32")
        else: A(f"v_bitop3_b32 v55, v{64+4*s+T}, v{32+T}, v55 bitop3:0xbe")
A("v_and_b32 v55, 0x10001, v55\nv_cmp_ne_u32 vcc, 0, v55\ns_cbranch_vccz L_qk2")
A("s_nop 7")
qa_loads()
spin_check()
if STAMPS: A(f"s_sub_u32 s62, 400000, s96\nv_writelane_b32 {vST}, s62, 14")
A("s_branch L_qk")
A.label("L_qk2")
A("s_nop 4")
if opt["hpos"] == 0: arrive()
stamp(6)
for T in range(4): A(f"ds_write_b128 v41, v[{96+4*T}:{99+4*T}] offset:{1024*T}")
if opt["gupos"] == 0: gu_dmas("L_gu")
A("s_waitcnt lgkmcnt(0)\ns_barrier")
if opt["hpos"] == 1: arrive()
stamp(7)
A("ds_read_b128 v[64:67], v42\nds_read_b128 v[68:71], v42 offset:32768\nds_read_b128 v[72:75], v43\nds_read_b128 v[76:79], v43 offset:32768")
A("s_waitcnt lgkmcnt(2)")
for r in range(4): A(f"v_add_f32 v{64+r}, v{64+r}, v{68+r}")
A("s_waitcnt lgkmcnt(0)")
for r in range(4): A(f"v_add_f32 v{72+r}, v{72+r}, v{76+r}")
for r in range(4): A(f"v_add_f32 v{64+r}, v{64+r}, v{72+r}")
if opt["round_s"]:
    A("v_cvt_pk_bf16_f32 v68, v64, v65\nv_cvt_pk_bf16_f32 v69, v66, v67")
    A("v_lshlrev_b32 v64, 16, v68\nv_and_b32 v65, 0xffff0000, v68\nv_lshlrev_b32 v66, 16, v69\nv_and_b32 v67, 0xffff0000, v69")
for r in range(4): A(f"v_mul_f32 v{64+r}, {hex(f2u(1.4426950408889634))}, v{64+r}")
A("v_max3_f32 v68, v64, v65, v66\nv_max_f32 v68, v68, v67")
swap_red(68, 69, 16, "v_max_f32"); swap_red(68, 69, 32, "v_max_f32")
A("v_ceil_f32 v68, v68")
for r in range(4): A(f"v_sub_f32 v{64+r}, v{64+r}, v68")
for r in range(4): A(f"v_exp_f32 v{64+r}, v{64+r}")
A(f"ds_write_b32 v59, v68 offset:{EX+2048}")
A("v_cvt_pk_bf16_f32 v64, v64, v65\nv_cvt_pk_bf16_f32 v65, v66, v67")
A(f"ds_write_b64 v57, v[64:65] offset:{EX}")
A("s_waitcnt lgkmcnt(0)\ns_barrier")
resolve()
A(f"ds_read_b128 v[72:75], v58 offset:{EX+2048}\nds_read_b128 v[64:67], v56 offset:{EX}\nds_read_b128 v[68:71], v56 offset:{EX+16}")
A("s_waitcnt lgkmcnt(2)")
A("v_max3_f32 v76, v72, v73, v74\nv_max_f32 v76, v76, v75")
for T in range(4):
    A(f"v_sub_f32 v{72+T}, v76, v{72+T}\nv_min_f32 v{72+T}, 0x437f0000, v{72+T}\nv_cvt_u32_f32 v{72+T}, v{72+T}\nv_mul_u32_u24 v{72+T}, 0x800080, v{72+T}")
A("s_waitcnt lgkmcnt(0)")
for T in range(4):
    for k in range(2): A(f"v_pk_sub_u16 v{64+2*T+k}, v{64+2*T+k}, v{72+T} clamp")
stamp(8)
ACC = 128
def pv(t):
    for u in range(2):
        A(f"v_mfma_f32_16x16x32_bf16 v[{ACC+4*t}:{ACC+4*t+3}], v[{64+4*u}:{67+4*u}], a[{128+8*t+4*u}:{131+8*t+4*u}], {'0' if u==0 else f'v[{ACC+4*t}:{ACC+4*t+3}]'}")
def latpack(half, r, jj):
    d = 96 + 16*half + 4*r + jj; t0 = 8*half + 2*jj
    return [f"v_perm_b32 v{d}, v{ACC+4*(t0+1)+r}, v{ACC+4*t0+r}, s67", f"v_pk_add_u16 v{d}, v{d}, v{28+jj}", f"v_and_or_b32 v{d}, v{d}, s65, v{24+jj}"]
def latstore(half, r):
    d = 96 + 16*half + 4*r
    return [f"s_add_u32 s63, s64, {(half*16+r)*LS}", f"buffer_store_dwordx4 v[{d}:{d+3}], v36, {WS}, s63 offen sc1"]
def statstore():
    if opt["stat4"]:
        A("s_waitcnt lgkmcnt(0)")
        A(f"buffer_store_dwordx4 v[84:87], v37, {WS}, s66 offen sc1\ns_add_u32 s66, s66, {16*S4}\nbuffer_store_dwordx4 v[84:87], v37, {WS}, s66 offen sc1")
        return
    if opt["stat3"]:
        A(f"s_mov_b32 exec_hi, 0\nbuffer_store_dwordx4 v[76:79], v37, {WS}, s66 offen sc1\ns_mov_b64 exec, -1")
        return
    A(f"s_mov_b32 exec_lo, s68\ns_mov_b32 exec_hi, 0\ns_cbranch_execz L_st{statstore.n}")
    A(f"buffer_store_dwordx4 v[76:79], v40, {WS}, s66 offen sc1")
    A.label(f"L_st{statstore.n}")
    A("s_mov_b64 exec, -1")
statstore.n = 0
for u in range(2): A(f"v_mfma_f32_16x16x32_bf16 v[80:83], v[60:63], v[{64+4*u}:{67+4*u}], {'0' if u==0 else 'v[80:83]'}")
for t in range(8):
    pv(t)
    if t == 4 and opt["stat4"]:
        A(f"ds_bpermute_b32 v84, v52, v76\nds_bpermute_b32 v85, v52, v80\nv_mov_b32 v86, {vTAG}\nv_mov_b32 v87, {vTAG}")
if not opt["stat4"]: A(f"v_mov_b32 v77, v80\nv_mov_b32 v78, {vTAG}\nv_mov_b32 v79, {vTAG}")
if opt["statpos"] == 0: statstore()
if opt["gopos"] == 0: go()
fill = []
for r in range(4):
    for jj in range(4): fill += latpack(0, r, jj)
    fill += latstore(0, r)
pv(8)
mf = [(t, u) for t in range(9, 16) for u in range(2)]
per = -(-len(fill) // len(mf))
for k, (t, u) in enumerate(mf):
    A(f"v_mfma_f32_16x16x32_bf16 v[{ACC+4*t}:{ACC+4*t+3}], v[{64+4*u}:{67+4*u}], a[{128+8*t+4*u}:{131+8*t+4*u}], {'0' if u==0 else f'v[{ACC+4*t}:{ACC+4*t+3}]'}")
    for x in fill[k*per:(k+1)*per]: A(x)
if opt["statpos"] == 1: statstore()
if opt["gopos"] == 1: go()
for r in range(4):
    for jj in range(4):
        for x in latpack(1, r, jj): A(x)
    for x in latstore(1, r): A(x)
if opt["statpos"] == 2: statstore()
if opt["gopos"] == 2: go()
stamp(9)
if opt["statpos"] == 3:
    A("s_waitcnt vmcnt(4)"); statstore()
if opt["statpos"] == 4:
    A("s_waitcnt vmcnt(0)"); statstore()
if opt["ackwait"]:
    A("s_waitcnt vmcnt(4)"); stamp(2)
    A("s_waitcnt vmcnt(0)"); stamp(3)
if opt["gupos"] == 1: gu_dmas("L_gu")
A("s_cmp_ge_u32 s31, 112\ns_cbranch_scc1 L_awo")
srd(R2, 22, 1792*896)
A(f"s_mul_i32 s55, s31, 14336\ns_lshl_b32 s62, s3, 10\ns_add_u32 s55, s55, s62\ns_add_u32 s69, s62, {WD}")
for i in range(3):
    if i: A("s_add_u32 s55, s55, 4096")
    dma("v40", R2, "s55", "s69", 4096*i)
A("s_cmp_ge_u32 s3, 2\ns_cbranch_scc1 L_ad3")
A("s_add_u32 s62, s55, 4096")
dma("v40", R2, "s62", "s69", 12288)
A.label("L_ad3")
xn_operands(192, 3, 224, 7)
tr128_addr(38)
A("s_lshl_b32 s62, s3, 5\nv_xor_b32 v38, s62, v38\nv_lshlrev_b32 v40, 4, v0")
A(f"v_lshlrev_b32 v41, 6, {vG}\nv_lshl_add_u32 v41, {vN}, 4, v41")
A(f"s_lshl_b32 s64, s54, 2\ns_add_u32 s64, s64, s3\ns_mul_i32 s64, s64, {SS}\ns_lshl_b32 s63, s53, 8\ns_add_u32 s64, s64, s63\ns_add_u32 s64, s64, {HP}")
A(f"s_waitcnt vmcnt({3 if opt['gupos']==1 else 11+2*opt['stat4']}) lgkmcnt(0)")
A("s_barrier")
for mat in range(2):
    for s in range(7): A(f"ds_read_b64_tr_b16 v[{208+14*mat+2*s}:{209+14*mat+2*s}], v38 offset:{14336*mat+2048*s}")
for mat in range(2):
    for s in range(7):
        A(f"s_waitcnt lgkmcnt({13-7*mat-s})")
        A(f"v_mfma_f32_16x16x16_bf16 v[{128+4*mat}:{131+4*mat}], v[{208+14*mat+2*s}:{209+14*mat+2*s}], v[{192+2*s}:{193+2*s}], {'0' if s==0 else f'v[{128+4*mat}:{131+4*mat}]'}")
tag_insert(48, 128)
setexec16(0xc); tag_insert(48, 132); setexec16(0xf)
A(f"buffer_store_dwordx4 v[48:51], v41, {WS}, s64 offen sc1")
A("s_mov_b64 exec, -1")
stamp(1)
A.label("L_awo")
wo_dmas()
A(f"v_lshrrev_b32 v43, 2, {vN}\nv_lshlrev_b32 v42, 1, v43\nv_add_u32 v42, v42, v12\nv_mul_u32_u24 v42, {FS}, v42\nv_and_b32 v44, 1, {vG}\nv_lshl_add_u32 v42, v44, 6, v42\nv_and_b32 v44, 3, v0\nv_lshl_add_u32 v42, v44, 4, v42")
A("s_lshl_b32 s66, s3, 2\ns_cmp_eq_u32 s3, 3\ns_cselect_b32 s66, 11, s66")
A(f"s_mul_i32 s64, s66, {2*FS}\ns_lshl_b32 s62, s31, 7\ns_add_u32 s64, s64, s62")
A("s_cmp_ge_u32 s3, 2\ns_cselect_b32 s67, 0x0fff0fff, -1")
A(f"v_lshl_add_u32 v46, {vG}, 2, v43\nv_mul_u32_u24 v46, 896, v46\nv_lshl_add_u32 v46, v44, 3, v46\ns_lshl_b32 s62, s66, 6\nv_add_u32 v46, s62, v46")
A(f"v_add_u32 v47, {WO}, v46\nv_add_u32 v46, {WD}, v46")
def merged_publish(dbase, base_off):
    for t in range(8):
        setexec16(3 << (2*t)); tag_insert(64, dbase+4*t)
    A(f"s_mov_b32 exec_lo, s67\ns_mov_b32 exec_hi, s67\ns_add_u32 s62, s64, {base_off}")
    A(f"buffer_store_dwordx4 v[64:67], v42, {WS}, s62 offen sc1")
    A("s_mov_b64 exec, -1")
A("s_cmp_ge_u32 s31, 112\ns_cbranch_scc1 L_aout")
A(f"v_lshlrev_b32 v45, 8, v43\nv_lshl_add_u32 v45, {vG}, 6, v45\nv_lshl_add_u32 v45, v44, 4, v45\ns_mul_i32 s63, s31, {SS}\ns_add_u32 s63, s63, {HP}")
spin_init()
A(f"s_waitcnt vmcnt({opt['hpw']})")
A.label("L_ah")
A(f"buffer_load_dwordx4 v[68:71], v45, {WS}, s63 offen sc1")
spin_check()
A("s_waitcnt vmcnt(0)")
tag_check_acc(68, 53, 54, True, 55)
A("v_cmp_ne_u32 vcc, 0, v55\ns_cbranch_vccnz L_ah")
A("s_barrier")
for t in range(8): A(f"ds_read_b64_tr_b16 v[{96+2*t}:{97+2*t}], v46 offset:{32*t}")
for k in (4, 8):
    for r in range(4): A(f"v_add_f32_dpp v{68+r}, v{68+r}, v{68+r} row_ror:{k} {DPPM}")
for r in range(4): bf16r(68+r, 68+r)
for r in range(4):
    A(f"v_mov_b32_dpp v{72+r}, v{68+r} quad_perm:[0,1,0,1] {DPPM}\nv_mov_b32_dpp v{76+r}, v{68+r} quad_perm:[2,3,2,3] {DPPM}")
c1 = -2.0*0.7978845608028654*1.4426950408889634; c2 = c1*0.044715
A(f"s_mov_b32 s62, {hex(f2u(c2))}\nv_mov_b32 v84, {hex(f2u(c1))}")
for r in range(4):
    A(f"v_mul_f32 v{80+r}, v{72+r}, v{72+r}\nv_fma_f32 v{80+r}, v{80+r}, s62, v84\nv_mul_f32 v{80+r}, v{80+r}, v{72+r}")
for r in range(4): A(f"v_exp_f32 v{80+r}, v{80+r}")
for r in range(4): A(f"v_add_f32 v{80+r}, 1.0, v{80+r}")
for r in range(4): A(f"v_rcp_f32 v{80+r}, v{80+r}")
for r in range(4): A(f"v_mul_f32 v{80+r}, v{80+r}, v{72+r}")
for r in range(4): bf16r(80+r, 80+r)
for r in range(4): A(f"v_mul_f32 v{80+r}, v{80+r}, v{76+r}")
A("v_cvt_pk_bf16_f32 v80, v80, v81\nv_cvt_pk_bf16_f32 v81, v82, v83")
A("s_waitcnt lgkmcnt(0)")
for t in range(8): A(f"v_mfma_f32_16x16x16_bf16 v[{128+4*t}:{131+4*t}], v[{96+2*t}:{97+2*t}], v[80:81], 0")
merged_publish(128, YP)
A.flush()
stamp(10)
A("s_branch L_aout2")
A.label("L_aout")
A("s_waitcnt vmcnt(0)\ns_barrier")
A.label("L_aout2")
stamp(11)
for t in range(8):
    for z in range(2): A(f"ds_read_b64_tr_b16 v[{96+4*t+2*z}:{97+4*t+2*z}], v47 offset:{32*t+16*896*z}")
A(f"v_lshrrev_b32 v45, 1, {vN}\nv_lshlrev_b32 v45, 8, v45\nv_lshl_add_u32 v45, {vG}, 6, v45\nv_lshl_add_u32 v45, v14, 4, v45\ns_mul_i32 s63, s31, {SS}\ns_add_u32 s63, s63, {CTXP}")
def ctx_first(b):
    for r in range(8): A(f"v_add_f32_dpp v{68+r}, v{b+r}, v{b+r} row_ror:2 {DPPM}")
pipe_poll("L_ac", [("v45", "s63", 0), ("v45", "s63", 32)], [164, 172], ctx_first, pre=(opt['prepoll']>1))
stamp(12)
for k in (4, 8):
    for r in range(8): A(f"v_add_f32_dpp v{68+r}, v{68+r}, v{68+r} row_ror:{k} {DPPM}")
for r in range(4): A(f"v_cvt_pk_bf16_f32 v{80+r}, v{68+2*r}, v{69+2*r}")
A("s_waitcnt lgkmcnt(0)")
for t in range(8): A(f"v_mfma_f32_16x16x32_bf16 v[{128+4*t}:{131+4*t}], v[{96+4*t}:{99+4*t}], v[80:83], 0")
merged_publish(128, OUTP)
stamp(13)
A.label("L_end")
if opt["hold"]:
    if opt["holdwg"] >= 0: A(f"s_cmp_lg_u32 s2, {opt['holdwg']}\ns_cbranch_scc1 L_end0")
    A.label("L_hold")
    A(f"s_memrealtime s[98:99]\ns_waitcnt lgkmcnt(0)\ns_sub_u32 s98, s98, s100\ns_cmp_lt_u32 s98, {opt['hold']}\ns_cbranch_scc1 L_hold")
if STAMPS:
    A("s_mov_b64 exec, -1")
    A("s_memrealtime s[98:99]\ns_waitcnt lgkmcnt(0)")
    A(f"v_writelane_b32 {vST}, s98, 15")
    A(f"s_lshl_b32 s62, s2, 2\ns_add_u32 s62, s62, s3\ns_lshl_b32 s62, s62, 8\ns_add_u32 s62, s62, {STAMP}\nv_lshlrev_b32 v4, 2, v0")
    A(f"buffer_store_dword {vST}, v4, {WS}, s62 offen")
    if STAMPS == 2:
        wmap = {0:0, 3:1, 5:2, 7:3, 8:4, 10:5, 12:6, 15:15}
        amap = {0:0, 4:8, 6:9, 7:10, 9:11, 11:12, 12:13, 13:14, 15:15}
        A("v_mov_b32 v5, 63\nv_mov_b32 v6, 63")
        for k, sl in wmap.items(): A(f"s_mov_b32 s63, {sl}\nv_writelane_b32 v5, s63, {k}")
        for k, sl in amap.items(): A(f"s_mov_b32 s63, {sl}\nv_writelane_b32 v6, s63, {k}")
        A(f"v_readlane_b32 s63, {vST}, 0\ns_nop 3\ns_mov_b32 s64, s63\ns_not_b32 s63, s63\nv_writelane_b32 {vST}, s63, 0")
        A(f"v_writelane_b32 {vST}, s64, 16\ns_mov_b32 s63, 7\nv_writelane_b32 v5, s63, 16\nv_writelane_b32 v6, s63, 16")
        A("s_cmp_ge_u32 s2, 128\ns_cselect_b64 vcc, -1, 0\ns_nop 1\nv_cndmask_b32 v5, v5, v6, vcc\nv_lshlrev_b32 v5, 2, v5")
        A("s_mov_b64 exec, 0x1ffff")
        A.raw(f"  global_atomic_umax v5, {vST}, s[26:27] sc1")
A.label("L_end0")
A("s_endpgm")
A.raw(f".fill ({opt['codekb']}*1024 - (. - {NAME}))/4, 4, 0xbf800000")
A.raw('.section .rodata,"a"\n.p2align 6')
A.raw(f""".amdhsa_kernel {NAME}
  .amdhsa_next_free_vgpr 512
  .amdhsa_next_free_sgpr 102
  .amdhsa_accum_offset 256
  .amdhsa_group_segment_fixed_size 0
  .amdhsa_kernarg_size 104
  .amdhsa_user_sgpr_count 2
  .amdhsa_user_sgpr_kernarg_segment_ptr 1
  .amdhsa_system_sgpr_workgroup_id_x 1
.end_amdhsa_kernel""")
sys.stdout.write(A.text())
```

```python
import re
TRANS = ("v_exp_f32","v_log_f32","v_rcp_f32","v_rsq_f32","v_sqrt_f32","v_sin_f32","v_cos_f32","v_rcp_iflag_f32")
def regs_of(tok):
    t = tok.strip()
    t = re.sub(r"^(neg|abs)\((.*)\)$", r"\2", t).lstrip("-").strip("|")
    m = re.fullmatch(r"([vas])(\d+)", t)
    if m: return {(m.group(1), int(m.group(2)))}
    m = re.fullmatch(r"([vas])\[(\d+):(\d+)\]", t)
    if m: return {(m.group(1), i) for i in range(int(m.group(2)), int(m.group(3))+1)}
    if t == "vcc": return {("s",106),("s",107)}
    if t == "exec": return {("s",126),("s",127)}
    if t == "m0": return {("s",124)}
    return set()
def split_ops(s):
    ops, depth, cur = [], 0, ""
    for ch in s:
        if ch in "[(": depth += 1
        elif ch in "])": depth -= 1
        if ch == "," and depth == 0: ops.append(cur.strip()); cur = ""
        else: cur += ch
    if cur.strip(): ops.append(cur.strip())
    mods = []
    out = []
    for o in ops:
        parts = o.split()
        out.append(parts[0]); mods += parts[1:]
    return out, mods
class I:
    def __init__(self, text):
        self.text = text
        parts = text.strip().split(None, 1)
        self.mn = parts[0]
        self.ops, self.mods = split_ops(parts[1]) if len(parts) > 1 else ([], [])
        mn = self.mn; R = [regs_of(o) for o in self.ops]
        U = lambda l: set().union(*l) if l else set()
        self.kind = "other"; self.w = set(); self.r = set(); self.srcC = set(); self.ab = set(); self.states = 1
        self.dpp = mn.endswith("_dpp") or any(m.startswith(("row_","quad_perm","wave_")) for m in self.mods)
        self.storedata = set()
        if mn == "s_nop": self.states = int(self.ops[0], 0) + 1; self.kind = "salu"
        elif mn.startswith("v_mfma"):
            self.kind = "mfma"; self.w = R[0]; self.ab = R[1] | R[2]; self.srcC = R[3]; self.r = self.ab | self.srcC
            self.passes = 8 if "32x32" in mn else 4
        elif mn.startswith("v_"):
            self.kind = "valu"
            if mn.startswith("v_permlane") and "swap" in mn: self.w = U(R[:2]); self.r = U(R[:2])
            elif mn.startswith(("v_add_co","v_sub_co","v_addc_co","v_subb_co")): self.w = U(R[:2]); self.r = U(R[2:])
            else:
                self.w = R[0]; self.r = U(R[1:])
                if mn.startswith(("v_fmac","v_dot2c","v_pk_fmac")) or self.dpp or mn.startswith("v_writelane"): self.r |= R[0]
        elif mn.startswith("ds_"):
            self.kind = "ds"
            if mn.startswith(("ds_read","ds_bpermute","ds_permute","ds_swizzle")): self.w = R[0]; self.r = U(R[1:])
            else: self.r = U(R)
        elif mn.startswith(("buffer_","global_")):
            self.kind = "vmem"
            self.ldsdma = ("lds" in self.mods) or ("_lds_" in mn)
            if "load" in mn and not self.ldsdma: self.w = R[0]; self.r = U(R[1:])
            else:
                self.r = U(R)
                if self.ldsdma: self.r |= {("s",124)}
                if "store" in mn and ("x3" in mn or "x4" in mn):
                    self.storedata = R[0] if mn.startswith("buffer_") else R[1]
        elif mn.startswith("s_"):
            self.kind = "salu"
            if mn.startswith(("s_load","s_buffer_load","s_memtime","s_memrealtime")): self.kind = "smem"; self.w = R[0]; self.r = U(R[1:])
            elif mn.startswith(("s_cmp","s_waitcnt","s_barrier","s_branch","s_cbranch","s_endpgm","s_sleep","s_setprio","s_bitcmp")): self.r = U(R)
            else:
                self.w = R[0] if R else set(); self.r = U(R[1:])
                if "saveexec" in mn: self.w |= regs_of("exec")
def need(p, c):
    n = 0
    vg = lambda s: {x for x in s if x[0] in "va"}
    sg = lambda s: {x for x in s if x[0] == "s"}
    if p.kind == "valu":
        pw = vg(p.w); ps = sg(p.w)
        isdot = p.mn.startswith("v_dot")
        if c.kind == "mfma" and pw & c.r: n = max(n, 3 if isdot else 2)
        if c.kind == "valu":
            if c.dpp and pw & c.r: n = max(n, 2)
            if c.mn.startswith("v_permlane") and pw & c.r: n = max(n, 2)
            if c.mn.startswith(("v_readlane","v_readfirstlane")) and pw & c.r: n = max(n, 1)
            if ps & c.r: n = max(n, 4 if c.mn.startswith(("v_readlane","v_writelane")) else 2)
        if p.mn.replace("_e32","").replace("_e64","") in TRANS and pw & c.r: n = max(n, 1)
        if isdot and pw & (c.r | c.w):
            same_c = (c.mn == p.mn) and not (pw & (regs_of(c.ops[1]) | regs_of(c.ops[2])))
            if not same_c: n = max(n, 3)
        if c.kind == "vmem" and ps & c.r: n = max(n, 5)
        if c.kind in ("smem",) and ps & c.r: n = max(n, 5)
        if c.kind == "salu" and ps & c.r: n = max(n, 1)
    if p.kind == "mfma":
        big = {4: 8, 8: 12}[p.passes]; ov = {4: 6, 8: 10}[p.passes]; war = {4: 3, 8: 7}[p.passes]
        if c.kind == "mfma":
            if p.w & c.ab: n = max(n, big)
            if p.w & c.srcC and not (p.w == c.srcC and p.passes == c.passes): n = max(n, ov)
            if p.w & c.w and not (p.w == c.srcC): n = max(n, ov)
        elif c.kind in ("valu","vmem","ds"):
            if p.w & (c.r | c.w): n = max(n, big)
            if c.kind == "valu" and p.srcC & c.w: n = max(n, war)
            if c.kind in ("ds","vmem") and p.srcC & c.w: n = max(n, war)
    if p.kind == "salu" and ("s",124) in p.w and c.kind == "vmem" and getattr(c,"ldsdma",False): n = max(n, 1)
    if p.storedata and p.storedata & c.w: n = max(n, 2)
    return n
class Asm:
    def __init__(self):
        self.lines = []; self.hist = []; self.nnop = 0
    def raw(self, s): self.lines.append(s)
    def label(self, s):
        self.lines.append(s + ":")
        for i, p in enumerate(self.hist):
            if p.mn.startswith(("s_cbranch", "s_branch")) and p.ops and p.ops[0] == s:
                for q in self.hist[i+1:]: q.states = 0
                break
    def c(self, s): self.lines.append("  ; " + s)
    def __call__(self, text):
        for t in text.split("\n"):
            t = t.split(";")[0].strip()
            if not t: continue
            ins = I(t)
            dist = 0; pad = 0
            for p in reversed(self.hist):
                pad = max(pad, need(p, ins) - dist)
                dist += p.states
                if dist >= 20: break
            if pad > 0:
                self._emit(I(f"s_nop {pad-1}")); self.nnop += 1
            self._emit(ins)
    def _emit(self, ins):
        self.lines.append("  " + ins.text); self.hist.append(ins)
        if len(self.hist) > 400: self.hist.pop(0)
    def flush(self, n=12):
        dist = 0; pad = 0
        for p in reversed(self.hist):
            lim = 12 if p.kind == "mfma" else (5 if p.kind == "valu" else (2 if p.storedata else 1 if ("s",124) in p.w else 0))
            pad = max(pad, lim - dist); dist += p.states
            if dist >= 20: break
        if pad > 0: self._emit(I(f"s_nop {pad-1}"))
    def text(self): return "\n".join(self.lines) + "\n"
```

```python
import sys, struct
from asmdsl import Asm
NAME = "recurrent_scan__compressed_kv_cla__geglu_ffn__decode_kernel"
opt = dict(stamps=0, nt="nt", codekb=22, adepth=1, athr=4, apre=1, wd0=8, w2thr=2, psleep=1, prepoll=0, ppsleep=2,
           qpos=28, arrpos=1, gopos=104, gol=32, wopos=1, fill=2, pretouch=1, eps=0, pvst=0, w2d0=6, early_wo=0, wodelay=1, w2dep=1, pfn=0, pfnt=1, pfw=0)
for a in sys.argv[1:]:
    k, v = a.split("="); assert k in opt, k
    opt[k] = v if k == "nt" else int(v)
NT = opt["nt"] if opt["nt"] != "none" else ""
STAMPS = opt["stamps"]
def f2u(x): return struct.unpack("<I", struct.pack("<f", x))[0]
LOG2E = 1.4426950408889634
SS = 16640
MB = 0x200000
CTXP, HP, QP, QA, STAT, GO = MB, MB+2048, MB+3072, MB+3584, MB+4096, MB+4352
FS = 73984
OUTP = 0x500000; YP = OUTP + 16384
LAT, STAMP = 0x800000, 0xE00000
LS = 33024
WSSZ = 0x1000000
XN, EX, TT, BIG = 0, 1792, 4096, 32768
LDSSZ = 163840
DPPM = "row_mask:0xf bank_mask:0xf"
A = Asm()
hdr = open("recurrent_scan__compressed_kv_cla__geglu_ffn__decode.s.ref").read().split("; Override launch")[0]
A.raw(hdr.rstrip())
A.raw(f"; @launch grid=(256,1,1) block=(256,1,1) lds={LDSSZ}")
A.raw('.amdgcn_target "amdgcn-amd-amdhsa--gfx950"\n.text')
A.raw(f".globl {NAME}\n.p2align 8\n.type {NAME},@function\n{NAME}:")
WS = "s[32:35]"; R1 = "s[36:39]"; R2 = "s[40:43]"
vN, vG, vTAG, vST = "v1", "v2", "v3", "v255"
def stamp(k):
    if STAMPS: A(f"s_memrealtime s[98:99]\ns_waitcnt lgkmcnt(0)\nv_writelane_b32 {vST}, s98, {k}")
def note_retry():
    if STAMPS: A(f"s_sub_u32 s62, 400000, s96\nv_writelane_b32 {vST}, s62, 14")
def srd(r, lo, size):
    b = int(r[2:4])
    A(f"s_mov_b32 s{b}, s{lo}\ns_mov_b32 s{b+1}, s{lo+1}\ns_mov_b32 s{b+2}, {size}\ns_mov_b32 s{b+3}, 0x20000")
def setexec16(m):
    m |= m << 16
    A(f"s_mov_b32 exec_lo, {hex(m)}\ns_mov_b32 exec_hi, {hex(m)}")
def tag_insert(dst, src):
    for r in range(4): A(f"v_perm_b32 v{dst+r}, v{src+r}, {vTAG}, s{44+r}")
def tag_check(bases, acc=55, first=True):
    for base in bases:
        A(f"v_perm_b32 v53, v{base+1}, v{base}, s48\nv_perm_b32 v54, v{base+3}, v{base+2}, s49")
        if first: A(f"v_bitop3_b32 v{acc}, v53, v54, {vTAG} bitop3:0x56")
        else: A(f"v_bitop3_b32 v53, v53, v54, {vTAG} bitop3:0x56\nv_or_b32 v{acc}, v{acc}, v53")
        first = False
def spin_init(): A("s_mov_b32 s96, 400000")
def spin_check(): A("s_sub_u32 s96, s96, 1\ns_cbranch_scc1 L_end")
def bf16r(dst, src):
    A(f"v_cvt_pk_bf16_f32 v{dst}, v{src}, v{src}\nv_and_b32 v{dst}, 0xffff0000, v{dst}")
def row_red(x, op="v_add_f32", steps=(8,4,2,1)):
    for k in steps: A(f"{op}_dpp v{x}, v{x}, v{x} row_ror:{k} {DPPM}")
def oct_red(x, op):
    for m in ("quad_perm:[1,0,3,2]", "quad_perm:[2,3,0,1]", "row_half_mirror"): A(f"{op}_dpp v{x}, v{x}, v{x} {m} {DPPM}")
def swap_red(x, t, which, op="v_add_f32"):
    A(f"v_mov_b32 v{t}, v{x}\nv_permlane{which}_swap_b32 v{t}, v{x}\n{op} v{x}, v{x}, v{t}")
def dma(voff, rsrc, soff, ldsaddr_s, ldsadd, pre=None, mod=None):
    A(f"s_add_u32 m0, {ldsaddr_s}, {ldsadd}")
    if pre: A(pre)
    A(f"buffer_load_dwordx4 {voff}, {rsrc}, {soff} offen {NT if mod is None else mod} lds")
def mfma32(d, a, b, c): A(f"v_mfma_f32_16x16x32_bf16 v[{d}:{d+3}], {a}, {b}, {'0' if c else f'v[{d}:{d+3}]'}")
def mfma16(d, a, b, c): A(f"v_mfma_f32_16x16x16_bf16 v[{d}:{d+3}], {a}, {b}, {'0' if c else f'v[{d}:{d+3}]'}")
def V(b, n=4): return f"v[{b}:{b+n-1}]"
def AG(b, n=4): return f"a[{b}:{b+n-1}]"
def pipe_poll(lab, loads, sets, first_step, pre=False):
    n = len(loads)
    def issue(base):
        for i, (vo, so, off) in enumerate(loads):
            A(f"buffer_load_dwordx4 {V(base+4*i)}, {vo}, {WS}, {so} offen offset:{off} sc1")
    def check(base):
        tag_check([base+4*i for i in range(n)]); A("v_cmp_ne_u32 vcc, 0, v55")
    spin_init()
    if pre:
        vo, so, off = loads[0]
        A("s_mov_b64 exec, 1")
        A.label(lab+"_p")
        A(f"buffer_load_dwordx4 {V(sets[0])}, {vo}, {WS}, {so} offen offset:{off} sc1")
        if opt["ppsleep"]: A(f"s_sleep {opt['ppsleep']}")
        spin_check()
        A("s_waitcnt vmcnt(0)")
        tag_check([sets[0]]); A("v_cmp_ne_u32 vcc, 0, v55")
        A(f"s_cbranch_vccnz {lab}_p\ns_mov_b64 exec, -1")
    issue(sets[0])
    if opt["psleep"]: A(f"s_sleep {opt['psleep']}")
    A.label(lab)
    issue(sets[1])
    A(f"s_waitcnt vmcnt({n})")
    check(sets[0])
    A(f"s_cbranch_vccz {lab}_x")
    issue(sets[0])
    spin_check()
    A(f"s_waitcnt vmcnt({n})")
    check(sets[1])
    A(f"s_cbranch_vccnz {lab}")
    first_step(sets[1])
    A(f"s_branch {lab}_j")
    A.label(lab+"_x")
    first_step(sets[0])
    A.label(lab+"_j")
def xn_operands(dst, mask, mul, n, bsel="v14"):
    A(f"v_mul_u32_u24 v15, 896, {bsel}\nv_lshl_add_u32 v15, {vG}, 3, v15\ns_and_b32 s62, s2, {mask}\ns_mul_i32 s62, s62, {mul}\nv_add_u32 v15, s62, v15")
    for s in range(n): A(f"ds_read_b64 {V(dst+2*s,2)}, v15 offset:{32*s}")
def tr128_addr(dst):
    A(f"v_lshrrev_b32 v39, 2, {vN}\nv_lshl_add_u32 v39, {vG}, 2, v39")
    A(f"v_and_b32 v40, 6, v39\nv_bfe_u32 v41, v0, 1, 1\nv_xor_b32 v40, v40, v41")
    A(f"v_lshlrev_b32 v{dst}, 7, v39\nv_lshl_add_u32 v{dst}, v40, 4, v{dst}\nv_lshl_add_u32 v{dst}, v14, 3, v{dst}\nv_add_u32 v{dst}, {TT}, v{dst}")
    A(f"s_lshl_b32 s62, s3, 5\nv_xor_b32 v{dst}, s62, v{dst}")
def mktag(): A(f"s_add_u32 s30, s30, 0x01010101\nv_mov_b32 {vTAG}, s30")
def lsb_patterns(T, C=None, byg=False):
    if byg: A(f"v_lshlrev_b32 v39, 3, {vG}\nv_lshrrev_b32 v39, v39, {vTAG}")
    else: A(f"v_and_b32 v39, 3, v0\nv_lshlrev_b32 v39, 3, v39\nv_lshrrev_b32 v39, v39, {vTAG}")
    for j in range(4):
        A(f"v_bfe_u32 v{T+j}, v39, {2*j}, 1\nv_bfe_u32 v13, v39, {2*j+1}, 1\nv_lshl_or_b32 v{T+j}, v13, 16, v{T+j}")
        if C is not None: A(f"v_xor_b32 v{C+j}, 0x10001, v{T+j}")
def consts():
    A("s_mov_b32 s44, 0x07060500\ns_mov_b32 s45, 0x07060501\ns_mov_b32 s46, 0x07060502\ns_mov_b32 s47, 0x07060503")
    A("s_mov_b32 s48, 0x0c0c0400\ns_mov_b32 s49, 0x04000c0c")
def code_prefetch(lab):
    A("s_getpc_b64 s[50:51]")
    A.label(lab)
    A(f"s_sub_u32 s50, s50, {lab}-{NAME}\ns_subb_u32 s51, s51, 0")
    A(f"s_lshr_b32 s52, s31, 3\ns_lshl_b32 s52, s52, 2\ns_add_u32 s52, s52, s3\ns_min_u32 s52, s52, {opt['codekb']-1}\ns_lshl_b32 s52, s52, 10")
    A(f"v_lshlrev_b32 v5, 4, v0\nv_add_u32 v4, s52, v5")
    A("global_load_dwordx4 v[250:253], v4, s[50:51]")
def layernorm():
    for i in range(7):
        A(f"v_lshlrev_b32 v{24+2*i}, 16, v{16+i}\nv_and_b32 v{25+2*i}, 0xffff0000, v{16+i}")
    A("v_add_f32 v40, v24, v25\nv_add_f32 v41, v26, v27")
    for i in range(4, 14, 2): A(f"v_add_f32 v40, v40, v{24+i}\nv_add_f32 v41, v41, v{25+i}")
    A("v_add_f32 v40, v40, v41")
    row_red(40); swap_red(40, 41, 16)
    A(f"v_mul_f32 v40, {hex(f2u(1.0/448))}, v40")
    A("v_sub_f32 v42, v24, v40\nv_sub_f32 v43, v25, v40\nv_mul_f32 v44, v42, v42\nv_mul_f32 v45, v43, v43")
    for i in range(2, 14, 2):
        A(f"v_sub_f32 v42, v{24+i}, v40\nv_sub_f32 v43, v{25+i}, v40\nv_fmac_f32 v44, v42, v42\nv_fmac_f32 v45, v43, v43")
    A("v_add_f32 v44, v44, v45")
    row_red(44); swap_red(44, 45, 16)
    A(f"v_mul_f32 v44, {hex(f2u(1.0/448))}, v44")
    bf16r(40, 40); bf16r(44, 44)
    A(f"v_add_f32 v44, {hex(f2u(1e-5))}, v44"); bf16r(44, 44)
    A("v_sqrt_f32 v44, v44"); bf16r(44, 44)
    A("v_rcp_f32 v44, v44")
    for i in range(7):
        A(f"v_sub_f32 v42, v{24+2*i}, v40\nv_sub_f32 v43, v{25+2*i}, v40\nv_cvt_pk_bf16_f32 v42, v42, v43")
        A(f"v_and_b32 v43, 0xffff0000, v42\nv_lshlrev_b32 v42, 16, v42\nv_mul_f32 v42, v42, v44\nv_mul_f32 v43, v43, v44\nv_cvt_pk_bf16_f32 v{16+i}, v42, v43")
    for i in range(3): A(f"ds_write2_b32 v10, v{16+2*i}, v{17+2*i} offset0:{2*i} offset1:{2*i+1}")
    A("ds_write_b32 v10, v22 offset:24")

if STAMPS: A("s_memrealtime s[98:99]")
A(f"s_cmp_ge_u32 s2, 256\ns_cbranch_scc1 L_end0")
A("s_load_dwordx16 s[4:19], s[0:1], 0\ns_load_dwordx8 s[20:27], s[0:1], 64\ns_load_dwordx2 s[28:29], s[0:1], 96")
A(f"v_lshrrev_b32 v4, 6, v0\nv_and_b32 v0, 63, v0\nv_readfirstlane_b32 s3, v4")
A(f"v_and_b32 {vN}, 15, v0\nv_lshrrev_b32 {vG}, 4, v0\nv_and_b32 v14, 1, v0")
if STAMPS: A(f"v_mov_b32 {vST}, 0")
A("s_and_b32 s31, s2, 127")
A("v_lshrrev_b32 v12, 5, v0\nv_and_b32 v11, 31, v0")
A("s_mov_b32 s34, %d\ns_mov_b32 s35, 0x20000\ns_mov_b32 s43, 0x20000" % WSSZ)
code_prefetch("L_pc")
A("s_cmp_ge_u32 s2, 128\ns_cbranch_scc1 L_A")

A("v_lshrrev_b32 v7, 3, v0\nv_and_b32 v6, 6, v7\nv_and_b32 v8, 7, v0\nv_xor_b32 v6, v6, v8\nv_lshlrev_b32 v6, 4, v6\nv_mul_u32_u24 v10, 28, v0")
A("s_and_b32 s60, s31, 15\ns_lshr_b32 s61, s31, 4")
A(f"s_lshl_b32 s59, s3, 14\ns_add_u32 s59, s59, {BIG}")
A("v_lshl_add_u32 v9, v7, 13, v6")
A("s_and_b32 s53, s2, 1\ns_lshr_b32 s54, s2, 1")
A(f"s_mul_i32 s55, s53, {224*8192}\ns_lshl_b32 s56, s54, 7\ns_add_u32 s55, s55, s56\ns_lshl_b32 s56, s3, 16\ns_add_u32 s55, s55, s56")
A(f"s_lshl_b32 s57, s3, 10\ns_add_u32 s57, s57, {TT}")
A("s_mov_b32 s38, %d\ns_mov_b32 s39, 0x20000" % (448*8192))
A("s_lshl_b32 s58, s61, 7\ns_lshl_b32 s62, s60, 9\ns_lshl_b32 s58, s58, 13\ns_add_u32 s58, s58, s62")
A("s_and_b32 s62, s3, 1\ns_lshl_b32 s62, s62, 16\ns_lshr_b32 s63, s3, 1\ns_lshl_b32 s63, s63, 19\ns_add_u32 s62, s62, s63\ns_add_u32 s56, s58, s62")
A("v_xor_b32 v11, v11, v12\nv_lshlrev_b32 v11, 4, v11\nv_lshl_add_u32 v11, v12, 14, v11")
A("s_mov_b32 s42, %d" % (1024*8192))
A("s_waitcnt lgkmcnt(0)")
A(f"s_cmp_eq_u32 s3, 3\ns_cbranch_scc0 L_nx")
A("global_load_dwordx4 v[16:19], v10, s[4:5]\nglobal_load_dwordx3 v[20:22], v10, s[4:5] offset:16")
A.label("L_nx")
A("s_mov_b32 s36, s8\ns_mov_b32 s37, s9")
for i in range(7): dma("v9", R1, "s55", "s57", i*4096, pre=(f"s_add_u32 s55, s55, {4*65536}" if i else None))
if STAMPS: A(f"v_writelane_b32 {vST}, s98, 0")
A("s_load_dword s30, s[28:29], 0\ns_mov_b32 s32, s28\ns_mov_b32 s33, s29\ns_mov_b32 s40, s10\ns_mov_b32 s41, s11")
consts()
A(f"s_cmp_eq_u32 s3, 3\ns_cbranch_scc0 L_nln")
A(f"s_waitcnt vmcnt(7)")
layernorm()
A.label("L_nln")
WD0 = opt["wd0"]
def wuk_dma(i):
    A(f"v_xor_b32 v13, {2*(i&7)*16}, v11")
    dma("v13", R2, "s62", "s59", i*1024, pre=f"s_add_u32 s62, s56, {(16*((i&7)>>1)+4*(i&1)+(i>>3))*8192}")
for i in range(WD0): wuk_dma(i)
A("s_waitcnt lgkmcnt(0)")
mktag()
tr128_addr(44)
A("v_bfe_u32 v45, v0, 2, 1\nv_and_b32 v46, 3, v0\nv_or_b32 v46, 0x07060500, v46")
A(f"s_mul_i32 s63, s31, {SS}\ns_lshl_b32 s62, s3, 6\ns_add_u32 s63, s63, s62\ns_add_u32 s64, s63, {QA}\ns_add_u32 s63, s63, {QP}")
A(f"v_lshlrev_b32 v58, 8, {vG}\nv_lshl_add_u32 v58, {vN}, 2, v58")
A(f"s_waitcnt vmcnt({WD0})\ns_barrier")
xn_operands(96, 1, 448, 14, "v45")
for s in range(14): A(f"ds_read_b64_tr_b16 {V(64+2*s,2)}, v44 offset:{2048*s}")
for s in range(7):
    A(f"s_waitcnt lgkmcnt({12-2*s})")
    mfma32(128, V(96+4*s), V(64+4*s), s == 0)
A(f"v_perm_b32 v48, v128, {vTAG}, v46")
A("s_mov_b32 exec_hi, 0")
A(f"buffer_store_dword v48, v58, {WS}, s63 offen sc1")
A("s_mov_b64 exec, -1")
stamp(3)
for i in range(WD0, 16): wuk_dma(i)
A(f"v_and_b32 v40, 31, v0\nv_lshlrev_b32 v40, 4, v40\nv_mul_u32_u24 v41, {SS}, v12\nv_add_u32 v40, v40, v41")
A(f"s_lshl_b32 s63, s60, 2\ns_add_u32 s63, s63, s3\ns_mul_i32 s63, s63, {2*SS}\ns_add_u32 s63, s63, {QP}")
A(f"buffer_load_dwordx4 v[44:47], v40, {WS}, s63 offen sc1")
A(f"v_xor_b32 v41, {vG}, {vN}\nv_lshlrev_b32 v41, 4, v41\nv_lshl_add_u32 v41, {vN}, 9, v41\nv_add_u32 v41, s59, v41")
A("v_xor_b32 v42, 64, v41\nv_xor_b32 v43, 128, v41\nv_xor_b32 v52, 192, v41")
adr = [41, 42, 43, 52]
A(f"v_and_b32 v56, 1, {vG}\nv_lshlrev_b32 v56, 9, v56\nv_lshl_add_u32 v56, {vN}, 3, v56\nv_lshl_add_u32 v56, v12, 2, v56")
A(f"s_lshl_b32 s62, s3, 7\ns_add_u32 s62, s62, {EX}\nv_add_u32 v56, s62, v56")
A(f"v_bfe_u32 v57, v0, 2, 1\nv_lshlrev_b32 v57, 9, v57\nv_lshl_add_u32 v57, {vG}, 4, v57")
A(f"v_lshlrev_b32 v59, 1, {vN}\nv_lshrrev_b32 v59, v59, {vTAG}\nv_bfe_u32 v60, v59, 1, 1\nv_and_b32 v59, 1, v59\nv_lshl_or_b32 v59, v60, 16, v59\nv_xor_b32 v60, 0x10001, v59")
A("s_mov_b32 s65, 0xfffefffe\ns_mov_b32 s67, 0x07060302")
for t in range(2):
    A(f"s_waitcnt vmcnt({9-8*t})")
    for s in range(8): A(f"ds_read_b128 {AG(32*t+4*s)}, v{adr[s&3]} offset:{t*8192+(s>>2)*256}")
spin_init()
A.label("L_wq")
A("s_waitcnt vmcnt(0)")
tag_check([44])
A("v_cmp_ne_u32 vcc, 0, v55\ns_cbranch_vccz L_wq_ok")
spin_check()
A(f"buffer_load_dwordx4 v[44:47], v40, {WS}, s63 offen sc1")
A("s_branch L_wq")
A.label("L_wq_ok")
stamp(4)
A("v_permlane32_swap_b32 v44, v46\nv_permlane32_swap_b32 v45, v47\nv_add_f32 v44, v44, v46\nv_add_f32 v45, v45, v47")
A("v_cvt_pk_bf16_f32 v44, v44, v45\nds_write_b32 v56, v44")
A("s_waitcnt lgkmcnt(0)\ns_barrier")
for s in range(8): A(f"ds_read_b128 {V(64+4*s)}, v57 offset:{EX+64*s}")
for s in range(8):
    A(f"s_waitcnt lgkmcnt({7-s})")
    for t in range(2): mfma32(96+4*t, V(64+4*s), AG(32*t+4*s), s == 0)
qs = hex(f2u(LOG2E/16))
A(f"v_mul_f32 v96, {qs}, v96\nv_mul_f32 v100, {qs}, v100\nv_perm_b32 v48, v100, v96, s67\nv_pk_add_u16 v48, v48, v60\nv_and_or_b32 v48, v48, s65, v59")
A("s_mov_b32 exec_hi, 0")
A(f"buffer_store_dword v48, v58, {WS}, s64 offen sc1")
A("s_mov_b64 exec, -1")
stamp(5)
if opt["pfn"]:
    PF = opt["pfn"]
    srd(R2, 6, 2*4096*2048)
    A(f"s_and_b32 s62, s31, 1\ns_lshl_b32 s58, s62, 23\ns_lshr_b32 s62, s31, 1\ns_lshl_b32 s62, s62, 17\ns_add_u32 s58, s58, s62\ns_lshl_b32 s62, s3, 10\ns_add_u32 s58, s58, s62\nv_lshlrev_b32 v40, 4, v0")
    for i in range(PF):
        dma("v40", R2, "s62", "s59", i*1024, pre=f"s_add_u32 s62, s58, {131072-4096*PF+4096*i}", mod=("nt" if opt["pfnt"] else ""))
    A(f"s_waitcnt vmcnt({opt['pfw']})")
srd(R2, 12, 1024*8192)
A("v_and_b32 v8, 7, v0\nv_lshlrev_b32 v8, 4, v8\nv_lshl_add_u32 v11, v7, 13, v8")
A("s_lshl_b32 s58, s61, 20\ns_lshl_b32 s62, s60, 9\ns_add_u32 s58, s58, s62\ns_lshl_b32 s62, s3, 7\ns_add_u32 s58, s58, s62")
A("s_add_u32 s59, s59, 65536")
A(f"v_mul_u32_u24 v39, 448, v14\nv_bfe_u32 v40, v0, 1, 1\nv_lshl_add_u32 v39, v40, 4, v39\nv_bfe_u32 v40, v0, 2, 1\nv_lshl_add_u32 v39, v40, 2, v39\nv_add_u32 v39, v39, {vG}")
A("s_min_u32 s62, s31, 27\ns_lshr_b32 s63, s62, 1\ns_lshl_b32 s63, s63, 5\ns_and_b32 s62, s62, 1\ns_lshl_b32 s62, s62, 3\ns_add_u32 s62, s62, s63\nv_add_u32 v39, s62, v39\nv_lshlrev_b32 v200, 1, v39")
A("global_load_ushort v201, v200, s[4:5]")
A(f"v_lshlrev_b32 v40, 4, v0\ns_mul_i32 s80, s31, {FS}\ns_lshl_b32 s63, s3, 12\ns_add_u32 s80, s80, s63\ns_add_u32 s81, s80, {YP}\ns_add_u32 s80, s80, {OUTP}")
if opt["pretouch"]:
    A("s_cmp_ge_u32 s31, 28\ns_cbranch_scc1 L_pt")
    for i in range(4): A(f"buffer_load_dwordx4 v[250:253], v40, {WS}, s80 offen offset:{1024*i} sc1")
    A.label("L_pt")
def wuv_dma(i):
    A(f"v_xor_b32 v13, {2*((i>>1)&3)*16}, v11")
    dma("v13", R2, "s62", "s59", i*1024, pre=f"s_add_u32 s62, s58, {i*65536}")
W2D = opt["w2d0"]
A("s_cmp_ge_u32 s31, 112\ns_cbranch_scc1 L_wgu")
A("s_cmp_ge_u32 s3, 2\ns_cselect_b32 s36, s20, s18\ns_cselect_b32 s37, s21, s19")
A(f"s_mov_b32 s38, {448*3584}\ns_mov_b32 s39, 0x20000")
A("v_mul_u32_u24 v9, 3584, v7\nv_add_u32 v9, v9, v6")
A(f"s_and_b32 s53, s2, 3\ns_mul_i32 s55, s53, {112*3584}\ns_lshr_b32 s54, s31, 2\ns_lshl_b32 s62, s54, 7\ns_add_u32 s55, s55, s62")
A(f"s_and_b32 s62, s3, 1\ns_mul_i32 s62, s62, {7*8*3584}\ns_add_u32 s55, s55, s62")
A(f"s_mul_i32 s57, s3, 7168\ns_add_u32 s57, s57, {TT}")
for i in range(7):
    if opt["w2dep"] <= i <= opt["w2thr"]: A(f"s_waitcnt vmcnt({opt['w2dep']-1})")
    dma("v9", R1, "s55", "s57", i*1024, pre=(f"s_add_u32 s55, s55, {8*3584}" if i else None))
A.label("L_wgu")
for i in range(W2D):
    if 7 + i <= opt["w2thr"]: A(f"s_waitcnt vmcnt({opt['w2dep']-1})")
    wuv_dma(i)
A("s_cmp_ge_u32 s31, 112\ns_cbranch_scc1 L_wf1")
xn_operands(176, 3, 224, 7)
tr128_addr(38)
A(f"v_lshlrev_b32 v41, 6, {vG}\nv_lshl_add_u32 v41, {vN}, 4, v41")
A(f"s_lshl_b32 s64, s54, 2\ns_add_u32 s64, s64, s3\ns_mul_i32 s64, s64, {SS}\ns_lshl_b32 s63, s53, 8\ns_add_u32 s64, s64, s63\ns_add_u32 s64, s64, {HP}")
A(f"s_waitcnt vmcnt({W2D}) lgkmcnt(0)\ns_barrier")
for mat in range(2):
    for s in range(7): A(f"ds_read_b64_tr_b16 {V(208+14*mat+2*s,2)}, v38 offset:{14336*mat+2048*s}")
for mat in range(2):
    for s in range(7):
        A(f"s_waitcnt lgkmcnt({13-7*mat-s})")
        mfma16(128+4*mat, V(208+14*mat+2*s,2), V(176+2*s,2), s == 0)
tag_insert(48, 128)
setexec16(0xc); tag_insert(48, 132); setexec16(0xf)
A(f"buffer_store_dwordx4 v[48:51], v41, {WS}, s64 offen sc1")
A("s_mov_b64 exec, -1")
stamp(13)
A.flush()
A.label("L_wf1")
for i in range(W2D, 16): wuv_dma(i)
stamp(6)
A(f"v_lshrrev_b32 v39, 2, {vN}\nv_lshl_add_u32 v40, v39, 4, {vG}\nv_lshlrev_b32 v40, 7, v40")
A(f"v_lshlrev_b32 v39, 1, v39\nv_bfe_u32 v41, v0, 1, 1\nv_xor_b32 v39, v39, v41\nv_lshl_add_u32 v40, v39, 4, v40\nv_lshl_add_u32 v40, v14, 3, v40\nv_add_u32 v41, s59, v40")
A("v_xor_b32 v42, 32, v41\nv_xor_b32 v43, 64, v41\nv_xor_b32 v52, 96, v41")
lsb_patterns(24)
A(f"v_lshrrev_b32 v39, 3, {vN}\nv_xor_b32 v39, v39, {vG}\nv_and_b32 v39, 1, v39\nv_lshlrev_b32 v39, 2, v39\nv_bfe_u32 v13, v0, 1, 2\nv_or_b32 v39, v39, v13")
A("v_lshlrev_b32 v13, 4, v14\nv_mov_b32 v38, 0xffff\nv_lshlrev_b32 v38, v13, v38")
for j in range(4): A(f"v_cmp_eq_u32 vcc, {j}, v39\nv_cndmask_b32 v{28+j}, 0, v38, vcc")
A("v_mov_b32 v32, v41\nv_mov_b32 v33, v42\nv_mov_b32 v34, v43\nv_mov_b32 v35, v52")
LATL = BIG; MLB = BIG + 4096; FR = BIG + 8192
A(f"v_lshlrev_b32 v40, 4, v0")
A(f"v_and_b32 v41, 7, v0\nv_lshl_add_u32 v41, v41, 2, {vG}\nv_mul_u32_u24 v41, {SS}, v41")
A(f"s_mul_i32 s97, s3, {32*SS}\ns_lshl_b32 s62, s60, 4\ns_add_u32 s97, s97, s62\ns_add_u32 s97, s97, {STAT}")
A(f"s_mul_i32 s56, s31, {LS}\ns_lshl_b32 s57, s3, 13\ns_add_u32 s56, s56, s57\ns_add_u32 s56, s56, {LAT}\ns_add_u32 s57, s56, 4096")
A(f"v_lshlrev_b32 v62, 7, {vN}\nv_lshl_add_u32 v62, {vG}, 3, v62\ns_lshl_b32 s62, s3, 5\ns_add_u32 s62, s62, {LATL}\nv_add_u32 v62, s62, v62")
A(f"v_and_b32 v61, 7, v0\nv_lshlrev_b32 v61, 4, v61\nv_lshl_add_u32 v61, {vG}, 7, v61")
A(f"v_and_b32 v59, 1, {vG}\nv_lshlrev_b32 v59, 5, v59\ns_lshl_b32 s62, s3, 3\nv_add_u32 v59, s62, v59")
A(f"v_lshlrev_b32 v58, 5, v14\nv_bfe_u32 v57, v0, 1, 2\nv_lshl_add_u32 v57, v57, 3, v58")
A(f"v_bfe_u32 v60, v0, 2, 1\nv_mul_u32_u24 v60, {SS}, v60\nv_lshl_add_u32 v60, {vG}, 6, v60\nv_and_b32 v39, 3, v0\nv_lshl_add_u32 v60, v39, 4, v60")
A(f"s_lshl_b32 s58, s60, 3\ns_lshl_b32 s63, s3, 1\ns_add_u32 s58, s58, s63\ns_mul_i32 s58, s58, {SS}\ns_lshl_b32 s63, s61, 8\ns_add_u32 s58, s58, s63\ns_add_u32 s58, s58, {CTXP}")
A(f"s_and_b32 s66, s31, {opt['gol']-1}\ns_mul_i32 s66, s66, {SS*(128//opt['gol'])}\ns_lshl_b32 s62, s3, 6\ns_add_u32 s66, s66, s62\ns_add_u32 s66, s66, {GO}\ns_add_u32 s70, s28, s66\ns_addc_u32 s71, s29, 0")
A("s_mov_b32 s73, 0x03020302")
stamp(7)
spin_init()
A.label("L_wl")
A("s_load_dword s72, s[70:71], 0 glc")
spin_check()
A("s_waitcnt lgkmcnt(0)\ns_cmp_lg_u32 s72, s30\ns_cbranch_scc1 L_wl")
A.label("L_wlr")
setexec16(0xff)
A(f"buffer_load_dwordx4 v[44:47], v41, {WS}, s97 offen sc1")
A("s_mov_b64 exec, -1")
for i in range(8): A(f"buffer_load_dwordx4 {V(64+4*i)}, v40, {WS}, {'s56' if i<4 else 's57'} offen offset:{(i&3)*1024} sc1")
stamp(8)
A("s_waitcnt vmcnt(9)")
for t in range(4):
    for s in range(4):
        for z in range(2): A(f"ds_read_b64_tr_b16 {AG(64+16*t+4*s+2*z,2)}, v{32+t} offset:{s*512+z*8192}")
A("s_waitcnt vmcnt(8)")
A(f"v_cmp_ne_u32 s[68:69], v46, {vTAG}")
A(f"v_max_f32_dpp v46, v44, v44 quad_perm:[1,0,3,2] {DPPM}")
for m in ("quad_perm:[2,3,0,1]", "row_half_mirror"): A(f"v_max_f32_dpp v46, v46, v46 {m} {DPPM}")
swap_red(46, 55, 32, "v_max_f32")
A("v_sub_f32 v44, v44, v46\nv_exp_f32 v44, v44")
A("s_and_b32 s68, s68, 0x00ff00ff\ns_and_b32 s69, s69, 0x00ff00ff")
A("v_perm_b32 v48, v44, v44, s73\nv_mul_f32 v47, v45, v44")
def aop(i):
    for j in range(4): A(f"v_and_b32_dpp v{128+4*i+j}, v48, v{28+j} row_newbcast:{i} {DPPM}")
aop(0)
for i in range(8):
    if i < 7: aop(i+1)
    A(f"s_waitcnt vmcnt({7-i})")
    mfma32(100, V(128+4*i), V(64+4*i), i == 0)
    for jj in range(4):
        d = 64+4*i+jj
        if i == 0 and jj == 0: A(f"v_xor_b32 v55, v{d}, v24")
        else: A(f"v_bitop3_b32 v55, v{d}, v{24+jj}, v55 bitop3:0xbe")
oct_red(47, "v_add_f32"); swap_red(47, 49, 32)
A("v_and_b32 v55, 0x10001, v55\nv_cmp_ne_u32 vcc, 0, v55\ns_or_b64 vcc, vcc, s[68:69]\ns_cbranch_vccz L_wlk")
spin_check()
note_retry()
A("s_branch L_wlr")
A.label("L_wlk")
A("v_cvt_pk_bf16_f32 v104, v100, v101\nv_cvt_pk_bf16_f32 v105, v102, v103")
setexec16(0x1)
A(f"ds_write_b64 v59, v[46:47] offset:{MLB}")
A("s_mov_b64 exec, -1")
A("ds_write_b64 v62, v[104:105]")
A(f"s_waitcnt lgkmcnt(0)\ns_barrier")
stamp(9)
for s in range(4): A(f"ds_read_b128 {V(80+4*s)}, v61 offset:{LATL+512*s}")
A(f"ds_read_b128 v[44:47], v58 offset:{MLB}\nds_read_b128 v[48:51], v58 offset:{MLB+16}\nds_read_b32 v56, v57 offset:{MLB}")
for s in range(4):
    A(f"s_waitcnt lgkmcnt({6-s})")
    mfma32(100, AG(64+4*s), V(80+4*s), s == 0)
    mfma32(108, AG(64+32+4*s), V(80+4*s), s == 0)
fac = ["s_waitcnt lgkmcnt(0)", "v_max3_f32 v55, v44, v46, v48", "v_max_f32 v55, v55, v50"]
fac += [f"v_sub_f32 v{44+2*v}, v{44+2*v}, v55" for v in range(4)] + ["v_sub_f32 v56, v56, v55"]
fac += [f"v_exp_f32 v{44+2*v}, v{44+2*v}" for v in range(4)] + ["v_exp_f32 v56, v56"]
fac += ["v_mul_f32 v55, v44, v45", "v_fmac_f32 v55, v46, v47", "v_fmac_f32 v55, v48, v49", "v_fmac_f32 v55, v50, v51", "v_rcp_f32 v55, v55", "s_nop 0", "v_mul_f32 v56, v56, v55"]
k = 0
for s in range(4):
    for tb in (104, 112):
        mfma32(tb, AG(64+(16 if tb == 104 else 48)+4*s), V(80+4*s), s == 0)
        for x in fac[k:k+3]: A(x)
        k += 3
for x in fac[k:]: A(x)
def red1(tt):
    for r in range(4): A(f"v_mul_f32 v{100+4*tt+r}, v{100+4*tt+r}, v56\nv_mul_f32 v{108+4*tt+r}, v{108+4*tt+r}, v56")
    for r in range(4):
        A(f"v_add_f32_dpp v{64+4*tt+r}, v{100+4*tt+r}, v{100+4*tt+r} row_ror:4 row_mask:0xf bank_mask:0x5")
        A(f"v_add_f32_dpp v{64+4*tt+r}, v{108+4*tt+r}, v{108+4*tt+r} row_ror:4 row_mask:0xf bank_mask:0xa")
    for r in range(4): A(f"v_add_f32_dpp v{64+4*tt+r}, v{64+4*tt+r}, v{64+4*tt+r} quad_perm:[2,3,0,1] {DPPM}")
red1(0); tag_insert(72, 64); red1(1)
setexec16(0xcc); tag_insert(72, 68); setexec16(0xff)
A(f"buffer_store_dwordx4 v[72:75], v60, {WS}, s58 offen sc1")
A("s_mov_b64 exec, -1")
stamp(10)
A("s_cmp_ge_u32 s31, 28\ns_cbranch_scc1 L_end")
def fin_tail(ldsoff):
    for r in range(4): A(f"v_add_f32 v{64+r}, v{64+r}, v{68+r}")
    for r in range(4): A(f"v_add_f32_dpp v{64+r}, v{64+r}, v{64+r} row_ror:8 {DPPM}")
    A("v_permlane32_swap_b32 v64, v66\nv_permlane32_swap_b32 v65, v67\nv_add_f32 v64, v64, v66\nv_add_f32 v65, v65, v67")
    A("v_permlane16_swap_b32 v64, v65\nv_add_f32 v64, v64, v65")
    A(f"ds_write_b32 v56, v64 offset:{ldsoff}")
def fin_first(b):
    for r in range(4): A(f"v_add_f32 v{64+r}, v{b+r}, v{b+4+r}\nv_add_f32 v{68+r}, v{b+8+r}, v{b+12+r}")
A(f"s_lshl_b32 s62, s3, 2\nv_add_u32 v56, s62, v40")
for r in range(8): A(f"v_mov_b32 v{88+r}, 0")
srd(R1, 24, 896*2)
spin_init()
A.label("L_fy")
for i in range(2): A(f"buffer_load_dwordx4 {V(80+4*i)}, v40, {WS}, s81 offen offset:{1024*i} sc1")
A("v_mov_b32 v55, 0\ns_cmp_eq_u32 s3, 3\ns_cbranch_scc1 L_fy_s")
for i in range(2, 4): A(f"buffer_load_dwordx4 {V(80+4*i)}, v40, {WS}, s81 offen offset:{1024*i} sc1")
A("s_waitcnt vmcnt(0)")
tag_check([88, 92])
A.label("L_fy_s")
A("s_waitcnt vmcnt(0)")
tag_check([80, 84], first=False)
A(f"v_cmp_ne_u32 vcc, 0, v55")
spin_check()
A(f"s_cbranch_vccnz L_fy")
fin_first(80); fin_tail(FR)
A("s_waitcnt lgkmcnt(0)\ns_barrier")
A(f"ds_read_b128 v[76:79], v40 offset:{FR}\ns_waitcnt lgkmcnt(0)")
A("v_add_f32 v76, v76, v77\nv_add_f32 v78, v78, v79\nv_add_f32 v76, v76, v78")
bf16r(76, 76)
A(f"v_mul_f32 v77, {hex(f2u(-LOG2E))}, v76\nv_exp_f32 v77, v77\nv_add_f32 v77, 1.0, v77\nv_rcp_f32 v77, v77\nv_mul_f32 v77, v77, v76")
bf16r(77, 77)
A("v_lshlrev_b32 v201, 16, v201")
stamp(11)
pipe_poll("L_fo", [("v40", "s80", 1024*i) for i in range(4)], [80, 96], fin_first)
fin_tail(FR+1024)
A("s_waitcnt lgkmcnt(0)\ns_barrier")
stamp(12)
A("s_cmp_lg_u32 s3, 0\ns_cbranch_scc1 L_end")
A(f"ds_read_b128 v[64:67], v40 offset:{FR+1024}")
setexec16(0xff)
A("s_waitcnt lgkmcnt(0)")
A("v_add_f32 v64, v64, v65\nv_add_f32 v66, v66, v67\nv_add_f32 v64, v64, v66")
bf16r(64, 64)
A("v_mul_f32 v65, v77, v64")
if opt["eps"]: A(f"v_mul_f32 v65, {hex(f2u(1+opt['eps']/1000))}, v65")
bf16r(65, 65)
A("v_add_f32 v65, v65, v201\nv_cvt_pk_bf16_f32 v65, v65, v65")
A(f"buffer_store_short v65, v200, {R1}, 0 offen")
A("s_cmp_lg_u32 s31, 0\ns_cbranch_scc1 L_end")
A(f"s_mov_b64 exec, 1\nv_mov_b32 v64, 0\nbuffer_store_dword {vTAG}, v64, {WS}, 0 offen")
A("s_branch L_end")

A.label("L_A")
A.hist = []
A("s_and_b32 s60, s31, 1\ns_lshr_b32 s61, s31, 1")
A("s_lshl_b32 s58, s60, 23\ns_lshl_b32 s62, s61, 17\ns_add_u32 s58, s58, s62\ns_lshl_b32 s62, s3, 9\ns_add_u32 s58, s58, s62")
A(f"s_lshl_b32 s59, s3, 15\ns_add_u32 s59, s59, {BIG}")
A("v_lshlrev_b32 v13, 1, v12\nv_xor_b32 v11, v11, v13\nv_lshlrev_b32 v11, 4, v11\nv_lshl_add_u32 v11, v12, 11, v11")
A("s_mov_b32 s42, %d" % (2*4096*2048))
A("s_waitcnt lgkmcnt(0)")
if STAMPS: A(f"v_writelane_b32 {vST}, s98, 0")
A("s_mov_b32 s40, s6\ns_mov_b32 s41, s7")
def ckv_dma(i):
    ii = i & 7; cst = 4*(ii&3) + (ii>>2)
    if opt["adepth"] and opt["adepth"] <= i < opt["athr"]: A(f"s_waitcnt vmcnt({opt['adepth']-1})")
    A(f"v_xor_b32 v13, {cst*16}, v11")
    dma("v13", R2, "s62", "s59", i*1024, pre=f"s_add_u32 s62, s58, {i*4096}")
WD = BIG + 16384 if opt['early_wo'] else 0
WO = 0 if opt['early_wo'] else BIG + 69632
def wo_dmas():
    srd(R1, 14, 16*256*896)
    A(f"s_mul_i32 s56, s31, 28672\ns_mul_i32 s57, s3, 7168\ns_add_u32 s56, s56, s57\ns_add_u32 s57, s57, {WO}")
    for i in range(7): dma("v40", R1, "s56", "s57", 1024*i, pre=("s_add_u32 s56, s56, 1024" if i else None))
def wo_stage():
    for t in range(8):
        for z in range(2): A(f"ds_read_b64_tr_b16 {V(WOR+4*t+2*z,2)}, v5 offset:{32*t+16*896*z}")
WOR = 208
def merged_publish(dbase, soff):
    for t in range(8):
        setexec16(3 << (2*t)); tag_insert(64, dbase+4*t)
    A(f"s_mov_b32 exec_lo, s79\ns_mov_b32 exec_hi, s79")
    A(f"buffer_store_dwordx4 v[64:67], v6, {WS}, {soff} offen sc1")
    A("s_mov_b64 exec, -1")
def ffn2_try(notready, wait=None):
    if wait is None:
        A(f"buffer_load_dwordx4 v[68:71], v7, {WS}, s77 offen sc1\ns_waitcnt vmcnt(0)")
    else: A(f"s_waitcnt vmcnt({wait})")
    tag_check([68])
    A(f"v_cmp_ne_u32 vcc, 0, v55\ns_cbranch_vccnz {notready}")
    for k in (4, 8):
        for r in range(4): A(f"v_add_f32_dpp v{68+r}, v{68+r}, v{68+r} row_ror:{k} {DPPM}")
    for r in range(4): bf16r(68+r, 68+r)
    for r in range(4):
        A(f"v_mov_b32_dpp v{72+r}, v{68+r} quad_perm:[0,1,0,1] {DPPM}\nv_mov_b32_dpp v{76+r}, v{68+r} quad_perm:[2,3,2,3] {DPPM}")
    c1 = -2.0*0.7978845608028654*LOG2E; c2 = c1*0.044715
    A(f"s_mov_b32 s62, {hex(f2u(c2))}\nv_mov_b32 v84, {hex(f2u(c1))}")
    for r in range(4):
        A(f"v_mul_f32 v{80+r}, v{72+r}, v{72+r}\nv_fma_f32 v{80+r}, v{80+r}, s62, v84\nv_mul_f32 v{80+r}, v{80+r}, v{72+r}")
    for r in range(4): A(f"v_exp_f32 v{80+r}, v{80+r}")
    for r in range(4): A(f"v_add_f32 v{80+r}, 1.0, v{80+r}")
    for r in range(4): A(f"v_rcp_f32 v{80+r}, v{80+r}")
    for r in range(4): A(f"v_mul_f32 v{80+r}, v{80+r}, v{72+r}")
    for r in range(4): bf16r(80+r, 80+r)
    for r in range(4): A(f"v_mul_f32 v{80+r}, v{80+r}, v{76+r}")
    A("v_cvt_pk_bf16_f32 v80, v80, v81\nv_cvt_pk_bf16_f32 v81, v82, v83")
    A("s_waitcnt lgkmcnt(0)")
    for t in range(8): mfma16(128+4*t, V(WDR+2*t,2), "v[80:81]", True)
    merged_publish(128, "s78")
    A("s_mov_b32 s76, 0\ns_nop 1")
WDR = 192
AP = opt["apre"]
A("v_lshlrev_b32 v40, 4, v0\ns_mov_b32 s76, 0\ns_cmp_ge_u32 s31, 112\ns_cbranch_scc1 L_af1")
srd(R1, 22, 1792*896)
A(f"s_mul_i32 s55, s31, 14336\ns_lshr_b32 s62, s3, 1\ns_mul_i32 s63, s62, 7168\ns_and_b32 s62, s3, 1\ns_mul_i32 s62, s62, 3072\ns_add_u32 s62, s62, s63\ns_add_u32 s55, s55, s62\ns_add_u32 s69, s62, {WD}")
for i in range(4): dma("v40", R1, "s55", "s69", 1024*i, pre=("s_add_u32 s55, s55, 1024" if i else None))
A("s_mov_b32 s76, 1")
A.label("L_af1")
if opt["early_wo"]: wo_dmas()
for i in range(AP): ckv_dma(i)
A("s_load_dword s30, s[28:29], 0\ns_mov_b32 s32, s28\ns_mov_b32 s33, s29")
consts()
A(f"v_lshrrev_b32 v43, 2, {vN}\nv_lshlrev_b32 v6, 1, v43\nv_add_u32 v6, v6, v12\nv_mul_u32_u24 v6, {FS}, v6\nv_and_b32 v44, 1, {vG}\nv_lshl_add_u32 v6, v44, 6, v6\nv_and_b32 v44, 3, v0\nv_lshl_add_u32 v6, v44, 4, v6")
A("s_lshl_b32 s66, s3, 2\ns_cmp_eq_u32 s3, 3\ns_cselect_b32 s66, 11, s66")
A(f"s_mul_i32 s75, s66, {2*FS}\ns_lshl_b32 s62, s31, 7\ns_add_u32 s75, s75, s62\ns_add_u32 s78, s75, {YP}\ns_add_u32 s75, s75, {OUTP}")
A("s_cmp_ge_u32 s3, 2\ns_cselect_b32 s79, 0x0fff0fff, -1")
A(f"v_lshl_add_u32 v5, {vG}, 2, v43\nv_mul_u32_u24 v5, 896, v5\nv_lshl_add_u32 v5, v44, 3, v5\ns_lshl_b32 s62, s66, 6\nv_add_u32 v5, s62, v5\nv_add_u32 v4, {WD}, v5\nv_add_u32 v5, {WO}, v5")
A(f"v_lshlrev_b32 v7, 8, v43\nv_lshl_add_u32 v7, {vG}, 6, v7\nv_lshl_add_u32 v7, v44, 4, v7\ns_mul_i32 s77, s31, {SS}\ns_add_u32 s77, s77, {HP}")
A(f"v_and_b32 v40, 7, v0\nv_lshlrev_b32 v40, 1, v40\nv_bfe_u32 v41, v0, 3, 1\nv_or_b32 v40, v40, v41")
A(f"v_lshlrev_b32 v41, 1, {vG}\nv_xor_b32 v40, v40, v41\nv_lshlrev_b32 v40, 4, v40\nv_lshl_add_u32 v40, {vN}, 9, v40\nv_add_u32 v44, s59, v40")
A("v_xor_b32 v45, 16, v44\nv_xor_b32 v46, 128, v44\nv_xor_b32 v47, 144, v44")
A(f"v_lshrrev_b32 v40, 2, {vN}\nv_lshl_add_u32 v40, {vG}, 2, v40")
A("v_and_b32 v41, 7, v40\nv_lshlrev_b32 v41, 1, v41\nv_lshrrev_b32 v42, 3, v40\nv_or_b32 v41, v41, v42\nv_bfe_u32 v42, v0, 1, 1\nv_xor_b32 v41, v41, v42")
A("v_lshlrev_b32 v40, 9, v40\nv_lshl_add_u32 v40, v41, 4, v40\nv_lshl_add_u32 v40, v14, 3, v40\nv_add_u32 v16, s59, v40")
for t in range(1, 8): A(f"v_xor_b32 v{16+t}, {32*t}, v16")
A(f"s_lshl_b32 s71, s3, 13")
A(f"v_xor_b32 v37, {vG}, {vN}\nv_lshlrev_b32 v37, 4, v37\nv_mul_u32_u24 v38, {SS}, {vG}\nv_add_u32 v38, v38, v37")
A(f"v_lshl_add_u32 v48, {vN}, 8, v37\nv_add_u32 v48, s71, v48\nv_xor_b32 v49, 64, v48\nv_xor_b32 v50, 128, v48\nv_xor_b32 v51, 192, v48")
A(f"s_lshl_b32 s70, s60, 8\ns_mul_i32 s63, s3, {32*SS}\ns_add_u32 s70, s70, s63\ns_add_u32 s70, s70, {QA}")
PX = BIG + 4096; MX = BIG + 6144
A(f"v_lshlrev_b32 v40, 4, v0\nv_add_u32 v41, s59, v40")
A(f"s_lshl_b32 s64, s3, 10\ns_add_u32 s64, s64, {BIG}\nv_add_u32 v42, s64, v40\nv_add_u32 v43, 0x10000, v42")
A(f"v_add_u32 v8, {BIG+3072}, v40\nv_add_u32 v9, 0x10000, v8")
A(f"v_lshlrev_b32 v56, 5, v0\ns_lshl_b32 s64, s3, 3\nv_add_u32 v57, s64, v56")
A(f"v_lshlrev_b32 v58, 4, {vN}\ns_lshl_b32 s64, s3, 2\nv_add_u32 v59, s64, v58")
A("v_mov_b32 v60, 0x3f803f80\nv_mov_b32 v61, v60\nv_mov_b32 v62, v60\nv_mov_b32 v63, v60")
A(f"v_mul_u32_u24 v36, {4*LS}, {vG}\nv_lshl_add_u32 v36, {vN}, 4, v36")
A(f"s_mul_i32 s64, s3, {32*LS}\ns_lshl_b32 s63, s31, 8\ns_add_u32 s64, s64, s63\ns_add_u32 s64, s64, {LAT}\ns_mul_i32 s66, s31, {SS}\ns_add_u32 s66, s66, {STAT}")
A("s_mov_b32 s65, 0xfffefffe\ns_mov_b32 s67, 0x07060302")
GW = 2
A(f"s_lshr_b32 s62, s31, 5\ns_lshl_b32 s63, s62, 6\nv_mov_b32 v52, s63\nv_mov_b32 v10, 1\ns_add_u32 s73, s63, {GO}\nv_mul_u32_u24 v15, {2*SS}, v0")
A("s_waitcnt lgkmcnt(0)")
mktag()
lsb_patterns(24, 28)
lsb_patterns(32, None, True)
A(f"v_mov_b32 v118, {vTAG}\nv_mov_b32 v119, {vTAG}")
def stage_qk(T):
    for s in range(8): A(f"ds_read_b128 {AG(32*T+4*s)}, v{44+(s&3)} offset:{T*8192+(s>>2)*256}")
def stage_pv(T):
    u, z = T >> 1, T & 1
    for t in range(16): A(f"ds_read_b64_tr_b16 {AG(128+8*t+4*u+2*z,2)}, v{16+(t&7)} offset:{T*8192+(t>>3)*256}")
def qa_loads():
    for k in range(8):
        A(f"v_xor_b32 v13, {64*(k&3)}, v38")
        dma("v13", WS, "s62", "s71", 1024*k, pre=f"s_add_u32 s62, s70, {4*k*SS}", mod="sc1")
def arrive():
    A(f"s_cmp_lg_u32 s3, {GW}\ns_cbranch_scc1 L_arr\ns_mov_b64 exec, 1")
    A.raw("  global_atomic_add v10, v52, v10, s[26:27] sc0 sc1")
    A("s_mov_b64 exec, -1")
    A.label("L_arr")
def go(younger):
    A(f"s_cmp_lg_u32 s3, {GW}\ns_cbranch_scc1 L_go\ns_waitcnt vmcnt({younger})\nv_readfirstlane_b32 s74, v10\ns_and_b32 s74, s74, 31\ns_cmp_lg_u32 s74, 31\ns_cbranch_scc1 L_go")
    if opt["gol"] == 128: A(f"buffer_store_dword {vTAG}, v15, {WS}, s73 offen sc1\ns_add_u32 s73, s73, {64*SS}\nbuffer_store_dword {vTAG}, v15, {WS}, s73 offen sc1")
    else:
        m = (1 << 64) - 1
        A(f"s_mov_b32 exec_lo, {hex(m & 0xffffffff)}\ns_mov_b32 exec_hi, {hex(m >> 32)}\nbuffer_store_dword {vTAG}, v15, {WS}, s73 offen sc1\ns_mov_b64 exec, -1")
    A.label("L_go")
QPOS = opt["qpos"]
A(f"s_waitcnt vmcnt({AP})\ns_barrier")
for t in range(8): A(f"ds_read_b64_tr_b16 {V(WDR+2*t,2)}, v4 offset:{32*t}")
if opt["early_wo"]: wo_stage()
A("s_waitcnt lgkmcnt(0)")
if opt["early_wo"]: A("s_barrier")
for i in range(AP, 24): ckv_dma(i)
A("s_waitcnt vmcnt(16)"); stage_qk(0); stage_pv(0)
for i in range(24, QPOS): ckv_dma(i)
A(f"s_waitcnt vmcnt({QPOS-16})"); stage_qk(1); stage_pv(1)
A("s_barrier")
qa_loads()
for i in range(QPOS, 32): ckv_dma(i)
if not opt["pvst"]: stamp(4)
A("s_waitcnt vmcnt(16)"); stage_qk(2)
spin_init()
A(f"s_waitcnt vmcnt({32-QPOS})")
A.label("L_qk")
for s in range(8): A(f"ds_read_b128 {V(64+4*s)}, v{48+(s&3)} offset:{4096*(s>>2)}")
for s in range(8):
    A(f"s_waitcnt lgkmcnt({7+s})")
    for t in (2*s, 2*s+1): A(f"ds_read_b64_tr_b16 {AG(128+8*t+4,2)}, v{16+(t&7)} offset:{2*8192+(t>>3)*256}")
    for T in range(3):
        mfma32(96+4*T, AG(32*T+4*s), V(64+4*s), s == 0)
        if s == 0 and T == 0: A("v_xor_b32 v55, v64, v32")
        else: A(f"v_bitop3_b32 v55, v{64+4*s+T}, v{32+T}, v55 bitop3:0xbe")
    A(f"v_bitop3_b32 v55, v{64+4*s+3}, v35, v55 bitop3:0xbe")
A("v_and_b32 v55, 0x10001, v55\nv_cmp_ne_u32 vcc, 0, v55\ns_cbranch_vccz L_qk2")
qa_loads()
spin_check()
note_retry()
A("s_waitcnt vmcnt(0)\ns_branch L_qk")
A.label("L_qk2")
A("s_nop 4")
for T in range(3): A(f"ds_write_b128 v41, {V(96+4*T)} offset:{1024*T}")
A("s_waitcnt lgkmcnt(0)\ns_barrier")
stamp(5)
if opt["arrpos"] == 0: arrive()
def sum4(a0, a1, d):
    A(f"ds_read_b128 {V(d)}, {a0}\nds_read_b128 {V(d+4)}, {a0} offset:32768\nds_read_b128 {V(d+8)}, {a1}\nds_read_b128 {V(d+12)}, {a1} offset:32768")
def sum4b(d, extra):
    A(f"s_waitcnt lgkmcnt({2+extra})")
    for r in range(4): A(f"v_add_f32 v{d+r}, v{d+r}, v{d+4+r}")
    A(f"s_waitcnt lgkmcnt({extra})")
    for r in range(4): A(f"v_add_f32 v{d+8+r}, v{d+8+r}, v{d+12+r}")
    for r in range(4): A(f"v_add_f32 v{d+r}, v{d+r}, v{d+8+r}")
    A(f"v_max3_f32 v{d+4}, v{d}, v{d+1}, v{d+2}\nv_max_f32 v{d+4}, v{d+4}, v{d+3}")
    swap_red(d+4, d+5, 16, "v_max_f32"); swap_red(d+4, d+5, 32, "v_max_f32")
    A(f"v_ceil_f32 v{d+4}, v{d+4}")
A("s_cmp_eq_u32 s3, 3\ns_cbranch_scc1 L_t3")
sum4("v42", "v43", 96); sum4b(96, 0)
for r in range(4): A(f"v_sub_f32 v{96+r}, v{96+r}, v100")
for r in range(4): A(f"v_exp_f32 v{96+r}, v{96+r}")
A(f"ds_write_b32 v59, v100 offset:{MX}")
A("v_cvt_pk_bf16_f32 v96, v96, v97\nv_cvt_pk_bf16_f32 v97, v98, v99")
A(f"ds_write_b64 v57, v[96:97] offset:{PX}")
A.label("L_t3")
A(f"s_waitcnt vmcnt({1 if opt['arrpos']==0 else 0})") if opt["arrpos"] else A(f"s_cmp_eq_u32 s3, {GW}\ns_cbranch_scc1 L_t3a\ns_waitcnt vmcnt(0)")
if opt["arrpos"] == 0:
    A.label("L_t3a"); A("s_waitcnt vmcnt(1)")
stage_qk(3)
if opt["arrpos"] == 1: arrive()
stamp(6)
for s in range(8):
    A(f"s_waitcnt lgkmcnt({7+s})")
    mfma32(108, AG(96+4*s), V(64+4*s), s == 0)
    for t in (2*s, 2*s+1): A(f"ds_read_b64_tr_b16 {AG(128+8*t+6,2)}, v{16+(t&7)} offset:{3*8192+(t>>3)*256}")
A(f"ds_write_b128 v41, v[108:111] offset:3072")
A("s_waitcnt lgkmcnt(0)\ns_barrier")
stamp(7)
sum4("v8", "v9", 96)
A(f"ds_read_b128 v[112:115], v58 offset:{MX}\nds_read_b128 v[64:67], v56 offset:{PX}\nds_read_b64 v[68:69], v56 offset:{PX+16}")
sum4b(96, 3)
A("s_waitcnt lgkmcnt(2)")
A("v_max3_f32 v116, v112, v113, v114\nv_max_f32 v116, v116, v100")
for T in range(3): A(f"v_sub_f32 v{112+T}, v116, v{112+T}")
for T in range(3): A(f"v_min_f32 v{112+T}, 0x437f0000, v{112+T}")
for T in range(3): A(f"v_cvt_u32_f32 v{112+T}, v{112+T}")
for T in range(3): A(f"v_mul_u32_u24 v{112+T}, 0x800080, v{112+T}")
A("s_waitcnt lgkmcnt(0)")
for T in range(2):
    for k in range(2): A(f"v_pk_sub_u16 v{64+2*T+k}, v{64+2*T+k}, v{112+T} clamp")
stamp(8)
ACC = 128
PK = 72
def pkreg(half, r, jj): return (72 if half == 0 else 88) + 4*r + jj
def latpack(half, jj):
    t0 = 8*half + 2*jj; out = []
    for r in range(4): out.append(f"v_perm_b32 v{pkreg(half,r,jj)}, v{ACC+4*(t0+1)+r}, v{ACC+4*t0+r}, s67")
    for r in range(4): out.append(f"v_pk_add_u16 v{pkreg(half,r,jj)}, v{pkreg(half,r,jj)}, v{28+jj}")
    for r in range(4): out.append(f"v_and_or_b32 v{pkreg(half,r,jj)}, v{pkreg(half,r,jj)}, s65, v{24+jj}")
    return out
def latstores(half):
    out = []
    for r in range(4): out += [f"s_add_u32 s63, s64, {(half*16+r)*LS}", f"buffer_store_dwordx4 {V(pkreg(half,r,0))}, v36, {WS}, s63 offen sc1"]
    return out
p3 = [f"v_sub_f32 v{96+r}, v{96+r}, v116" for r in range(4)] + [f"v_exp_f32 v{96+r}, v{96+r}" for r in range(4)]
p3 += [f"v_pk_sub_u16 v{68+k}, v{68+k}, v114 clamp" for k in range(2)] + ["v_cvt_pk_bf16_f32 v70, v96, v97", "v_cvt_pk_bf16_f32 v71, v98, v99"]
mf = [("l",0)] + [(t,0) for t in range(4)] + [("l",1)] + [(t,1) for t in range(4)] + [(t,u) for t in range(4,16) for u in range(2)]
queue = [(0, x) for x in p3]
LAG = 3
nst = 0
for k, (t, u) in enumerate(mf):
    if (t, u) == ("l", 1):
        while queue and queue[0][1] in p3: A(queue.pop(0)[1])
    if t == "l": mfma32(120, V(60), V(64+4*u), u == 0)
    else: mfma32(ACC+4*t, V(64+4*u), AG(128+8*t+4*u), u == 0)
    if t == "l" and u == 1: queue.append((k+LAG, "STAT"))
    if t != "l" and u == 1 and (t & 1):
        queue += [(k+LAG, x) for x in latpack(t >> 3, (t & 7) >> 1)]
        if (t & 7) == 7:
            queue += [(k+LAG, x) for x in latstores(t >> 3)]
    if opt["pvst"] and k == 9: stamp(2)
    if opt["pvst"] and k == 25: stamp(3)
    if opt["pvst"] and k == len(mf)-1: stamp(4)
    if k == opt["gopos"]: go(nst)
    n = 0
    last = (k == len(mf)-1)
    while queue and (last or (queue[0][0] <= k and n < opt["fill"])):
        x = queue.pop(0)[1]
        if x == "STAT":
            A("v_mov_b32 v117, v120\ns_cmp_lg_u32 s3, 3\ns_cbranch_scc1 L_st\ns_mov_b64 exec, 0xffff")
            A(f"buffer_store_dwordx4 v[116:119], v40, {WS}, s66 offen sc1\ns_mov_b64 exec, -1")
            A.label("L_st")
        else:
            A(x)
            if x.startswith("buffer_store"):
                nst += 1
                if opt["gopos"] == 100 + nst: go(nst)
        if not x.startswith("s_"): n += 1
stamp(9)
A(f"s_and_b32 s66, s31, 31\ns_mul_i32 s66, s66, {4*SS}\ns_lshl_b32 s62, s3, 6\ns_add_u32 s66, s66, s62\ns_add_u32 s66, s66, {GO+2*SS}\ns_add_u32 s70, s28, s66\ns_addc_u32 s71, s29, 0")
srd(R1, 14, 16*256*896)
A(f"s_mul_i32 s56, s31, 28672\ns_mul_i32 s57, s3, 7168\ns_add_u32 s56, s56, s57\ns_add_u32 s57, s57, {WO}")
spin_init()
A.label("L_ag")
A("s_load_dword s72, s[70:71], 0 glc")
A("s_cmp_eq_u32 s76, 0\ns_cbranch_scc1 L_ag1")
A(f"buffer_load_dwordx4 v[68:71], v7, {WS}, s77 offen sc1")
A.label("L_ag1")
spin_check()
A("s_waitcnt lgkmcnt(0)\ns_cmp_eq_u32 s72, s30\ns_cbranch_scc1 L_ag2")
A("s_cmp_eq_u32 s76, 0\ns_cbranch_scc1 L_ag")
ffn2_try("L_ag", 0)
stamp(10)
A("s_branch L_ag")
A.label("L_ag2")
for _ in range(opt["wodelay"]): A("s_load_dword s72, s[70:71], 0 glc\ns_waitcnt lgkmcnt(0)")
for i in range(7): dma("v40", R1, "s56", "s57", 1024*i, pre=("s_add_u32 s56, s56, 1024" if i else None))
A("s_cmp_eq_u32 s76, 0\ns_cbranch_scc1 L_af2")
ffn2_try("L_af2", 7)
stamp(1)
A("s_waitcnt vmcnt(1)\ns_branch L_af3")
A.label("L_af2")
A("s_waitcnt vmcnt(0)")
A.label("L_af3")
A("s_barrier")
wo_stage()
A(f"s_sub_u32 s63, s77, {HP-CTXP}")
stamp(11)
def ctx_first(b):
    for r in range(4): A(f"v_add_f32 v{68+r}, v{b+r}, v{b+4+r}")
pipe_poll("L_ac", [("v7", "s63", 0), ("v7", "s63", 1024)], [164, 172], ctx_first, pre=opt["prepoll"])
stamp(12)
for k in (4, 8):
    for r in range(4): A(f"v_add_f32_dpp v{68+r}, v{68+r}, v{68+r} row_ror:{k} {DPPM}")
A("v_cvt_pk_bf16_f32 v72, v68, v69\nv_cvt_pk_bf16_f32 v73, v70, v71")
A(f"v_mov_b32_dpp v80, v72 quad_perm:[0,1,0,1] {DPPM}\nv_mov_b32_dpp v81, v73 quad_perm:[0,1,0,1] {DPPM}")
A(f"v_mov_b32_dpp v82, v72 quad_perm:[2,3,2,3] {DPPM}\nv_mov_b32_dpp v83, v73 quad_perm:[2,3,2,3] {DPPM}")
A("s_waitcnt lgkmcnt(0)")
for t in range(8): mfma32(128+4*t, V(WOR+4*t), "v[80:83]", True)
merged_publish(128, "s75")
stamp(13)
A("s_cmp_eq_u32 s76, 0\ns_cbranch_scc1 L_end")
spin_init()
A.label("L_f2c")
spin_check()
ffn2_try("L_f2c")
A.label("L_end")
if STAMPS:
    A("s_mov_b64 exec, -1")
    A("s_memrealtime s[98:99]\ns_waitcnt lgkmcnt(0)")
    A(f"v_writelane_b32 {vST}, s98, 15")
    A(f"s_lshl_b32 s62, s2, 2\ns_add_u32 s62, s62, s3\ns_lshl_b32 s62, s62, 8\ns_add_u32 s62, s62, {STAMP}\nv_lshlrev_b32 v4, 2, v0")
    A(f"buffer_store_dword {vST}, v4, {WS}, s62 offen")
A.label("L_end0")
A("s_endpgm")
A.raw(f".fill ({opt['codekb']}*1024 - (. - {NAME}))/4, 4, 0xbf800000")
A.raw('.section .rodata,"a"\n.p2align 6')
A.raw(f""".amdhsa_kernel {NAME}
  .amdhsa_next_free_vgpr 512
  .amdhsa_next_free_sgpr 102
  .amdhsa_accum_offset 256
  .amdhsa_group_segment_fixed_size 0
  .amdhsa_kernarg_size 104
  .amdhsa_user_sgpr_count 2
  .amdhsa_user_sgpr_kernarg_segment_ptr 1
  .amdhsa_system_sgpr_workgroup_id_x 1
.end_amdhsa_kernel""")
sys.stdout.write(A.text())
```

```python
import sys, struct
from asmdsl import Asm
NAME = "recurrent_scan__compressed_kv_cla__geglu_ffn__decode_kernel"
opt = dict(stamps=0, round_s=0, nt="nt", npre=0, codekb=22, qbar=27, thr_g=7, thr_uv=0, adepth=1, athr=4, statpos=0, psleep=1, early_wo=0, tokpos=-1, wdepth=0, w2depth=0, adepth2=0, wd0=8, tok1pos=-1, apre=1, ackwait=0, tlb=0, eps=0, hold=0, holdwg=-1, qbarr=1, gupos=2, hpw=3, w2thr=2, prepoll=1, ppsleep=2, kmode=0, qaplain=1, stat3=0, ls=33024, stat4=0, hpos=0, hsleep=1, gopos=1, wopos=1, nox=0)
for a in sys.argv[1:]:
    k, v = a.split("="); opt[k] = v if k == "nt" else int(v)
NT = opt["nt"] if opt["nt"] != "none" else ""
STAMPS = opt["stamps"]; NPRE = opt["npre"]
def f2u(x): return struct.unpack("<I", struct.pack("<f", x))[0]
SS = 16640
MB = 0x200000
CTXP, HP, QP, QA, STAT, QAF, TOK = MB, MB+2048, MB+3072, MB+3584, MB+4096, MB+4352, MB+4480
FS = 73984
OUTP = 0x500000; YP = OUTP + 16384
LAT, STAMP = 0x800000, 0xE00000
ST3 = 0xC80000
LS = opt['ls']
WSSZ = 0x1000000
XN, EX, TT, BIG = 0, 1792, 4096, 32768
LDSSZ = 163840
DPPM = "row_mask:0xf bank_mask:0xf"
QW = 3
A = Asm()
hdr = open("recurrent_scan__compressed_kv_cla__geglu_ffn__decode.s.ref").read().split("; Override launch")[0]
A.raw(hdr.rstrip())
A.raw(f"; @launch grid=(256,1,1) block=(256,1,1) lds={LDSSZ}")
A.raw('.amdgcn_target "amdgcn-amd-amdhsa--gfx950"\n.text')
A.raw(f".globl {NAME}\n.p2align 8\n.type {NAME},@function\n{NAME}:")
WS = "s[32:35]"; R1 = "s[36:39]"; R2 = "s[40:43]"
vN, vG, vTAG = "v1", "v2", "v3"
vST = "v255"
def stamp(k):
    if not STAMPS: return
    A(f"s_memrealtime s[98:99]\ns_waitcnt lgkmcnt(0)\nv_writelane_b32 {vST}, s98, {k}")
def srd(r, lo, size):
    b = int(r[2:4])
    A(f"s_mov_b32 s{b}, s{lo}\ns_mov_b32 s{b+1}, s{lo+1}\ns_mov_b32 s{b+2}, {size}\ns_mov_b32 s{b+3}, 0x20000")
def setexec16(m):
    m |= m << 16
    A(f"s_mov_b32 exec_lo, {hex(m)}\ns_mov_b32 exec_hi, {hex(m)}")
def tag_insert(dst, src):
    for r in range(4): A(f"v_perm_b32 v{dst+r}, v{src+r}, {vTAG}, s{44+r}")
def tag_check_acc(base, t0, t1, first, acc):
    A(f"v_perm_b32 v{t0}, v{base+1}, v{base}, s48\nv_perm_b32 v{t1}, v{base+3}, v{base+2}, s49")
    if first: A(f"v_or_b32 v{t0}, v{t0}, v{t1}\nv_xor_b32 v{acc}, v{t0}, {vTAG}")
    else: A(f"v_or_b32 v{t0}, v{t0}, v{t1}\nv_xor_b32 v{t0}, v{t0}, {vTAG}\nv_or_b32 v{acc}, v{acc}, v{t0}")
def spin_init(): A("s_mov_b32 s96, 400000")
def spin_check(): A("s_sub_u32 s96, s96, 1\ns_cbranch_scc1 L_end")
def bf16r(dst, src):
    A(f"v_cvt_pk_bf16_f32 v{dst}, v{src}, v{src}\nv_and_b32 v{dst}, 0xffff0000, v{dst}")
def row_red(x, op="v_add_f32", steps=(8,4,2,1)):
    for k in steps: A(f"{op}_dpp v{x}, v{x}, v{x} row_ror:{k} {DPPM}")
def swap_red(x, t, which, op="v_add_f32"):
    A(f"v_mov_b32 v{t}, v{x}\nv_permlane{which}_swap_b32 v{t}, v{x}\n{op} v{x}, v{x}, v{t}")
def dma(voff, rsrc, soff, ldsaddr_s, ldsadd):
    if opt["nox"] and dma.skip:
        A(f"buffer_load_dword v254, v0, {rsrc}, 0 offen"); return
    A(f"s_add_u32 m0, {ldsaddr_s}, {ldsadd}")
    A(f"buffer_load_dwordx4 {voff}, {rsrc}, {soff} offen {NT} lds")
def pipe_poll(lab, loads, sets, first_step, word2=False, pre=False):
    n = len(loads)
    def issue(base):
        for i, (vo, so, off) in enumerate(loads):
            A(f"buffer_load_dwordx4 v[{base+4*i}:{base+4*i+3}], {vo}, {WS}, {so} offen offset:{off} sc1")
    def check(base):
        if word2: A(f"v_cmp_ne_u32 vcc, v{base+2}, {vTAG}"); return
        for i in range(n): tag_check_acc(base+4*i, 53, 54, i == 0, 55)
        A("v_cmp_ne_u32 vcc, 0, v55")
    spin_init()
    if pre and opt["prepoll"]:
        vo, so, off = loads[0]
        A("s_mov_b64 exec, 1")
        A.label(lab+"_p")
        A(f"buffer_load_dwordx4 v[{sets[0]}:{sets[0]+3}], {vo}, {WS}, {so} offen offset:{off} sc1")
        if opt["ppsleep"]: A(f"s_sleep {opt['ppsleep']}")
        spin_check()
        A("s_waitcnt vmcnt(0)")
        if word2: A(f"v_cmp_ne_u32 vcc, v{sets[0]+2}, {vTAG}")
        else:
            tag_check_acc(sets[0], 53, 54, True, 55); A("v_cmp_ne_u32 vcc, 0, v55")
        A(f"s_cbranch_vccnz {lab}_p\ns_mov_b64 exec, -1")
    issue(sets[0])
    if opt["psleep"]: A(f"s_sleep {opt['psleep']}")
    A.label(lab)
    issue(sets[1])
    A(f"s_waitcnt vmcnt({n})")
    check(sets[0])
    A(f"s_cbranch_vccz {lab}_x")
    issue(sets[0])
    spin_check()
    A(f"s_waitcnt vmcnt({n})")
    check(sets[1])
    A(f"s_cbranch_vccnz {lab}")
    first_step(sets[1])
    A(f"s_branch {lab}_j")
    A.label(lab+"_x")
    first_step(sets[0])
    A.label(lab+"_j")
def xn_operands(dst, mask, mul, n, bsel="v14"):
    A(f"v_mul_u32_u24 v15, 896, {bsel}\nv_lshl_add_u32 v15, {vG}, 3, v15\ns_and_b32 s62, s2, {mask}\ns_mul_i32 s62, s62, {mul}\nv_add_u32 v15, s62, v15")
    for s in range(n): A(f"ds_read_b64 v[{dst+2*s}:{dst+1+2*s}], v15 offset:{32*s}")
def tr128_addr(dst):
    A(f"v_lshrrev_b32 v39, 2, {vN}\nv_lshl_add_u32 v39, {vG}, 2, v39")
    A(f"v_and_b32 v40, 6, v39\nv_bfe_u32 v41, v0, 1, 1\nv_xor_b32 v40, v40, v41")
    A(f"v_lshlrev_b32 v{dst}, 7, v39\nv_lshl_add_u32 v{dst}, v40, 4, v{dst}\nv_lshl_add_u32 v{dst}, v14, 3, v{dst}\nv_add_u32 v{dst}, {TT}, v{dst}")

def mktag():
    A(f"s_add_u32 s30, s30, 0x01010101\nv_mov_b32 {vTAG}, s30")
def lsb_patterns(T, C=None, byg=False):
    if byg: A(f"v_lshlrev_b32 v39, 3, {vG}\nv_lshrrev_b32 v39, v39, {vTAG}")
    else: A(f"v_and_b32 v39, 3, v0\nv_lshlrev_b32 v39, 3, v39\nv_lshrrev_b32 v39, v39, {vTAG}")
    for j in range(4):
        A(f"v_bfe_u32 v{T+j}, v39, {2*j}, 1\nv_bfe_u32 v13, v39, {2*j+1}, 1\nv_lshl_or_b32 v{T+j}, v13, 16, v{T+j}")
        if C is not None: A(f"v_xor_b32 v{C+j}, 0x10001, v{T+j}")
def tok_wait(lab, off):
    A(f"s_mul_i32 s62, s31, {SS}\ns_add_u32 s62, s62, {off}\nv_mov_b32 v13, 0")
    spin_init()
    A.label(lab)
    A(f"buffer_load_dword v39, v13, {WS}, s62 offen sc1")
    spin_check()
    A(f"s_waitcnt vmcnt(0)\nv_cmp_ne_u32 vcc, v39, {vTAG}\ns_cbranch_vccnz {lab}")
def tok_send(off, wave):
    tok_send.n += 1
    A(f"s_cmp_lg_u32 s3, {wave}\ns_cbranch_scc1 L_ts{tok_send.n}")
    A(f"s_mul_i32 s62, s31, {SS}\ns_add_u32 s62, s62, {off}\nv_mov_b32 v13, 0\ns_mov_b64 exec, 1")
    A(f"buffer_store_dword {vTAG}, v13, {WS}, s62 offen sc1\ns_mov_b64 exec, -1")
    A.label(f"L_ts{tok_send.n}")
tok_send.n = 0
def tlb_touch():
    A(f"v_and_b32 v13, 7, v0\nv_lshlrev_b32 v13, 21, v13\nv_add_u32 v13, 0x1fff80, v13")
    A(f"buffer_load_dword v254, v13, {WS}, 0 offen")
def tlb_all(shift):
    A(f"v_lshlrev_b32 v13, {shift}, v0")
    for (sp, size) in ((12, 1024*8192), (14, 16*256*896), (18, 448*3584), (20, 448*3584), (22, 1792*896), (24, 1792), (6, 2*4096*2048)):
        A(f"v_min_u32 v15, {size-4}, v13\nglobal_load_dword v254, v15, s[{sp}:{sp+1}] {NT}")
dma.skip = False
def layernorm():
    for i in range(7):
        A(f"v_lshlrev_b32 v{24+2*i}, 16, v{16+i}\nv_and_b32 v{25+2*i}, 0xffff0000, v{16+i}")
    A("v_add_f32 v40, v24, v25\nv_add_f32 v41, v26, v27")
    for i in range(4, 14, 2): A(f"v_add_f32 v40, v40, v{24+i}\nv_add_f32 v41, v41, v{25+i}")
    A("v_add_f32 v40, v40, v41")
    row_red(40); swap_red(40, 41, 16)
    A(f"v_mul_f32 v40, {hex(f2u(1.0/448))}, v40")
    A("v_sub_f32 v42, v24, v40\nv_sub_f32 v43, v25, v40\nv_mul_f32 v44, v42, v42\nv_mul_f32 v45, v43, v43")
    for i in range(2, 14, 2):
        A(f"v_sub_f32 v42, v{24+i}, v40\nv_sub_f32 v43, v{25+i}, v40\nv_fmac_f32 v44, v42, v42\nv_fmac_f32 v45, v43, v43")
    A("v_add_f32 v44, v44, v45")
    row_red(44); swap_red(44, 45, 16)
    A(f"v_mul_f32 v44, {hex(f2u(1.0/448))}, v44")
    bf16r(40, 40); bf16r(44, 44)
    A(f"v_add_f32 v44, {hex(f2u(1e-5))}, v44"); bf16r(44, 44)
    A("v_sqrt_f32 v44, v44"); bf16r(44, 44)
    A("v_rcp_f32 v44, v44")
    for i in range(7):
        A(f"v_sub_f32 v42, v{24+2*i}, v40\nv_sub_f32 v43, v{25+2*i}, v40\nv_cvt_pk_bf16_f32 v42, v42, v43")
        A(f"v_and_b32 v43, 0xffff0000, v42\nv_lshlrev_b32 v42, 16, v42\nv_mul_f32 v42, v42, v44\nv_mul_f32 v43, v43, v44\nv_cvt_pk_bf16_f32 v{16+i}, v42, v43")
    for i in range(3): A(f"ds_write2_b32 v10, v{16+2*i}, v{17+2*i} offset0:{2*i} offset1:{2*i+1}")
    A("ds_write_b32 v10, v22 offset:24")
def pub_setup(base):
    A(f"v_lshrrev_b32 v43, 2, {vN}\nv_lshlrev_b32 v42, 1, v43\nv_add_u32 v42, v42, v12\nv_mul_u32_u24 v42, {FS}, v42\nv_and_b32 v44, 1, {vG}\nv_lshl_add_u32 v42, v44, 6, v42\nv_and_b32 v44, 3, v0\nv_lshl_add_u32 v42, v44, 4, v42")
    A("s_lshl_b32 s66, s3, 2\ns_cmp_eq_u32 s3, 3\ns_cselect_b32 s66, 11, s66")
    A(f"s_mul_i32 s64, s66, {2*FS}\ns_lshl_b32 s62, s31, 7\ns_add_u32 s64, s64, s62")
    A("s_cmp_ge_u32 s3, 2\ns_cselect_b32 s67, 0x0fff0fff, -1")
    A(f"v_lshl_add_u32 v46, {vG}, 2, v43\nv_mul_u32_u24 v46, 896, v46\nv_lshl_add_u32 v46, v44, 3, v46\ns_lshl_b32 s62, s66, 6\nv_add_u32 v46, s62, v46")
    A(f"v_add_u32 v46, {base}, v46")
def merged_publish(dbase, base_off):
    for t in range(8):
        setexec16(3 << (2*t)); tag_insert(64, dbase+4*t)
    A(f"s_mov_b32 exec_lo, s67\ns_mov_b32 exec_hi, s67\ns_add_u32 s62, s64, {base_off}")
    A(f"buffer_store_dwordx4 v[64:67], v42, {WS}, s62 offen sc1")
    A("s_mov_b64 exec, -1")
def ffn2_try(lab, notready, wait=None):
    if wait is None:
        A(f"buffer_load_dwordx4 v[68:71], v191, {WS}, s77 offen sc1")
        A("s_waitcnt vmcnt(0)")
    else: A(f"s_waitcnt vmcnt({wait})")
    tag_check_acc(68, 53, 54, True, 55)
    A(f"v_cmp_ne_u32 vcc, 0, v55\ns_cbranch_vccnz {notready}")
    for k in (4, 8):
        for r in range(4): A(f"v_add_f32_dpp v{68+r}, v{68+r}, v{68+r} row_ror:{k} {DPPM}")
    for r in range(4): bf16r(68+r, 68+r)
    for r in range(4):
        A(f"v_mov_b32_dpp v{72+r}, v{68+r} quad_perm:[0,1,0,1] {DPPM}\nv_mov_b32_dpp v{76+r}, v{68+r} quad_perm:[2,3,2,3] {DPPM}")
    c1 = -2.0*0.7978845608028654*1.4426950408889634; c2 = c1*0.044715
    A(f"s_mov_b32 s62, {hex(f2u(c2))}\nv_mov_b32 v84, {hex(f2u(c1))}")
    for r in range(4):
        A(f"v_mul_f32 v{80+r}, v{72+r}, v{72+r}\nv_fma_f32 v{80+r}, v{80+r}, s62, v84\nv_mul_f32 v{80+r}, v{80+r}, v{72+r}")
    for r in range(4): A(f"v_exp_f32 v{80+r}, v{80+r}")
    for r in range(4): A(f"v_add_f32 v{80+r}, 1.0, v{80+r}")
    for r in range(4): A(f"v_rcp_f32 v{80+r}, v{80+r}")
    for r in range(4): A(f"v_mul_f32 v{80+r}, v{80+r}, v{72+r}")
    for r in range(4): bf16r(80+r, 80+r)
    for r in range(4): A(f"v_mul_f32 v{80+r}, v{80+r}, v{76+r}")
    A("v_cvt_pk_bf16_f32 v80, v80, v81\nv_cvt_pk_bf16_f32 v81, v82, v83")
    A("s_waitcnt lgkmcnt(0)")
    for t in range(8): A(f"v_mfma_f32_16x16x16_bf16 v[{128+4*t}:{131+4*t}], v[{192+2*t}:{193+2*t}], v[80:81], 0")
    for t in range(8):
        setexec16(3 << (2*t)); tag_insert(64, 128+4*t)
    A(f"s_mov_b32 exec_lo, s79\ns_mov_b32 exec_hi, s79")
    A(f"buffer_store_dwordx4 v[64:67], v190, {WS}, s78 offen sc1")
    A("s_mov_b64 exec, -1\ns_mov_b32 s76, 0\ns_nop 1")
if STAMPS: A("s_memrealtime s[98:99]")
if opt["hold"]: A("s_memrealtime s[100:101]")
A(f"s_cmp_ge_u32 s2, 256\ns_cbranch_scc1 L_end0")
A("s_load_dwordx16 s[4:19], s[0:1], 0\ns_load_dwordx8 s[20:27], s[0:1], 64\ns_load_dwordx2 s[28:29], s[0:1], 96")
A(f"v_lshrrev_b32 v4, 6, v0\nv_and_b32 v0, 63, v0\nv_readfirstlane_b32 s3, v4")
A(f"v_and_b32 {vN}, 15, v0\nv_lshrrev_b32 {vG}, 4, v0\nv_and_b32 v14, 1, v0")
if STAMPS: A(f"v_mov_b32 {vST}, 0")
A("s_and_b32 s31, s2, 127")
A("v_lshrrev_b32 v12, 5, v0\nv_and_b32 v11, 31, v0")
A("s_mov_b32 s34, %d\ns_mov_b32 s35, 0x20000\ns_mov_b32 s43, 0x20000" % WSSZ)
def consts():
    A("s_mov_b32 s44, 0x07060500\ns_mov_b32 s45, 0x07060501\ns_mov_b32 s46, 0x07060502\ns_mov_b32 s47, 0x07060503")
    A("s_mov_b32 s48, 0x0c0c0400\ns_mov_b32 s49, 0x04000c0c")
def code_prefetch(lab, mul):
    A("s_getpc_b64 s[50:51]")
    A.label(lab)
    A(f"s_sub_u32 s50, s50, {lab}-{NAME}\ns_subb_u32 s51, s51, 0")
    A(f"s_lshr_b32 s52, s31, 3\ns_mul_i32 s52, s52, {mul}\ns_add_u32 s52, s52, s3\ns_min_u32 s52, s52, {opt['codekb']-1}\ns_lshl_b32 s52, s52, 10")
    A(f"v_lshlrev_b32 v5, 4, v0\nv_add_u32 v4, s52, v5")
    A("global_load_dwordx4 v[250:253], v4, s[50:51]")
A("v_lshrrev_b32 v7, 3, v0\nv_and_b32 v6, 6, v7\nv_and_b32 v8, 7, v0\nv_xor_b32 v6, v6, v8\nv_lshlrev_b32 v6, 4, v6\nv_mul_u32_u24 v10, 28, v0")
A("s_cmp_ge_u32 s2, 128\ns_cbranch_scc1 L_A")

A("s_and_b32 s60, s31, 15\ns_lshr_b32 s61, s31, 4")
A(f"s_lshl_b32 s59, s3, 14\ns_add_u32 s59, s59, {BIG}")
code_prefetch("L_pc1", 4)
A("v_lshl_add_u32 v9, v7, 13, v6")
A("s_and_b32 s53, s2, 1\ns_lshr_b32 s54, s2, 1")
A(f"s_mul_i32 s55, s53, {224*8192}\ns_lshl_b32 s56, s54, 7\ns_add_u32 s55, s55, s56\ns_lshl_b32 s56, s3, 16\ns_add_u32 s55, s55, s56")
A(f"s_lshl_b32 s57, s3, 10\ns_add_u32 s57, s57, {TT}")
A("s_mov_b32 s38, %d\ns_mov_b32 s39, 0x20000" % (448*8192))
A("s_lshl_b32 s58, s61, 7\ns_lshl_b32 s62, s60, 9\ns_lshl_b32 s58, s58, 13\ns_add_u32 s58, s58, s62")
A("s_and_b32 s62, s3, 1\ns_lshl_b32 s62, s62, 16\ns_lshr_b32 s63, s3, 1\ns_lshl_b32 s63, s63, 19\ns_add_u32 s62, s62, s63\ns_add_u32 s56, s58, s62")
A("v_xor_b32 v11, v11, v12\nv_lshlrev_b32 v11, 4, v11\nv_lshl_add_u32 v11, v12, 14, v11")
A("s_mov_b32 s42, %d" % (1024*8192))
A("s_waitcnt lgkmcnt(0)")
A(f"s_cmp_eq_u32 s3, {QW}\ns_cbranch_scc0 L_nx")
A("global_load_dwordx4 v[16:19], v10, s[4:5]\nglobal_load_dwordx3 v[20:22], v10, s[4:5] offset:16")
A.label("L_nx")
A("s_mov_b32 s36, s8\ns_mov_b32 s37, s9")
for i in range(7):
    if i: A(f"s_add_u32 s55, s55, {4*65536}")
    dma("v9", R1, "s55", "s57", i*4096)
if STAMPS: A(f"v_writelane_b32 {vST}, s98, 0")
A("s_load_dword s30, s[28:29], 0\ns_mov_b32 s32, s28\ns_mov_b32 s33, s29\ns_mov_b32 s40, s10\ns_mov_b32 s41, s11")
consts()
A(f"s_cmp_eq_u32 s3, {QW}\ns_cbranch_scc0 L_nln")
A(f"s_waitcnt vmcnt(7)")
layernorm()
A.label("L_nln")
WD0 = opt["wd0"]
def wuk_dma(i):
    if opt["wdepth"] and i >= max(opt["wdepth"], WD0): A(f"s_waitcnt vmcnt({opt['wdepth']-1})")
    A(f"v_xor_b32 v13, {2*(i&7)*16}, v11")
    A(f"s_add_u32 s62, s56, {(16*((i&7)>>1)+4*(i&1)+(i>>3))*8192}")
    dma("v13", R2, "s62", "s59", i*1024)
for i in range(WD0):
    if i == WD0 - 1:
        A("s_waitcnt lgkmcnt(0)")
        mktag()
    wuk_dma(i)
tr128_addr(44)
A("s_lshl_b32 s62, s3, 5\nv_xor_b32 v44, s62, v44")
A("v_bfe_u32 v45, v0, 2, 1\nv_and_b32 v46, 3, v0\nv_or_b32 v46, 0x07060500, v46")
A(f"s_mul_i32 s63, s31, {SS}\ns_lshl_b32 s62, s3, 6\ns_add_u32 s63, s63, s62\ns_add_u32 s63, s63, {QP}")
A(f"v_lshlrev_b32 v40, 8, {vG}\nv_lshl_add_u32 v40, {vN}, 2, v40")
if opt["tlb"]: tlb_touch()
A(f"s_waitcnt vmcnt({WD0+min(1,opt['tlb'])})\ns_barrier")
xn_operands(96, 1, 448, 14, "v45")
for s in range(14): A(f"ds_read_b64_tr_b16 v[{64+2*s}:{65+2*s}], v44 offset:{2048*s}")
for s in range(7):
    A(f"s_waitcnt lgkmcnt({12-2*s})")
    A(f"v_mfma_f32_16x16x32_bf16 v[128:131], v[{96+4*s}:{99+4*s}], v[{64+4*s}:{67+4*s}], {'0' if s==0 else 'v[128:131]'}")
A(f"v_perm_b32 v48, v128, {vTAG}, v46")
A("s_mov_b32 exec_hi, 0")
A(f"buffer_store_dword v48, v40, {WS}, s63 offen sc1")
A("s_mov_b64 exec, -1")
stamp(3)
for i in range(WD0, 16): wuk_dma(i)
A(f"v_and_b32 v40, 31, v0\nv_lshlrev_b32 v40, 4, v40\nv_mul_u32_u24 v41, {SS}, v12\nv_add_u32 v40, v40, v41")
A(f"s_lshl_b32 s63, s60, 2\ns_add_u32 s63, s63, s3\ns_mul_i32 s63, s63, {2*SS}\ns_add_u32 s63, s63, {QP}")
A(f"buffer_load_dwordx4 v[44:47], v40, {WS}, s63 offen sc1")
A(f"v_xor_b32 v41, {vG}, {vN}\nv_lshlrev_b32 v41, 4, v41\nv_lshl_add_u32 v41, {vN}, 9, v41\nv_add_u32 v41, s59, v41")
A("v_xor_b32 v42, 64, v41\nv_xor_b32 v43, 128, v41\nv_xor_b32 v52, 192, v41")
adr = [41, 42, 43, 52]
A(f"v_and_b32 v56, 1, {vG}\nv_lshlrev_b32 v56, 9, v56\nv_lshl_add_u32 v56, {vN}, 3, v56\nv_lshl_add_u32 v56, v12, 2, v56")
A(f"s_lshl_b32 s62, s3, 7\ns_add_u32 s62, s62, {EX}\nv_add_u32 v56, s62, v56")
A(f"v_bfe_u32 v57, v0, 2, 1\nv_lshlrev_b32 v57, 9, v57\nv_lshl_add_u32 v57, {vG}, 4, v57")
A(f"v_lshlrev_b32 v58, 8, {vG}\nv_lshl_add_u32 v58, {vN}, 2, v58")
A(f"s_mul_i32 s64, s31, {SS}\ns_lshl_b32 s62, s3, 6\ns_add_u32 s64, s64, s62\ns_add_u32 s64, s64, {QA}")
A(f"v_lshlrev_b32 v59, 1, {vN}\nv_lshrrev_b32 v59, v59, {vTAG}\nv_bfe_u32 v60, v59, 1, 1\nv_and_b32 v59, 1, v59\nv_lshl_or_b32 v59, v60, 16, v59\nv_xor_b32 v60, 0x10001, v59")
A("s_mov_b32 s65, 0xfffefffe\ns_mov_b32 s67, 0x07060302")
for t in range(2):
    A(f"s_waitcnt vmcnt({9-8*t})")
    for s in range(8): A(f"ds_read_b128 a[{32*t+4*s}:{32*t+4*s+3}], v{adr[s&3]} offset:{t*8192+(s>>2)*256}")
spin_init()
A.label("L_wq")
A("s_waitcnt vmcnt(0)")
tag_check_acc(44, 53, 54, True, 55)
A("v_cmp_ne_u32 vcc, 0, v55\ns_cbranch_vccz L_wq_ok")
spin_check()
A(f"buffer_load_dwordx4 v[44:47], v40, {WS}, s63 offen sc1")
A("s_branch L_wq")
A.label("L_wq_ok")
stamp(4)
A("v_permlane32_swap_b32 v44, v46\nv_permlane32_swap_b32 v45, v47\nv_add_f32 v44, v44, v46\nv_add_f32 v45, v45, v47")
A("v_cvt_pk_bf16_f32 v44, v44, v45\nds_write_b32 v56, v44")
A("s_waitcnt lgkmcnt(0)\ns_barrier")
for s in range(8): A(f"ds_read_b128 v[{64+4*s}:{67+4*s}], v57 offset:{EX+64*s}")
for s in range(8):
    A(f"s_waitcnt lgkmcnt({7-s})")
    for t in range(2):
        A(f"v_mfma_f32_16x16x32_bf16 v[{96+4*t}:{99+4*t}], v[{64+4*s}:{67+4*s}], a[{32*t+4*s}:{32*t+4*s+3}], {'0' if s==0 else f'v[{96+4*t}:{99+4*t}]'}")
A("v_mul_f32 v96, 0x3d800000, v96\nv_mul_f32 v100, 0x3d800000, v100\nv_perm_b32 v48, v100, v96, s67\nv_pk_add_u16 v48, v48, v60\nv_and_or_b32 v48, v48, s65, v59")
A("s_mov_b32 exec_hi, 0")
A(f"buffer_store_dword v48, v58, {WS}, s64 offen sc1")
A("s_mov_b64 exec, -1")
stamp(5)
if opt["tokpos"] >= 0:
    tok_wait("L_tok", TOK)
    stamp(13)
srd(R2, 12, 1024*8192)
A("v_and_b32 v8, 7, v0\nv_lshlrev_b32 v8, 4, v8\nv_lshl_add_u32 v11, v7, 13, v8")
A("s_lshl_b32 s58, s61, 20\ns_lshl_b32 s62, s60, 9\ns_add_u32 s58, s58, s62\ns_lshl_b32 s62, s3, 7\ns_add_u32 s58, s58, s62")
A("s_add_u32 s59, s59, 65536")
for i in range(16):
    if 0 < i <= opt["w2thr"]: A("s_waitcnt vmcnt(0)")
    elif opt["w2depth"]: A(f"s_waitcnt vmcnt({opt['w2depth']-1})")
    A(f"v_xor_b32 v13, {2*((i>>1)&3)*16}, v11")
    A(f"s_add_u32 s62, s58, {i*65536}")
    dma("v13", R2, "s62", "s59", i*1024)
A(f"v_mul_u32_u24 v39, 448, v14\nv_bfe_u32 v40, v0, 1, 1\nv_lshl_add_u32 v39, v40, 4, v39\nv_bfe_u32 v40, v0, 2, 1\nv_lshl_add_u32 v39, v40, 2, v39\nv_add_u32 v39, v39, {vG}")
A("s_min_u32 s62, s31, 27\ns_lshr_b32 s63, s62, 1\ns_lshl_b32 s63, s63, 5\ns_and_b32 s62, s62, 1\ns_lshl_b32 s62, s62, 3\ns_add_u32 s62, s62, s63\nv_add_u32 v39, s62, v39\nv_lshlrev_b32 v200, 1, v39")
A("global_load_ushort v201, v200, s[4:5]\nglobal_load_ushort v202, v200, s[24:25]")
dma.skip = True
A("s_cmp_ge_u32 s31, 112\ns_cbranch_scc1 L_wgu")
A("s_cmp_ge_u32 s3, 2\ns_cselect_b32 s36, s20, s18\ns_cselect_b32 s37, s21, s19")
A(f"s_mov_b32 s38, {448*3584}\ns_mov_b32 s39, 0x20000")
A("v_mul_u32_u24 v9, 3584, v7\nv_add_u32 v9, v9, v6")
A(f"s_and_b32 s53, s2, 3\ns_mul_i32 s55, s53, {112*3584}\ns_lshr_b32 s54, s31, 2\ns_lshl_b32 s62, s54, 7\ns_add_u32 s55, s55, s62")
A(f"s_and_b32 s62, s3, 1\ns_mul_i32 s62, s62, {7*8*3584}\ns_add_u32 s55, s55, s62")
A(f"s_mul_i32 s57, s3, 7168\ns_add_u32 s57, s57, {TT}")
for i in range(7):
    if opt["thr_g"] <= i: A(f"s_waitcnt vmcnt({opt['thr_g']-1})")
    if i: A(f"s_add_u32 s55, s55, {8*3584}")
    dma("v9", R1, "s55", "s57", i*1024)
A.label("L_wgu")
stamp(6)
A(f"v_lshrrev_b32 v39, 2, {vN}\nv_lshl_add_u32 v40, v39, 4, {vG}\nv_lshlrev_b32 v40, 7, v40")
A(f"v_lshlrev_b32 v39, 1, v39\nv_bfe_u32 v41, v0, 1, 1\nv_xor_b32 v39, v39, v41\nv_lshl_add_u32 v40, v39, 4, v40\nv_lshl_add_u32 v40, v14, 3, v40\nv_add_u32 v41, s59, v40")
A("v_xor_b32 v42, 32, v41\nv_xor_b32 v43, 64, v41\nv_xor_b32 v52, 96, v41")
lsb_patterns(24)
A("s_waitcnt vmcnt(7)\ns_cmp_lt_u32 s31, 112\ns_cbranch_scc1 L_wst\ns_waitcnt vmcnt(0)")
A.label("L_wst")
for t in range(4):
    for s in range(4):
        for z in range(2):
            b = 64+16*t+4*s+2*z
            A(f"ds_read_b64_tr_b16 a[{b}:{b+1}], v{adr[t]} offset:{s*512+z*8192}")
stamp(13)
A("s_cmp_ge_u32 s31, 112\ns_cbranch_scc1 L_wf1")
xn_operands(176, 3, 224, 7)
tr128_addr(38)
A("s_lshl_b32 s62, s3, 5\nv_xor_b32 v38, s62, v38\nv_lshlrev_b32 v40, 4, v0")
A(f"v_lshlrev_b32 v41, 6, {vG}\nv_lshl_add_u32 v41, {vN}, 4, v41")
A(f"s_lshl_b32 s64, s54, 2\ns_add_u32 s64, s64, s3\ns_mul_i32 s64, s64, {SS}\ns_lshl_b32 s63, s53, 8\ns_add_u32 s64, s64, s63\ns_add_u32 s64, s64, {HP}")
A(f"s_waitcnt vmcnt(0) lgkmcnt(0)\ns_barrier")
for mat in range(2):
    for s in range(7): A(f"ds_read_b64_tr_b16 v[{208+14*mat+2*s}:{209+14*mat+2*s}], v38 offset:{14336*mat+2048*s}")
for mat in range(2):
    for s in range(7):
        A(f"s_waitcnt lgkmcnt({13-7*mat-s})")
        A(f"v_mfma_f32_16x16x16_bf16 v[{128+4*mat}:{131+4*mat}], v[{208+14*mat+2*s}:{209+14*mat+2*s}], v[{176+2*s}:{177+2*s}], {'0' if s==0 else f'v[{128+4*mat}:{131+4*mat}]'}")
tag_insert(48, 128)
setexec16(0xc); tag_insert(48, 132); setexec16(0xf)
A(f"buffer_store_dwordx4 v[48:51], v41, {WS}, s64 offen sc1")
A("s_mov_b64 exec, -1")
A.flush()
A.label("L_wf1")
RED = BIG; MLB = BIG + 4096
A(f"v_lshlrev_b32 v40, 4, v0\nv_and_b32 v41, 31, v0\nv_mul_u32_u24 v41, {SS}, v41")
A(f"s_mul_i32 s97, s3, {32*SS}\ns_lshl_b32 s62, s60, 4\ns_add_u32 s97, s97, s62\ns_add_u32 s97, s97, {STAT}")
A(f"s_mul_i32 s56, s31, {LS}\ns_lshl_b32 s57, s3, 13\ns_add_u32 s56, s56, s57\ns_add_u32 s56, s56, {LAT}\ns_add_u32 s57, s56, 4096")
A(f"v_lshlrev_b32 v61, 2, {vG}")
A(f"v_and_b32 v62, 3, v0\nv_lshlrev_b32 v62, 4, v62\nv_and_b32 v55, 12, v0\nv_add3_u32 v62, v62, v55, {vG}\nv_lshlrev_b32 v62, 4, v62")
A(f"s_lshl_b32 s62, s3, 10\ns_add_u32 s62, s62, {RED}\nv_add_u32 v62, s62, v62")
A(f"v_lshlrev_b32 v58, 5, v14\ns_lshl_b32 s62, s3, 3\nv_add_u32 v59, s62, v58")
A(f"v_lshlrev_b32 v60, 6, {vG}\nv_lshl_add_u32 v60, {vN}, 4, v60")
A(f"s_lshl_b32 s58, s60, 3\ns_lshl_b32 s63, s3, 1\ns_add_u32 s58, s58, s63\ns_mul_i32 s58, s58, {SS}\ns_lshl_b32 s63, s61, 8\ns_add_u32 s58, s58, s63\ns_add_u32 s58, s58, {CTXP}\ns_add_u32 s65, s58, {SS}")
S4 = 8448
if opt["stat4"]:
    A(f"v_and_b32 v41, 31, v0\nv_lshlrev_b32 v41, 6, v41\ns_mul_i32 s97, s31, {S4}\ns_lshl_b32 s62, s3, 11\ns_add_u32 s97, s97, s62\ns_add_u32 s97, s97, {ST3}")
if opt["stat3"]:
    sh = opt["stat3"]
    A(f"v_and_b32 v41, 31, v0\nv_lshlrev_b32 v41, {sh}, v41\ns_lshl_b32 s97, s31, {sh+7}\ns_lshl_b32 s62, s3, {sh+5}\ns_add_u32 s97, s97, s62\ns_add_u32 s97, s97, {ST3}")
stamp(7)
A(f"s_mul_i32 s66, s31, {SS}\ns_lshl_b32 s62, s3, 6\ns_add_u32 s66, s66, s62\ns_add_u32 s66, s66, {QAF}\ns_add_u32 s70, s28, s66\ns_addc_u32 s71, s29, 0")
spin_init()
A.label("L_wl")
A("s_load_dword s72, s[70:71], 0 glc")
spin_check()
A("s_waitcnt lgkmcnt(0)\ns_cmp_lg_u32 s72, s30\ns_cbranch_scc1 L_wl")
def lat_loads():
    A(f"buffer_load_dwordx4 v[44:47], v41, {WS}, s97 offen sc1")
    for i in range(8): A(f"buffer_load_dwordx4 v[{64+4*i}:{67+4*i}], v40, {WS}, {'s56' if i<4 else 's57'} offen offset:{(i&3)*1024} sc1")
lat_loads()
stamp(8)
A.label("L_wlr")
A("s_waitcnt vmcnt(8)")
A(f"v_cmp_ne_u32 s[68:69], v46, {vTAG}")
A("v_mov_b32 v46, v44")
row_red(46, "v_max_f32", (8,4,2)); swap_red(46, 55, 16, "v_max_f32")
A("v_sub_f32 v44, v44, v46\nv_exp_f32 v44, v44")
for i in range(8): A(f"ds_bpermute_b32 v{100+i}, v61, v44 offset:{16*i}")
A("v_mul_f32 v47, v45, v44")
row_red(47, "v_add_f32", (8,4,2)); swap_red(47, 55, 16)
A(f"ds_write_b64 v59, v[46:47] offset:{MLB}")
A("s_waitcnt lgkmcnt(1)")
for i in range(8):
    A(f"s_waitcnt vmcnt({7-i})")
    for jj in range(4):
        d = 64+4*i+jj
        A(f"v_lshlrev_b32 v56, 16, v{d}\nv_and_b32 v57, 0xffff0000, v{d}")
        if i == 0 and jj == 0: A(f"v_xor_b32 v55, v{d}, v24")
        else: A(f"v_bitop3_b32 v55, v{d}, v{24+jj}, v55 bitop3:0xbe")
        if i == 0: A(f"v_mul_f32 v{110+2*jj}, v56, v100\nv_mul_f32 v{111+2*jj}, v57, v100")
        else: A(f"v_fmac_f32 v{110+2*jj}, v56, v{100+i}\nv_fmac_f32 v{111+2*jj}, v57, v{100+i}")
A("v_and_b32 v55, 0x10001, v55\nv_cmp_ne_u32 vcc, 0, v55\ns_or_b64 vcc, vcc, s[68:69]\ns_cbranch_vccz L_wlk\ns_waitcnt lgkmcnt(0)")
lat_loads()
spin_check()
if STAMPS: A(f"s_sub_u32 s62, 400000, s96\nv_writelane_b32 {vST}, s62, 14")
A("s_branch L_wlr")
A.label("L_wlk")
for e in range(4): A(f"v_permlane32_swap_b32 v{110+e}, v{114+e}")
for e in range(4): A(f"v_add_f32 v{120+e}, v{110+e}, v{114+e}")
A("ds_write_b128 v62, v[120:123]")
A(f"s_waitcnt lgkmcnt(0)\ns_barrier")
stamp(9)
A(f"ds_read_b128 v[44:47], v58 offset:{MLB}\nds_read_b128 v[48:51], v58 offset:{MLB+16}")
for v in range(4): A(f"ds_read_b128 v[{64+4*v}:{67+4*v}], v40 offset:{RED+1024*v}")
A("s_waitcnt lgkmcnt(4)")
A("v_max3_f32 v55, v44, v46, v48\nv_max_f32 v55, v55, v50")
for v in range(4): A(f"v_sub_f32 v{44+2*v}, v{44+2*v}, v55")
for v in range(4): A(f"v_exp_f32 v{44+2*v}, v{44+2*v}")
A("v_mul_f32 v55, v44, v45\nv_fmac_f32 v55, v46, v47\nv_fmac_f32 v55, v48, v49\nv_fmac_f32 v55, v50, v51\nv_rcp_f32 v55, v55")
A("s_waitcnt lgkmcnt(0)")
for e in range(4): A(f"v_mul_f32 v{64+e}, v{64+e}, v44")
for v in range(1, 4):
    for e in range(4): A(f"v_fmac_f32 v{64+e}, v{64+4*v+e}, v{44+2*v}")
for e in range(4): A(f"v_mul_f32 v{64+e}, v{64+e}, v55")
A("v_cvt_pk_bf16_f32 v78, v64, v65\nv_cvt_pk_bf16_f32 v79, v66, v67")
A(f"v_mov_b32_dpp v80, v78 quad_perm:[0,1,0,1] {DPPM}\nv_mov_b32_dpp v81, v79 quad_perm:[0,1,0,1] {DPPM}")
A(f"v_mov_b32_dpp v82, v78 quad_perm:[2,3,2,3] {DPPM}\nv_mov_b32_dpp v83, v79 quad_perm:[2,3,2,3] {DPPM}")
for s in range(1, 4):
    for k in range(4): A(f"v_mov_b32_dpp v{80+4*s+k}, v{80+k} row_shl:{4*s} {DPPM}")
for s in range(4):
    for t in range(4):
        A(f"v_mfma_f32_16x16x32_bf16 v[{100+4*t}:{103+4*t}], a[{64+16*t+4*s}:{67+16*t+4*s}], v[{80+4*s}:{83+4*s}], {'0' if s==0 else f'v[{100+4*t}:{103+4*t}]'}")
tag_insert(64, 100); tag_insert(68, 108)
setexec16(0xc); tag_insert(64, 104); tag_insert(68, 112); setexec16(0xf)
A(f"buffer_store_dwordx4 v[64:67], v60, {WS}, s58 offen sc1\nbuffer_store_dwordx4 v[68:71], v60, {WS}, s65 offen sc1")
A("s_mov_b64 exec, -1")
stamp(10)
A("s_cmp_ge_u32 s31, 28\ns_cbranch_scc1 L_end")
FR = BIG + 8192
def fin_tail(ldsoff):
    for r in range(4): A(f"v_add_f32 v{72+r}, v{72+r}, v{76+r}")
    for r in range(4): A(f"v_add_f32_dpp v{72+r}, v{72+r}, v{72+r} row_ror:8 {DPPM}")
    A("v_permlane32_swap_b32 v72, v74\nv_permlane32_swap_b32 v73, v75\nv_add_f32 v72, v72, v74\nv_add_f32 v73, v73, v75")
    A("v_permlane16_swap_b32 v72, v73\nv_add_f32 v72, v72, v73")
    A(f"ds_write_b32 v56, v72 offset:{ldsoff}")
A(f"v_lshlrev_b32 v57, 2, v0\ns_lshl_b32 s62, s3, 8\nv_add_u32 v56, s62, v57")
A(f"s_mul_i32 s62, s31, {FS}\ns_lshl_b32 s63, s3, 12\ns_add_u32 s64, s62, s63\ns_add_u32 s62, s64, {YP}\ns_add_u32 s64, s64, {OUTP}")
for r in range(8): A(f"v_mov_b32 v{88+r}, 0")
spin_init()
A.label("L_fy")
for i in range(2): A(f"buffer_load_dwordx4 v[{80+4*i}:{83+4*i}], v40, {WS}, s62 offen offset:{1024*i} sc1")
A("v_mov_b32 v55, 0\ns_cmp_eq_u32 s3, 3\ns_cbranch_scc1 L_fy_s")
for i in range(2, 4): A(f"buffer_load_dwordx4 v[{80+4*i}:{83+4*i}], v40, {WS}, s62 offen offset:{1024*i} sc1")
A("s_waitcnt vmcnt(0)")
tag_check_acc(88, 53, 54, True, 55); tag_check_acc(92, 53, 54, False, 55)
A.label("L_fy_s")
A("s_waitcnt vmcnt(0)")
tag_check_acc(80, 53, 54, False, 55); tag_check_acc(84, 53, 54, False, 55)
A(f"v_cmp_ne_u32 vcc, 0, v55")
spin_check()
A(f"s_cbranch_vccnz L_fy")
def fin_first(b):
    for r in range(4): A(f"v_add_f32 v{72+r}, v{b+r}, v{b+4+r}\nv_add_f32 v{76+r}, v{b+8+r}, v{b+12+r}")
fin_first(80); fin_tail(FR)
stamp(11)
pipe_poll("L_fo", [("v40", "s64", 1024*i) for i in range(4)], [80, 96], fin_first)
fin_tail(FR+1024)
A("s_waitcnt lgkmcnt(0)\ns_barrier")
stamp(12)
A("s_cmp_lg_u32 s3, 0\ns_cbranch_scc1 L_end")
for v in range(4): A(f"ds_read_b32 v{64+v}, v57 offset:{FR+256*v}\nds_read_b32 v{68+v}, v57 offset:{FR+1024+256*v}")
srd(R1, 24, 896*2)
A("s_waitcnt lgkmcnt(0)")
A("v_add_f32 v64, v64, v65\nv_add_f32 v66, v66, v67\nv_add_f32 v68, v68, v69\nv_add_f32 v70, v70, v71\nv_add_f32 v64, v64, v66\nv_add_f32 v68, v68, v70")
bf16r(64, 64); bf16r(68, 68)
A(f"v_mul_f32 v65, {hex(f2u(-1.4426950408889634))}, v64\nv_exp_f32 v65, v65\nv_add_f32 v65, 1.0, v65\nv_rcp_f32 v65, v65\nv_mul_f32 v65, v65, v64")
bf16r(65, 65)
A("v_mul_f32 v65, v65, v68")
if opt["eps"]: A(f"v_mul_f32 v65, {hex(f2u(1+opt['eps']/1000))}, v65")
bf16r(65, 65)
A("v_lshlrev_b32 v201, 16, v201\nv_add_f32 v65, v65, v201\nv_cvt_pk_bf16_f32 v65, v65, v65")
setexec16(0xff)
A(f"buffer_store_short v65, v200, {R1}, 0 offen")
A("s_cmp_lg_u32 s31, 0\ns_cbranch_scc1 L_end")
A(f"s_mov_b64 exec, 1\nv_mov_b32 v64, 0\nbuffer_store_dword {vTAG}, v64, {WS}, 0 offen")
A("s_branch L_end")

dma.skip = False
A.label("L_A")
A.hist = []
code_prefetch("L_pc2", 4)
A("s_and_b32 s60, s31, 1\ns_lshr_b32 s61, s31, 1")
A("s_lshl_b32 s58, s60, 23\ns_lshl_b32 s62, s61, 17\ns_add_u32 s58, s58, s62\ns_lshl_b32 s62, s3, 9\ns_add_u32 s58, s58, s62")
A(f"s_lshl_b32 s59, s3, 15\ns_add_u32 s59, s59, {BIG}")
if opt["kmode"] == 2: A("s_and_b32 s72, s58, 0xfff9ffff\ns_and_b32 s62, s61, 3\ns_lshl_b32 s62, s62, 15\ns_add_u32 s72, s72, s62")
if opt["kmode"] == 3: A("s_and_b32 s72, s58, 0xffe1ffff\ns_and_b32 s62, s61, 15\ns_lshl_b32 s62, s62, 13\ns_add_u32 s72, s72, s62")
A("v_lshlrev_b32 v13, 1, v12\nv_xor_b32 v11, v11, v13\nv_lshlrev_b32 v11, 4, v11\nv_lshl_add_u32 v11, v12, 11, v11")
A("s_mov_b32 s42, %d" % (2*4096*2048))
A("s_waitcnt lgkmcnt(0)")
if STAMPS: A(f"v_writelane_b32 {vST}, s98, 0")
A("s_mov_b32 s40, s6\ns_mov_b32 s41, s7")
def ckv_dma(i):
    ii = i & 7; cst = 4*(ii&3) + (ii>>2)
    if opt["adepth"] and opt["adepth"] <= i < opt["athr"]: A(f"s_waitcnt vmcnt({opt['adepth']-1})")
    elif opt["adepth2"] and i >= opt["adepth2"]: A(f"s_waitcnt vmcnt({opt['adepth2']-1})")
    A(f"v_xor_b32 v13, {cst*16}, v11")
    km = opt["kmode"]
    if km == 0: A(f"s_add_u32 s62, s58, {i*4096}")
    elif km == 1: A(f"s_add_u32 s62, s58, {((i&3)*16+(i>>2)*2)*2048}")
    elif km == 2:
        A(f"s_add_u32 s62, s61, {i>>3}\ns_and_b32 s62, s62, 3\ns_lshl_b32 s62, s62, 17\ns_add_u32 s62, s62, s72\ns_add_u32 s62, s62, {(i&7)*4096}")
    elif km == 3:
        A(f"s_add_u32 s62, s61, {i}\ns_and_b32 s62, s62, 15\ns_lshl_b32 s62, s62, 17\ns_add_u32 s62, s62, s72\ns_add_u32 s62, s62, {(i>>4)*4096}")
    dma("v13", R2, "s62", "s59", i*1024)
AP = opt["apre"]
for i in range(AP): ckv_dma(i)
A("s_load_dword s30, s[28:29], 0\ns_mov_b32 s32, s28\ns_mov_b32 s33, s29")
if opt["tlb"]: tlb_touch()
if opt["tlb"] >= 2:
    A("s_cmp_lg_u32 s3, 0\ns_cbranch_scc1 L_tl")
    tlb_all(opt["tlb"])
    A.label("L_tl")
for i in range(AP, 16): ckv_dma(i)
consts()
A(f"v_and_b32 v40, 7, v0\nv_lshlrev_b32 v40, 1, v40\nv_bfe_u32 v41, v0, 3, 1\nv_or_b32 v40, v40, v41")
A(f"v_lshlrev_b32 v41, 1, {vG}\nv_xor_b32 v40, v40, v41\nv_lshlrev_b32 v40, 4, v40\nv_lshl_add_u32 v40, {vN}, 9, v40\nv_add_u32 v44, s59, v40")
A("v_xor_b32 v45, 16, v44\nv_xor_b32 v46, 128, v44\nv_xor_b32 v47, 144, v44")
A(f"v_lshrrev_b32 v40, 2, {vN}\nv_lshl_add_u32 v40, {vG}, 2, v40")
A("v_and_b32 v41, 7, v40\nv_lshlrev_b32 v41, 1, v41\nv_lshrrev_b32 v42, 3, v40\nv_or_b32 v41, v41, v42\nv_bfe_u32 v42, v0, 1, 1\nv_xor_b32 v41, v41, v42")
A("v_lshlrev_b32 v40, 9, v40\nv_lshl_add_u32 v40, v41, 4, v40\nv_lshl_add_u32 v40, v14, 3, v40\nv_add_u32 v16, s59, v40")
for t in range(1, 8): A(f"v_xor_b32 v{16+t}, {32*t}, v16")
A("s_waitcnt lgkmcnt(0)")
mktag()
lsb_patterns(24, 28)
lsb_patterns(32, None, True)
def stage_tile(T):
    for s in range(8):
        A(f"ds_read_b128 a[{32*T+4*s}:{32*T+4*s+3}], v{44+(s&3)} offset:{T*8192+(s>>2)*256}")
    u, z = T >> 1, T & 1
    for t in range(16):
        b = 128 + 8*t + 4*u + 2*z
        A(f"ds_read_b64_tr_b16 a[{b}:{b+1}], v{16+(t&7)} offset:{T*8192+(t>>3)*256}")
A(f"v_xor_b32 v37, {vG}, {vN}\nv_lshlrev_b32 v37, 4, v37\nv_mul_u32_u24 v38, {SS}, {vG}\nv_add_u32 v38, v38, v37")
A(f"v_lshl_add_u32 v48, {vN}, 8, v37\nv_add_u32 v48, s59, v48\nv_xor_b32 v49, 64, v48\nv_xor_b32 v50, 128, v48\nv_xor_b32 v51, 192, v48")
A(f"s_lshl_b32 s70, s60, 8\ns_mul_i32 s63, s3, {32*SS}\ns_add_u32 s70, s70, s63\ns_add_u32 s70, s70, {QA}")
def qa_loads(m="sc1"):
    for k in range(8):
        A(f"v_xor_b32 v13, {64*(k&3)}, v38\ns_add_u32 s62, s70, {4*k*SS}\ns_add_u32 m0, s59, {1024*k}")
        A(f"buffer_load_dwordx4 v13, {WS}, s62 offen sc1 lds")
for T in range(2):
    for i in range(16+8*T, 24+8*T):
        ckv_dma(i)
        if i == opt["tokpos"]: tok_send(TOK, 3)
    if T == 1 and not opt["qbarr"]: qa_loads()
    A(f"s_waitcnt vmcnt({16+8*T*(1-opt['qbarr'])})")
    stage_tile(T)
if opt["qbarr"]:
    A("s_waitcnt lgkmcnt(0)\ns_barrier")
    if opt["tokpos"] == 32: tok_send(TOK, 3)
    qa_loads("" if opt["qaplain"] else "sc1")
stamp(4)
WO = BIG + 69632
A(f"v_lshlrev_b32 v40, 4, v0")
def wo_dmas():
    srd(R1, 14, 16*256*896)
    A(f"s_mul_i32 s56, s31, 28672\ns_mul_i32 s57, s3, 7168\ns_add_u32 s56, s56, s57\ns_add_u32 s57, s57, {WO}")
    for i in range(7):
        if i: A("s_add_u32 s56, s56, 1024")
        dma("v40", R1, "s56", "s57", 1024*i)
EW = 0
A(f"v_add_u32 v41, s59, v40")
A(f"s_lshl_b32 s64, s3, 10\ns_add_u32 s64, s64, {BIG}\nv_add_u32 v42, s64, v40")
A(f"v_add_u32 v43, 0x10000, v42")
A(f"v_lshlrev_b32 v56, 5, v0\ns_lshl_b32 s64, s3, 3\nv_add_u32 v57, s64, v56")
A(f"v_lshlrev_b32 v58, 4, {vN}\ns_lshl_b32 s64, s3, 2\nv_add_u32 v59, s64, v58")
A("v_mov_b32 v60, 0x3f803f80\nv_mov_b32 v61, v60\nv_mov_b32 v62, v60\nv_mov_b32 v63, v60")
A(f"v_mul_u32_u24 v36, {4*LS}, {vG}\nv_lshl_add_u32 v36, {vN}, 4, v36")
A(f"s_mul_i32 s64, s3, {32*LS}\ns_lshl_b32 s63, s31, 8\ns_add_u32 s64, s64, s63\ns_add_u32 s64, s64, {LAT}\ns_mul_i32 s66, s31, {SS}\ns_add_u32 s66, s66, {STAT}")
A("s_mov_b32 s65, 0xfffefffe\ns_mov_b32 s67, 0x07060302")
A("s_cmp_eq_u32 s3, 3\ns_cselect_b32 s68, 0xffff, 0")
if opt["stat4"]:
    A(f"v_lshrrev_b32 v52, 2, v0\nv_mul_u32_u24 v37, {S4}, v52\nv_and_b32 v53, 3, v0\nv_lshl_add_u32 v37, v53, 4, v37\nv_lshlrev_b32 v52, 2, v52")
    A(f"s_mul_i32 s66, s3, {32*S4}\ns_lshl_b32 s62, s31, 6\ns_add_u32 s66, s66, s62\ns_add_u32 s66, s66, {ST3}")
if opt["stat3"]:
    sh = opt["stat3"]
    A(f"v_lshlrev_b32 v37, {sh+7}, v0\ns_lshl_b32 s66, s3, {sh+12}\ns_lshl_b32 s62, s31, {sh}\ns_add_u32 s66, s66, s62\ns_add_u32 s66, s66, {ST3}")
GW = 2
A(f"s_lshr_b32 s62, s31, 5\ns_lshl_b32 s63, s62, 6\nv_mov_b32 v52, s63\nv_mov_b32 v53, 1\ns_add_u32 s73, s63, {QAF}\nv_mul_u32_u24 v54, {SS}, v0\ns_mov_b32 s74, 0")
def arrive():
    A(f"s_cmp_lg_u32 s3, {GW}\ns_cbranch_scc1 L_arr\ns_mov_b64 exec, 1")
    A.raw("  global_atomic_add v53, v52, v53, s[26:27] sc0 sc1")
    A("s_mov_b64 exec, -1")
    A.label("L_arr")
def resolve():
    A(f"s_cmp_lg_u32 s3, {GW}\ns_cbranch_scc1 L_res")
    A("s_waitcnt vmcnt(0)")
    A.label("L_res2")
    A("v_readfirstlane_b32 s74, v53")
    A.label("L_res")
def go():
    A(f"s_cmp_lg_u32 s74, 31\ns_cbranch_scc1 L_go")
    A(f"buffer_store_dword {vTAG}, v54, {WS}, s73 offen sc1\ns_add_u32 s73, s73, {64*SS}\nbuffer_store_dword {vTAG}, v54, {WS}, s73 offen sc1")
    A.label("L_go")
A("s_waitcnt vmcnt(16)"); stage_tile(2)
A("s_waitcnt vmcnt(8)"); stage_tile(3)
A("s_mov_b32 s75, 0")
spin_init()
A("s_waitcnt lgkmcnt(0)")
stamp(5)
A.label("L_qk")
for s in range(8):
    if s == 0:
        A("s_waitcnt vmcnt(4)")
        for s2 in range(4): A(f"ds_read_b128 v[{64+4*s2}:{67+4*s2}], v{48+s2}")
    if s == 1:
        A("s_waitcnt vmcnt(0)")
        for s2 in range(4): A(f"ds_read_b128 v[{80+4*s2}:{83+4*s2}], v{48+s2} offset:4096")
    A(f"s_waitcnt lgkmcnt({3 if s == 0 else 7-s})")
    for T in range(4):
        A(f"v_mfma_f32_16x16x32_bf16 v[{96+4*T}:{99+4*T}], a[{32*T+4*s}:{32*T+4*s+3}], v[{64+4*s}:{67+4*s}], {'0' if s==0 else f'v[{96+4*T}:{99+4*T}]'}")
        if s == 0 and T == 0: A("v_xor_b32 v55, v64, v32")
        else: A(f"v_bitop3_b32 v55, v{64+4*s+T}, v{32+T}, v55 bitop3:0xbe")
A("v_and_b32 v55, 0x10001, v55\nv_cmp_ne_u32 vcc, 0, v55\ns_cbranch_vccz L_qk2")
A("s_nop 7")
qa_loads()
spin_check()
if STAMPS: A(f"s_sub_u32 s62, 400000, s96\nv_writelane_b32 {vST}, s62, 14")
A("s_branch L_qk")
A.label("L_qk2")
A("s_nop 4")
if opt["hpos"] == 0: arrive()
stamp(6)
for T in range(4): A(f"ds_write_b128 v41, v[{96+4*T}:{99+4*T}] offset:{1024*T}")
A("s_waitcnt lgkmcnt(0)\ns_barrier")
if opt["hpos"] == 1: arrive()
stamp(7)
A("ds_read_b128 v[64:67], v42\nds_read_b128 v[68:71], v42 offset:32768\nds_read_b128 v[72:75], v43\nds_read_b128 v[76:79], v43 offset:32768")
A("s_waitcnt lgkmcnt(2)")
for r in range(4): A(f"v_add_f32 v{64+r}, v{64+r}, v{68+r}")
A("s_waitcnt lgkmcnt(0)")
for r in range(4): A(f"v_add_f32 v{72+r}, v{72+r}, v{76+r}")
for r in range(4): A(f"v_add_f32 v{64+r}, v{64+r}, v{72+r}")
if opt["round_s"]:
    A("v_cvt_pk_bf16_f32 v68, v64, v65\nv_cvt_pk_bf16_f32 v69, v66, v67")
    A("v_lshlrev_b32 v64, 16, v68\nv_and_b32 v65, 0xffff0000, v68\nv_lshlrev_b32 v66, 16, v69\nv_and_b32 v67, 0xffff0000, v69")
for r in range(4): A(f"v_mul_f32 v{64+r}, {hex(f2u(1.4426950408889634))}, v{64+r}")
A("v_max3_f32 v68, v64, v65, v66\nv_max_f32 v68, v68, v67")
swap_red(68, 69, 16, "v_max_f32"); swap_red(68, 69, 32, "v_max_f32")
A("v_ceil_f32 v68, v68")
for r in range(4): A(f"v_sub_f32 v{64+r}, v{64+r}, v68")
for r in range(4): A(f"v_exp_f32 v{64+r}, v{64+r}")
A(f"ds_write_b32 v59, v68 offset:{EX+2048}")
A("v_cvt_pk_bf16_f32 v64, v64, v65\nv_cvt_pk_bf16_f32 v65, v66, v67")
A(f"ds_write_b64 v57, v[64:65] offset:{EX}")
A("s_waitcnt lgkmcnt(0)\ns_barrier")
resolve()
A(f"ds_read_b128 v[72:75], v58 offset:{EX+2048}\nds_read_b128 v[64:67], v56 offset:{EX}\nds_read_b128 v[68:71], v56 offset:{EX+16}")
A("s_waitcnt lgkmcnt(2)")
A("v_max3_f32 v76, v72, v73, v74\nv_max_f32 v76, v76, v75")
for T in range(4):
    A(f"v_sub_f32 v{72+T}, v76, v{72+T}\nv_min_f32 v{72+T}, 0x437f0000, v{72+T}\nv_cvt_u32_f32 v{72+T}, v{72+T}\nv_mul_u32_u24 v{72+T}, 0x800080, v{72+T}")
A("s_waitcnt lgkmcnt(0)")
for T in range(4):
    for k in range(2): A(f"v_pk_sub_u16 v{64+2*T+k}, v{64+2*T+k}, v{72+T} clamp")
stamp(8)
ACC = 128
def pv(t):
    for u in range(2):
        A(f"v_mfma_f32_16x16x32_bf16 v[{ACC+4*t}:{ACC+4*t+3}], v[{64+4*u}:{67+4*u}], a[{128+8*t+4*u}:{131+8*t+4*u}], {'0' if u==0 else f'v[{ACC+4*t}:{ACC+4*t+3}]'}")
def latpack(half, r, jj):
    d = 96 + 16*half + 4*r + jj; t0 = 8*half + 2*jj
    return [f"v_perm_b32 v{d}, v{ACC+4*(t0+1)+r}, v{ACC+4*t0+r}, s67", f"v_pk_add_u16 v{d}, v{d}, v{28+jj}", f"v_and_or_b32 v{d}, v{d}, s65, v{24+jj}"]
def latstore(half, r):
    d = 96 + 16*half + 4*r
    return [f"s_add_u32 s63, s64, {(half*16+r)*LS}", f"buffer_store_dwordx4 v[{d}:{d+3}], v36, {WS}, s63 offen sc1"]
def statstore():
    if opt["stat4"]:
        A("s_waitcnt lgkmcnt(0)")
        A(f"buffer_store_dwordx4 v[84:87], v37, {WS}, s66 offen sc1\ns_add_u32 s66, s66, {16*S4}\nbuffer_store_dwordx4 v[84:87], v37, {WS}, s66 offen sc1")
        return
    if opt["stat3"]:
        A(f"s_mov_b32 exec_hi, 0\nbuffer_store_dwordx4 v[76:79], v37, {WS}, s66 offen sc1\ns_mov_b64 exec, -1")
        return
    A(f"s_mov_b32 exec_lo, s68\ns_mov_b32 exec_hi, 0\ns_cbranch_execz L_st{statstore.n}")
    A(f"buffer_store_dwordx4 v[76:79], v40, {WS}, s66 offen sc1")
    A.label(f"L_st{statstore.n}")
    A("s_mov_b64 exec, -1")
statstore.n = 0
for u in range(2): A(f"v_mfma_f32_16x16x32_bf16 v[80:83], v[60:63], v[{64+4*u}:{67+4*u}], {'0' if u==0 else 'v[80:83]'}")
for t in range(8):
    pv(t)
    if t == 4 and opt["stat4"]:
        A(f"ds_bpermute_b32 v84, v52, v76\nds_bpermute_b32 v85, v52, v80\nv_mov_b32 v86, {vTAG}\nv_mov_b32 v87, {vTAG}")
if not opt["stat4"]: A(f"v_mov_b32 v77, v80\nv_mov_b32 v78, {vTAG}\nv_mov_b32 v79, {vTAG}")
if opt["statpos"] == 0: statstore()
if opt["gopos"] == 0: go()
fill = []
for r in range(4):
    for jj in range(4): fill += latpack(0, r, jj)
    fill += latstore(0, r)
pv(8)
mf = [(t, u) for t in range(9, 16) for u in range(2)]
per = -(-len(fill) // len(mf))
for k, (t, u) in enumerate(mf):
    A(f"v_mfma_f32_16x16x32_bf16 v[{ACC+4*t}:{ACC+4*t+3}], v[{64+4*u}:{67+4*u}], a[{128+8*t+4*u}:{131+8*t+4*u}], {'0' if u==0 else f'v[{ACC+4*t}:{ACC+4*t+3}]'}")
    for x in fill[k*per:(k+1)*per]: A(x)
if opt["statpos"] == 1: statstore()
if opt["gopos"] == 1: go()
for r in range(4):
    for jj in range(4):
        for x in latpack(1, r, jj): A(x)
    for x in latstore(1, r): A(x)
if opt["statpos"] == 2: statstore()
if opt["gopos"] == 2: go()
stamp(9)
if opt["statpos"] == 3:
    A("s_waitcnt vmcnt(4)"); statstore()
if opt["statpos"] == 4:
    A("s_waitcnt vmcnt(0)"); statstore()
if opt["ackwait"]:
    A("s_waitcnt vmcnt(4)"); stamp(2)
    A("s_waitcnt vmcnt(0)"); stamp(3)
dma.skip = True
A("s_mov_b32 s76, 0\ns_cmp_ge_u32 s31, 112\ns_cbranch_scc1 L_af1")
WD = BIG + 36864
srd(R2, 22, 1792*896)
A(f"s_mul_i32 s55, s31, 14336\ns_lshr_b32 s62, s3, 1\ns_mul_i32 s63, s62, 7168\ns_and_b32 s62, s3, 1\ns_mul_i32 s62, s62, 3072\ns_add_u32 s62, s62, s63\ns_add_u32 s55, s55, s62\ns_add_u32 s69, s62, {WD}\nv_lshlrev_b32 v40, 4, v0")
for i in range(4):
    if i: A("s_add_u32 s55, s55, 1024")
    dma("v40", R2, "s55", "s69", 1024*i)
A("s_mov_b32 s76, 1")
A.label("L_af1")
pub_setup(WD)
A(f"v_lshlrev_b32 v191, 8, v43\nv_lshl_add_u32 v191, {vG}, 6, v191\nv_lshl_add_u32 v191, v44, 4, v191\ns_mul_i32 s77, s31, {SS}\ns_add_u32 s77, s77, {HP}")
A(f"v_mov_b32 v190, v42\ns_add_u32 s78, s64, {YP}\ns_mov_b32 s79, s67")
if opt["wopos"] == 0: wo_dmas()
A(f"s_waitcnt vmcnt({7 if opt['wopos']==0 else 0})")
A(f"buffer_load_dwordx4 v[68:71], v191, {WS}, s77 offen sc1")
if opt["wopos"] == 1: wo_dmas()
A("s_barrier")
for t in range(8): A(f"ds_read_b64_tr_b16 v[{192+2*t}:{193+2*t}], v46 offset:{32*t}")
A(f"v_add_u32 v46, {WO-WD}, v46")
A("s_cmp_eq_u32 s76, 0\ns_cbranch_scc1 L_af2")
ffn2_try("L_f2a", "L_af2", 7 if opt["wopos"] == 1 else 0)
stamp(10)
A("s_waitcnt vmcnt(1)\ns_branch L_af3")
A.label("L_af2")
A("s_waitcnt vmcnt(0)")
A.label("L_af3")
A("s_barrier")
A("s_cmp_eq_u32 s76, 0\ns_cbranch_scc1 L_af4")
ffn2_try("L_f2b", "L_af4")
stamp(1)
A.label("L_af4")
stamp(11)
for t in range(8):
    for z in range(2): A(f"ds_read_b64_tr_b16 v[{96+4*t+2*z}:{97+4*t+2*z}], v46 offset:{32*t+16*896*z}")
A(f"v_lshrrev_b32 v45, 1, {vN}\nv_lshlrev_b32 v45, 8, v45\nv_lshl_add_u32 v45, {vG}, 6, v45\nv_lshl_add_u32 v45, v14, 4, v45\ns_mul_i32 s63, s31, {SS}\ns_add_u32 s63, s63, {CTXP}")
def ctx_first(b):
    for r in range(8): A(f"v_add_f32_dpp v{68+r}, v{b+r}, v{b+r} row_ror:2 {DPPM}")
pipe_poll("L_ac", [("v45", "s63", 0), ("v45", "s63", 32)], [164, 172], ctx_first, pre=(opt['prepoll']>1))
stamp(12)
for k in (4, 8):
    for r in range(8): A(f"v_add_f32_dpp v{68+r}, v{68+r}, v{68+r} row_ror:{k} {DPPM}")
for r in range(4): A(f"v_cvt_pk_bf16_f32 v{80+r}, v{68+2*r}, v{69+2*r}")
A("s_waitcnt lgkmcnt(0)")
for t in range(8): A(f"v_mfma_f32_16x16x32_bf16 v[{128+4*t}:{131+4*t}], v[{96+4*t}:{99+4*t}], v[80:83], 0")
merged_publish(128, OUTP)
stamp(13)
A("s_cmp_eq_u32 s76, 0\ns_cbranch_scc1 L_end")
spin_init()
A.label("L_f2c")
spin_check()
ffn2_try("L_f2d", "L_f2c")
stamp(2)
A.label("L_end")
if opt["hold"]:
    if opt["holdwg"] >= 0: A(f"s_cmp_lg_u32 s2, {opt['holdwg']}\ns_cbranch_scc1 L_end0")
    A.label("L_hold")
    A(f"s_memrealtime s[98:99]\ns_waitcnt lgkmcnt(0)\ns_sub_u32 s98, s98, s100\ns_cmp_lt_u32 s98, {opt['hold']}\ns_cbranch_scc1 L_hold")
if STAMPS:
    A("s_mov_b64 exec, -1")
    A("s_memrealtime s[98:99]\ns_waitcnt lgkmcnt(0)")
    A(f"v_writelane_b32 {vST}, s98, 15")
    A(f"s_lshl_b32 s62, s2, 2\ns_add_u32 s62, s62, s3\ns_lshl_b32 s62, s62, 8\ns_add_u32 s62, s62, {STAMP}\nv_lshlrev_b32 v4, 2, v0")
    A(f"buffer_store_dword {vST}, v4, {WS}, s62 offen")
    if STAMPS == 2:
        wmap = {0:0, 3:1, 5:2, 7:3, 8:4, 10:5, 12:6, 15:15}
        amap = {0:0, 4:8, 6:9, 7:10, 9:11, 11:12, 12:13, 13:14, 15:15}
        A("v_mov_b32 v5, 63\nv_mov_b32 v6, 63")
        for k, sl in wmap.items(): A(f"s_mov_b32 s63, {sl}\nv_writelane_b32 v5, s63, {k}")
        for k, sl in amap.items(): A(f"s_mov_b32 s63, {sl}\nv_writelane_b32 v6, s63, {k}")
        A(f"v_readlane_b32 s63, {vST}, 0\ns_nop 3\ns_mov_b32 s64, s63\ns_not_b32 s63, s63\nv_writelane_b32 {vST}, s63, 0")
        A(f"v_writelane_b32 {vST}, s64, 16\ns_mov_b32 s63, 7\nv_writelane_b32 v5, s63, 16\nv_writelane_b32 v6, s63, 16")
        A("s_cmp_ge_u32 s2, 128\ns_cselect_b64 vcc, -1, 0\ns_nop 1\nv_cndmask_b32 v5, v5, v6, vcc\nv_lshlrev_b32 v5, 2, v5")
        A("s_mov_b64 exec, 0x1ffff")
        A.raw(f"  global_atomic_umax v5, {vST}, s[26:27] sc1")
A.label("L_end0")
A("s_endpgm")
A.raw(f".fill ({opt['codekb']}*1024 - (. - {NAME}))/4, 4, 0xbf800000")
A.raw('.section .rodata,"a"\n.p2align 6')
A.raw(f""".amdhsa_kernel {NAME}
  .amdhsa_next_free_vgpr 512
  .amdhsa_next_free_sgpr 102
  .amdhsa_accum_offset 256
  .amdhsa_group_segment_fixed_size 0
  .amdhsa_kernarg_size 104
  .amdhsa_user_sgpr_count 2
  .amdhsa_user_sgpr_kernarg_segment_ptr 1
  .amdhsa_system_sgpr_workgroup_id_x 1
.end_amdhsa_kernel""")
sys.stdout.write(A.text())
```
